```python
import torch

def _softmax(x, axis=-1):
    return torch.softmax(x, dim=axis)
def _gelu(x):
    return torch.nn.functional.gelu(x, approximate="tanh")
def _silu(x):
    return torch.nn.functional.silu(x)
def _sigmoid(x):
    return torch.sigmoid(x)
def _layernorm(x, axis=-1, eps=1e-5):
    m = x.mean(dim=axis, keepdim=True)
    v = x.var(dim=axis, keepdim=True, unbiased=False)
    return (x - m) / torch.sqrt(v + eps)
def _scatter_add(tgt, idx, src, axis=0):
    return tgt.clone().index_add_(axis, idx, src)
def _segment_sum(src, seg, n):
    out = torch.zeros((n,) + src.shape[1:], dtype=src.dtype)
    return out.index_add_(0, seg, src)
def _pad(x, pw):
    flat = tuple(v for pair in reversed(pw) for v in pair)
    return torch.nn.functional.pad(x, flat)

kernel_name = 'recurrent_scan__mha_block_cached__glu_gated_swiglu__prompt'

def setup_inputs():

    _w = (lambda a: (lambda t: t.to(torch.bfloat16) if t.is_floating_point() else t)(torch.as_tensor(a)))
    def _A_setup():
        B, Sq, D = 1, 2048, 448
        H, Sk, Dh = 16, 2048, 256
        return {
            "x": _w((lambda *s: torch.randn(*s, dtype=torch.bfloat16) * 0.05)(B, Sq, D)),
            "k_cache": _w((lambda *s: torch.randn(*s, dtype=torch.bfloat16) * 1.6)(B, H, Sk, Dh)),
            "v_cache": _w((lambda *s: torch.randn(*s, dtype=torch.bfloat16) * 1.6)(B, H, Sk, Dh)),
            "wq": _w((lambda *s: torch.randn(*s, dtype=torch.bfloat16) * 1.6)(D, H * Dh) * (D ** -0.5)),
            "wo": _w((lambda *s: torch.randn(*s, dtype=torch.bfloat16) * 1.6)(H * Dh, D) * ((H * Dh) ** -0.5)),
        }
    _A_in = _A_setup()

    def _B_setup():
        B, S, D, F = 1, 2048, 448, 1792
        return {
            "x": _w((lambda *s: torch.randn(*s, dtype=torch.bfloat16) * 0.05)(B, S, D)),
            "w1": _w((lambda *s: torch.randn(*s, dtype=torch.bfloat16) * 0.2)(D, F) * (2.0 / D) ** 0.5),
            "w3": _w((lambda *s: torch.randn(*s, dtype=torch.bfloat16) * 0.2)(D, F) * (2.0 / D) ** 0.5),
            "w2": _w((lambda *s: torch.randn(*s, dtype=torch.bfloat16) * 0.2)(F, D) * (2.0 / F) ** 0.5),
        }
    _B_in = _B_setup()

    return {
        "A_x": _A_in["x"],
        "A_k_cache": _A_in["k_cache"],
        "A_v_cache": _A_in["v_cache"],
        "A_wq": _A_in["wq"],
        "A_wo": _A_in["wo"],
        "B_x": _B_in["x"],
        "B_w1": _B_in["w1"],
        "B_w3": _B_in["w3"],
        "B_w2": _B_in["w2"],
    }

def reference(A_x, A_k_cache, A_v_cache, A_wq, A_wo, B_x, B_w1, B_w3, B_w2):
    def _A_ref(x, k_cache, v_cache, wq, wo):
        B, Sq, D = x.shape
        H, Dh = 16, 256
        q = (lambda x, *d: x.permute(*d))((x @ wq).reshape(B, Sq, H, Dh), 0, 2, 1, 3)
        scores = torch.einsum("bhqd,bhkd->bhqk", q, k_cache) * (Dh ** -0.5)
        p = _softmax(scores, axis=-1)
        o = torch.einsum("bhqk,bhkd->bhqd", p, v_cache)
        return (lambda x, *d: x.permute(*d))(o, 0, 2, 1, 3).reshape(B, Sq, H * Dh) @ wo

    def _B_ref(x, w1, w3, w2):
        gate = torch.einsum("bsd,df->bsf", x, w1)
        up = torch.einsum("bsd,df->bsf", x, w3)
        h = _silu(gate) * up
        out = torch.einsum("bsf,fd->bsd", h, w2)
        return out

    x = A_x
    xn = _layernorm(x, axis=-1)
    s = _A_ref(xn, A_k_cache, A_v_cache, A_wq, A_wo)
    g = _silu(_B_ref(xn, B_w1, B_w3, B_w2))
    return x + s * g
```

```python
import re

class Prog:
    def __init__(self):
        self.lines = []
        self.lgkm = []
        self.vm = []
    def ins(self, t):
        self.lines.append("    " + t)
    def label(self, l):
        self.lines.append(l + ":")
    def comment(self, c):
        self.lines.append("    ; " + c)
    def ds(self, t, tag):
        self.ins(t); self.lgkm.append(tag)
        assert len(self.lgkm) <= 15, "lgkm overflow: %s" % (self.lgkm,)
    def vmem(self, t, tag):
        self.ins(t); self.vm.append(tag)
        assert len(self.vm) <= 63, "vm overflow"
    def _need(self, q, tags):
        last = -1
        for i, t in enumerate(q):
            if t in tags: last = i
        return last
    def wait(self, lg=(), vm=(), force=False):
        parts = []
        if lg == "all": lg = set(self.lgkm)
        if vm == "all": vm = set(self.vm)
        i = self._need(self.vm, set(vm))
        if i >= 0:
            n = len(self.vm) - 1 - i
            parts.append("vmcnt(%d)" % n); self.vm = self.vm[i + 1:]
        i = self._need(self.lgkm, set(lg))
        if i >= 0:
            n = len(self.lgkm) - 1 - i
            parts.append("lgkmcnt(%d)" % n); self.lgkm = self.lgkm[i + 1:]
        if parts:
            self.ins("s_waitcnt " + " ".join(parts))
            return True
        return False
    def text(self):
        return "\n".join(self.lines) + "\n"

_reg_re = re.compile(r"\b([vas])(\d+)\b|\b([vas])\[(\d+):(\d+)\]|\b(vcc|exec|m0|scc)\b")
def regs_of(op):
    out = set()
    for m in _reg_re.finditer(op):
        if m.group(1): out.add((m.group(1), int(m.group(2))))
        elif m.group(3):
            for i in range(int(m.group(4)), int(m.group(5)) + 1): out.add((m.group(3), i))
        else: out.add((m.group(6), 0))
    return out

TRANS = ("v_exp_f32", "v_log_f32", "v_rcp_f32", "v_rsq_f32", "v_sqrt_f32", "v_sin_f32", "v_cos_f32")
class I:
    pass
def parse(line):
    s = line.split(";")[0].strip()
    if not s or s.endswith(":") or s.startswith("."): return None
    sp = s.split(None, 1)
    i = I(); i.op = sp[0]; i.text = s
    ops = []
    if len(sp) > 1:
        depth = 0; cur = ""
        for ch in sp[1]:
            if ch == "[": depth += 1
            if ch == "]": depth -= 1
            if ch == "," and depth == 0: ops.append(cur.strip()); cur = ""
            else: cur += ch
        ops.append(cur.strip())
    i.ops = ops
    op = i.op
    i.kind = "other"; i.wr = set(); i.rd = set(); i.ws = 1
    if op.startswith("v_mfma"):
        i.kind = "mfma"; i.wr = regs_of(ops[0]); i.a = regs_of(ops[1]); i.b = regs_of(ops[2]); i.c = regs_of(ops[3])
        i.rd = i.a | i.b | i.c
        i.passes = 8 if "32x32x16" in op else 4
    elif op == "v_nop":
        i.kind = "valu"; i.trans = False
    elif op.startswith("v_"):
        i.kind = "valu"
        if op.startswith("v_cmp"):
            i.wr = regs_of(ops[0]); i.rd = set().union(*[regs_of(o) for o in ops[1:]])
        elif op.startswith("v_permlane") and "swap" in op:
            i.wr = regs_of(ops[0]) | regs_of(ops[1]); i.rd = set(i.wr)
        elif op.startswith(("v_add_co", "v_sub_co", "v_addc_co", "v_subb_co")):
            i.wr = regs_of(ops[0]) | regs_of(ops[1]); i.rd = set().union(*[regs_of(o) for o in ops[2:]])
        else:
            i.wr = regs_of(ops[0]); i.rd = set().union(*[regs_of(o) for o in ops[1:]]) if len(ops) > 1 else set()
            if op.startswith(("v_fmac", "v_dot2c", "v_pk_fmac")): i.rd |= i.wr
        i.trans = op.replace("_e32", "").replace("_e64", "") in TRANS
    elif op.startswith("ds_"):
        i.kind = "ds"
        if op.startswith("ds_read") or op.startswith("ds_bpermute") or op.startswith("ds_swizzle"):
            i.wr = regs_of(ops[0]); i.rd = set().union(*[regs_of(o) for o in ops[1:]])
        else:
            i.rd = set().union(*[regs_of(o) for o in ops])
    elif op.startswith("buffer_") or op.startswith("global_"):
        i.kind = "vmem"
        lds = s.rstrip().endswith(" lds") or "_lds_" in op
        i.lds = lds
        if "store" in op or "atomic" in op or lds:
            i.rd = set().union(*[regs_of(o) for o in ops])
            if lds: i.rd.add(("m0", 0))
            if "store" in op:
                i.sdata = regs_of(ops[0]) if op.startswith("buffer_") else regs_of(ops[1])
                i.wide = ("x4" in op or "x3" in op)
        else:
            i.wr = regs_of(ops[0]); i.rd = set().union(*[regs_of(o) for o in ops[1:]])
    elif op.startswith("s_"):
        i.kind = "salu"
        if op == "s_nop": i.ws = int(ops[0], 0) + 1
        elif op.startswith(("s_cmp", "s_cbranch", "s_branch", "s_waitcnt", "s_barrier", "s_endpgm", "s_setprio", "s_sleep")):
            i.rd = set().union(*[regs_of(o) for o in ops]) if ops else set()
        elif ops:
            i.wr = regs_of(ops[0]); i.rd = set().union(*[regs_of(o) for o in ops[1:]]) if len(ops) > 1 else set()
    return i

def check_seq(seq, where=""):
    probs = []
    n = len(seq)
    for k, c in enumerate(seq):
        dist = 0
        j = k - 1
        while j >= 0 and dist < 24:
            p = seq[j]
            need = 0; why = ""
            if p.kind == "mfma":
                P = p.passes
                big = {4: 8, 8: 12}[P]; ovl = {4: 6, 8: 10}[P]; war = {4: 3, 8: 7}[P]
                if c.kind == "mfma":
                    if (c.a | c.b) & p.wr: need, why = big, "mfma D->AB"
                    elif c.c & p.wr and not (c.c == p.wr and c.passes == p.passes): need, why = ovl, "mfma D->C overlap"
                    elif c.wr & p.wr and not (c.c == p.wr): need, why = big, "mfma WAW(?)"
                elif c.kind in ("valu", "ds", "vmem"):
                    if (c.rd | c.wr) & p.wr: need, why = big, "mfma D->valu/mem"
                    elif c.kind == "valu" and c.wr & p.c: need, why = war, "mfma C WAR"
            elif p.kind == "valu":
                vw = {r for r in p.wr if r[0] in "va"}
                sw = {r for r in p.wr if r[0] not in "va"}
                if c.kind == "mfma" and c.rd & vw: need, why = 2, "valu->mfma"
                if c.kind == "valu":
                    if getattr(p, "trans", False) and not c.trans and (c.rd & vw): need, why = max(need, 1), "trans->valu"
                    if c.op.startswith("v_permlane") and c.rd & vw: need, why = 2, "valu->permlane"
                    if c.op.startswith(("v_readfirstlane", "v_readlane")) and c.rd & vw: need, why = max(need, 1), "valu->readlane"
                    if "dpp" in c.text and c.rd & vw: need, why = 2, "valu->dpp"
                    if c.rd & sw: need, why = max(need, 2), "valu sgpr->valu"
                    if "sdwa" in p.op and c.rd & vw: need, why = max(need, 1), "sdwa->valu"
                if c.kind == "vmem" and c.rd & sw: need, why = 5, "valu sgpr->vmem"
                if ("exec", 0) in sw and c.kind == "mfma": need, why = 4, "exec->mfma"
            elif p.kind == "salu":
                if ("m0", 0) in p.wr and c.kind == "vmem" and getattr(c, "lds", False): need, why = 1, "m0->dma"
            elif p.kind == "vmem" and hasattr(p, "sdata") and p.wide:
                if c.wr & p.sdata: need, why = (2 if c.kind == "valu" else 1), "store data WAR"
            if need > dist:
                probs.append("%s hazard %s: need %d have %d\n   P: %s\n   C: %s" % (where, why, need, dist, p.text, c.text))
            dist += p.ws
            j -= 1
    return probs

def check_text(text):
    lines = text.split("\n")
    items = []; labels = {}
    for ln in lines:
        s = ln.split(";")[0].strip()
        if s.endswith(":") and not s.startswith("."):
            labels[s[:-1]] = len(items); continue
        if s.endswith(":"):
            labels[s[:-1]] = len(items); continue
        p = parse(ln)
        if p: items.append(p)
    probs = []
    seg = []
    for it in items:
        seg.append(it)
        if it.op in ("s_branch", "s_endpgm", "s_setpc_b64"):
            probs += check_seq(seg, "lin"); seg = []
    probs += check_seq(seg, "lin")
    for k, it in enumerate(items):
        if it.op.startswith("s_cbranch") or it.op == "s_branch":
            tgt = it.ops[0]
            if tgt in labels:
                t = labels[tgt]
                pre = []
                j = k
                while j >= 0 and len(pre) < 30:
                    if j != k and items[j].op in ("s_branch", "s_endpgm", "s_setpc_b64"): break
                    pre.insert(0, items[j]); j -= 1
                post = []
                j = t
                while j < len(items) and len(post) < 30:
                    post.append(items[j])
                    if items[j].op in ("s_branch", "s_endpgm", "s_setpc_b64"): break
                    j += 1
                probs += check_seq(pre + post, "edge->%s" % tgt)
    return sorted(set(probs))

def need_between(p, c):
    need = 0; why = ""
    if p.kind == "mfma":
        P = p.passes
        big = {4: 8, 8: 12}[P]; ovl = {4: 6, 8: 10}[P]; war = {4: 3, 8: 7}[P]
        if c.kind == "mfma":
            if (c.a | c.b) & p.wr: need, why = big, "mfma D->AB"
            elif c.c & p.wr and not (c.c == p.wr and c.passes == p.passes): need, why = ovl, "mfma D->C overlap"
            elif c.wr & p.wr and not (c.c == p.wr): need, why = big, "mfma WAW(?)"
        elif c.kind in ("valu", "ds", "vmem"):
            if (c.rd | c.wr) & p.wr: need, why = big, "mfma D->valu/mem"
            elif c.kind == "valu" and c.wr & p.c: need, why = war, "mfma C WAR"
    elif p.kind == "valu":
        vw = {r for r in p.wr if r[0] in "va"}
        sw = {r for r in p.wr if r[0] not in "va"}
        if c.kind == "mfma" and c.rd & vw: need, why = 2, "valu->mfma"
        if p.op.startswith("v_dot") and c.kind in ("valu", "mfma", "vmem", "ds") and ((c.rd | c.wr) & vw):
            same_acc = (c.op == p.op and not ((c.rd - c.wr) & vw))
            if not same_acc: need, why = max(need, 3), "dot->other"
        if c.kind == "valu":
            if getattr(p, "trans", False) and not c.trans and (c.rd & vw): need, why = max(need, 1), "trans->valu"
            if c.op.startswith("v_permlane") and c.rd & vw: need, why = max(need, 2), "valu->permlane"
            if c.op.startswith(("v_readfirstlane", "v_readlane")) and c.rd & vw: need, why = max(need, 1), "valu->readlane"
            if "dpp" in c.text and c.rd & vw: need, why = max(need, 2), "valu->dpp"
            if c.rd & sw: need, why = max(need, 2), "valu sgpr->valu"
            if "sdwa" in p.op and c.rd & vw: need, why = max(need, 1), "sdwa->valu"
        if c.kind == "vmem" and c.rd & sw: need, why = 5, "valu sgpr->vmem"
        if c.kind == "salu" and c.rd & sw: need, why = max(need, 1), "valu sgpr->salu (pad)"
        if ("exec", 0) in sw and c.kind == "mfma": need, why = 4, "exec->mfma"
    elif p.kind == "salu":
        if ("m0", 0) in p.wr and c.kind == "vmem" and getattr(c, "lds", False): need, why = 1, "m0->dma"
    elif p.kind == "vmem" and hasattr(p, "sdata") and p.wide:
        if c.wr & p.sdata: need, why = (2 if c.kind == "valu" else 1), "store data WAR"
    return need, why

def fix_hazards(lines, report=None):
    out = []; hist = []
    for ln in lines:
        c = parse(ln)
        if c is None:
            out.append(ln); continue
        dist = 0; extra = 0; w = ""
        for p in reversed(hist[-24:]):
            need, why = need_between(p, c)
            if need - dist > extra: extra = need - dist; w = why + " | " + p.text
            dist += p.ws
            if dist >= 24: break
        if extra > 0:
            if report is not None: report.append((len(out), extra, w, c.text))
            nl = "    s_nop %d" % (extra - 1)
            out.append(nl); hist.append(parse(nl))
        out.append(ln); hist.append(c)
        if c.op in ("s_branch", "s_endpgm", "s_setpc_b64"): hist = []
    return out

class Gaps:
    def __init__(self, n, cap=3, vcap=2):
        self.n = n
        self.g = [[] for _ in range(n + 1)]
        self.used = [0] * (n + 1); self.vused = [0] * (n + 1)
        self.cap = cap; self.vcap = vcap
        self.over = 0
    def cost(self, kind):
        return {"V": (1, 1), "T": (2, 2), "N": (1, 0), "Z": (0, 0)}[kind]
    def fits(self, i, kind):
        c, v = self.cost(kind)
        return self.used[i] + c <= self.cap and self.vused[i] + v <= self.vcap
    def put(self, i, kind, item, limit=None, force=False):
        c, v = self.cost(kind)
        if limit is None: limit = self.n
        limit = min(limit, self.n)
        assert i <= limit, (i, limit, item)
        if not force:
            j = i
            while j <= limit and not self.fits(j, kind): j += 1
            if j > limit:
                j = i; self.over += 1
            i = j
        self.g[i].append((kind, item)); self.used[i] += c; self.vused[i] += v
        return i
    def items(self, i):
        a = [x for x in self.g[i] if x[0] in "NZ"]
        b = [x for x in self.g[i] if x[0] in "VT"]
        return [x[1] for x in a + b]
    def chain(self, ops, start, end, window=6):
        n = len(ops); last = start; lastv = -1
        tot = sum(self.cost(k)[0] for k, _ in ops); acc = 0
        for k, t in ops:
            tgt = start + ((end - start) * acc) // max(tot, 1)
            acc += self.cost(k)[0]
            g = max(tgt, last)
            if k in "NZ" and lastv == g: g += 1
            g = min(g, end)
            item = t if isinstance(t, tuple) else ("ins", t)
            if k in "NZ" and lastv == g:
                k2 = "V"
            else: k2 = k
            g = self.put(g, k2, item, limit=min(end, g + window))
            last = g
            if k2 in "VT": lastv = g
        return last
```

```python
import sys
from gen import *
NAME = "recurrent_scan__mha_block_cached__glu_gated_swiglu__prompt"
K1 = NAME + "_kernel"
K2 = "reduce_out_kernel"
LOG2E = 1.4426950408889634
import struct
def f2u(x): return struct.unpack("<I", struct.pack("<f", x))[0]
def r4(x, p="v"): return "%s[%d:%d]" % (p, x, x + 3)

WS_S = 0x0
WS_F = 0x2000000
WS_T = 0xa000000

def gen_k1(DK=6, DV=5, DW=5, sm_pv=6, stflag="", timing=False, dma_step=5, dma_first=3, verbose=True):
    P = Prog()
    O = 0; GU = 128; FRA = 192
    S = [16, 32]; NEGM = 48; LB = [56, 58]; MX = 60; TC = 62; T0 = 63
    WA = 48
    FRV = 64
    PT = 64; PK = [80, 88]
    KA = 96; VA = 100; KD = 108; VD = 112; TA = 116; TD = 124
    XC = lambda s, G: 128 + 8 * (13 - s) + 4 * G
    QF = lambda G, k: 128 + 32 * G + 4 * k
    H = lambda k, G: XC(k, G)
    OF = lambda k, G: 128 + 8 * k + 4 * G
    VAL = 240; WD = 248; QD = 252
    FA = [192, 200, 240, 248]
    VL16 = 1; MB = 2; RSQ = 2; DM = 4; RSN = 4; SS = 6; CI = 6; RL = 60
    TMP = 8
    SRD = dict(X=28, K=32, V=36, WQ=40, WO=44, W1=48, W3=52, W2=56, WS=60)
    def srd(n): return "s[%d:%d]" % (SRD[n], SRD[n] + 3)
    sH, sQB, sW, sM0, sSO, sLOOP, sTH, sRET, sFO, sSOe, sONE = 64, 65, 66, 67, 68, 70, 71, 72, 74, 75, 76
    sW13, sWQ, sW2, sWO, sK, sV, sT0, sT1, sMASK = 78, 79, 80, 81, 82, 83, 84, 85, 86
    I = P.ins
    I("s_cmp_ge_u32 s2, 256"); I("s_cbranch_scc1 L_end")
    I("s_load_dwordx16 s[4:19], s[0:1], 0"); I("s_load_dwordx8 s[20:27], s[0:1], 64")
    I("s_and_b32 s%d, s2, 7" % sH); I("s_lshr_b32 s%d, s2, 3" % sQB)
    I("s_lshr_b32 s%d, s%d, 4" % (sT0, sQB)); I("s_lshl_b32 s%d, s%d, 1" % (sH, sH)); I("s_add_u32 s%d, s%d, s%d" % (sH, sH, sT0))
    I("s_and_b32 s%d, s%d, 15" % (sQB, sQB))
    I("v_lshrrev_b32 v8, 6, v0"); I("s_nop 0"); I("v_readfirstlane_b32 s%d, v8" % sW)
    I("v_and_b32 v9, 63, v0")
    I("v_and_b32 v10, 15, v0")
    I("v_bfe_u32 v11, v0, 4, 2")
    I("v_lshlrev_b32 v%d, 4, v9" % VL16)
    I("v_mul_u32_u24 v2, 896, v10"); I("v_lshl_add_u32 v2, v11, 4, v2"); I("v_add_u32 v3, 14336, v2")
    I("s_lshl_b32 s%d, s%d, 2" % (sT0, sQB)); I("s_add_u32 s%d, s%d, s%d" % (sT0, sT0, sW))
    I("s_mul_i32 s%d, s%d, %d" % (sT1, sT0, 32 * 896))
    I("s_waitcnt lgkmcnt(0)")
    def mk(n, lo, size, add=None):
        d = SRD[n]
        if add is None: I("s_mov_b32 s%d, s%d" % (d, lo)); I("s_mov_b32 s%d, s%d" % (d + 1, lo + 1))
        else: I("s_add_u32 s%d, s%d, s%d" % (d, lo, add)); I("s_addc_u32 s%d, s%d, 0" % (d + 1, lo + 1))
        I("s_mov_b32 s%d, 0x%x" % (d + 2, size)); I("s_mov_b32 s%d, 0x20000" % (d + 3))
    mk("X", 4, 2048 * 896)
    for G in range(2):
        for s in range(14):
            P.vmem("buffer_load_dwordx4 %s, v%d, %s, s%d offen offset:%d" % (r4(XC(s, G)), 2 + G, srd("X"), sT1, 64 * s), "x")
    if timing: I("s_memtime s[90:91]"); I("s_memrealtime s[92:93]")
    mk("W1", 16, 448 * 3584); mk("W3", 18, 448 * 3584)
    I("s_lshl_b32 s%d, s%d, 12" % (sM0, sW))
    I("s_mul_i32 s%d, s%d, 224" % (sW13, sH))
    I("s_lshr_b32 s%d, s%d, 1" % (sK, sW)); I("s_lshl_b32 s%d, s%d, 5" % (sK, sK)); I("s_and_b32 s%d, s%d, 1" % (sV, sW)); I("s_lshl_b32 s%d, s%d, 2" % (sV, sV))
    I("s_add_u32 s%d, s%d, s%d" % (sK, sK, sV))
    I("v_add_u32 v12, s%d, v11" % sK); I("v_mul_u32_u24 v12, 3584, v12")
    I("v_and_b32 v13, 1, v10"); I("v_lshl_add_u32 v12, v13, 4, v12"); I("v_lshrrev_b32 v13, 1, v10")
    for j in range(4):
        I("v_add_u32 v14, %d, v11" % (4 * (j & 1))); I("v_xor_b32 v14, v14, v13"); I("v_lshl_add_u32 v14, v14, 5, v12")
        I("v_add_u32 v%d, %d, v14" % (WD + j, j * (8 * 3584 - 1024)))
    NV = 12
    tiles = []
    for t in range(7): tiles.append([("W1", WD, (sW13, t * 64 * 3584)), ("W3", WD, (sW13, t * 64 * 3584))])
    for j in range(7): tiles.append([("WQ", QD, (sWQ, 64 * j * 8192)), ("WQ", QD, (sWQ, (64 * j + 32) * 8192))])
    for j in range(3): tiles.append([("W2", TD, (sW2, 256 * j)), ("W2", TD, (sW2, 256 * j + 128))])
    tiles.append([("K", KD, "inc"), ("W2", TD, (sW2, 768))])
    for n in range(NV): tiles.append([("K", KD, "inc"), ("V", VD, "inc")])
    for j in range(7): tiles.append([("WO", TD, (sWO, 128 * j)), ("WO", TD, (sWO, 128 * 896 + 128 * j))])
    NT = len(tiles); AT = 18
    def dma_ops(tau):
        groups = []
        for hf, (sn, vb, so) in enumerate(tiles[tau]):
            m0 = "s_add_u32 m0, s%d, %d" % (sM0, 65536 * hf + 16384 * (tau % 4))
            if so == "inc": sreg = sK if sn == "K" else sV; pre = [m0]; post = ["s_add_u32 s%d, s%d, 16384" % (sreg, sreg)]
            else: sreg = sSO + hf; pre = [m0, "s_add_u32 s%d, s%d, %d" % (sreg, so[0], so[1])]; post = []
            for j in range(4):
                groups.append((pre if j == 0 else [], "buffer_load_dwordx4 v%d, %s, s%d offen offset:%d lds" % (vb + j, srd(sn), sreg, 1024 * j), post if j == 3 else []))
        return groups
    def issue_now(tau):
        for pre, d, post in dma_ops(tau):
            for x in pre: I(x)
            if pre: I("s_nop 0")
            P.vmem(d, ("T", tau))
            for x in post: I(x)
    issue_now(0); issue_now(1); issue_now(2)
    I("s_lshl_b32 s%d, s%d, 20" % (sT1, sH))
    mk("K", 6, 0x100000, sT1); mk("V", 8, 0x100000, sT1)
    mk("WQ", 10, 448 * 8192); mk("WO", 12, 4096 * 896); mk("W2", 20, 1792 * 896); mk("WS", 26, 0x10000000)
    I("s_lshl_b32 s%d, s%d, 9" % (sWQ, sH)); I("s_mul_i32 s%d, s%d, %d" % (sW2, sH, 112 * 896)); I("s_mul_i32 s%d, s%d, %d" % (sWO, sH, 256 * 896))
    I("s_mul_i32 s%d, s%d, %d" % (sFO, sT0, 28 * 16)); I("s_add_u32 s%d, s%d, s%d" % (sFO, sFO, sH)); I("s_lshl_b32 s%d, s%d, 10" % (sFO, sFO))
    I("s_add_u32 s%d, s%d, 0x%x" % (sSOe, sFO, WS_S)); I("s_add_u32 s%d, s%d, 0x%x" % (sFO, sFO, WS_F))
    I("s_mov_b32 s%d, 0x3f803f80" % sONE); I("s_mov_b32 s%d, 0x53800000" % sTH); I("s_mov_b32 s%d, 0xffff0000" % sMASK)
    I("v_and_b32 v12, 31, v0"); I("v_bfe_u32 v13, v0, 5, 1")
    I("v_lshlrev_b32 v14, 9, v10")
    for s in range(4):
        I("v_add_u32 v15, %d, v11" % (4 * s)); I("v_xor_b32 v15, v15, v10"); I("v_lshl_add_u32 v%d, v15, 4, v14" % (KA + s))
    I("v_bfe_u32 v4, v0, 2, 4"); I("v_and_b32 v5, 3, v0"); I("v_and_b32 v6, 7, v4")
    I("v_lshlrev_b32 v14, 9, v4"); I("v_lshl_add_u32 v14, v5, 3, v14")
    for b in range(8):
        I("v_xor_b32 v15, %d, v6" % b); I("v_lshl_add_u32 v%d, v15, 5, v14" % (VAL + b)); I("v_add_u32 v%d, 0x10000, v%d" % (VA + b, VAL + b))
    I("v_lshlrev_b32 v14, 8, v4"); I("v_lshl_add_u32 v14, v5, 3, v14")
    for t in range(7):
        I("v_xor_b32 v15, %d, v6" % t); I("v_lshl_add_u32 v%d, v15, 5, v14" % (WA + t)); I("v_add_u32 v%d, 0x10000, v%d" % (WA + 7 + t, WA + t))
    I("v_lshlrev_b32 v14, 7, v4"); I("v_lshl_add_u32 v14, v5, 3, v14"); I("v_bfe_u32 v7, v4, 1, 2")
    for t in range(4):
        I("v_xor_b32 v15, %d, v7" % t); I("v_lshl_add_u32 v%d, v15, 5, v14" % (TA + t)); I("v_add_u32 v%d, 0x10000, v%d" % (TA + 4 + t, TA + t))
    I("s_and_b32 s%d, s%d, 1" % (sT1, sW)); I("s_lshl_b32 s%d, s%d, 3" % (sT1, sT1))
    I("v_lshlrev_b32 v14, 9, v13"); I("v_add_u32 v14, s%d, v14" % sM0)
    for j in range(4):
        I("v_add_u32 v15, %d, v13" % (2 * j)); I("v_add_u32 v15, s%d, v15" % sT1); I("v_xor_b32 v15, v15, v12"); I("v_lshl_add_u32 v%d, v15, 4, v14" % (KD + j))
    I("s_lshl_b32 s%d, s%d, 1" % (sT1, sT1)); I("s_lshr_b32 s%d, s%d, 1" % (sK, sW)); I("s_lshl_b32 s%d, s%d, 2" % (sK, sK)); I("s_add_u32 s%d, s%d, s%d" % (sT1, sT1, sK))
    I("v_add_u32 v7, s%d, v13" % sT1); I("v_lshlrev_b32 v7, 13, v7")
    for j in range(4):
        I("v_add_u32 v15, %d, v13" % (2 * j)); I("v_lshlrev_b32 v15, 1, v15"); I("v_xor_b32 v15, v15, v12")
        I("v_lshl_add_u32 v%d, v15, 4, v14" % (VD + j))
        I("v_lshl_add_u32 v15, v15, 4, v7"); I("v_add_u32 v%d, %d, v15" % (QD + j, (8 * (j >> 1) + 2 * (j & 1)) * 8192 - 1024 * j))
    I("s_lshl_b32 s%d, s%d, 5" % (sT1, sW)); I("v_lshrrev_b32 v14, 3, v9"); I("v_add_u32 v14, s%d, v14" % sT1); I("v_mul_u32_u24 v14, 896, v14")
    I("v_bfe_u32 v15, v0, 1, 2"); I("v_xor_b32 v15, v15, v11"); I("v_lshl_add_u32 v14, v15, 5, v14"); I("v_and_b32 v15, 1, v0"); I("v_lshl_add_u32 v14, v15, 4, v14")
    for j in range(4): I("v_add_u32 v%d, %d, v14" % (TD + j, j * (8 * 896 - 1024)))
    I("s_mov_b32 s%d, 0" % sK); I("s_mov_b32 s%d, 0" % sV)
    for i in range(4): I("v_mov_b32 v%d, 0" % (TMP + i))
    P.wait(vm=["x"])
    for s in range(14):
        for r in range(4):
            for G in range(2):
                I("v_dot2c_f32_bf16 v%d, s%d, v%d" % (TMP + 2 * G + (r & 1), sONE, XC(s, G) + r))
    def xlane(op, reg, tmp):
        ops = []
        for sw in ("v_permlane32_swap_b32", "v_permlane16_swap_b32"):
            ops += [("V", "v_mov_b32 v%d, v%d" % (tmp, reg)), ("V", "%s v%d, v%d" % (sw, reg, tmp)), ("V", "%s v%d, v%d, v%d" % (op, reg, reg, tmp))]
        return ops
    for G in range(2):
        a = TMP + 2 * G
        I("v_add_f32 v%d, v%d, v%d" % (a, a, a + 1))
        for k, t in xlane("v_add_f32", a, a + 1): I(t)
        I("v_mul_f32 v%d, 0x%x, v%d" % (a, f2u(1.0 / 448), a))
        I("v_cvt_pk_bf16_f32 v%d, v%d, v%d" % (MB + G, a, a)); I("v_lshlrev_b32 v%d, 16, v%d" % (MB + G, MB + G))
        I("v_sub_f32 v%d, v%d, v%d" % (DM + G, a, MB + G))
        I("v_mov_b32 v%d, 0" % (SS + G))
    def center_ops(s):
        ops = []
        regs = [(G, XC(s, G) + r) for G in range(2) for r in range(4)]
        for i, (G, x) in enumerate(regs):
            lo = TMP + 2 * (i % 3); hi = lo + 1
            ops += [("V", "v_lshlrev_b32 v%d, 16, v%d" % (lo, x)), ("V", "v_and_b32 v%d, s%d, v%d" % (hi, sMASK, x)),
                    ("V", "v_sub_f32 v%d, v%d, v%d" % (lo, lo, MB + G)), ("V", "v_sub_f32 v%d, v%d, v%d" % (hi, hi, MB + G)),
                    ("V", "v_cvt_pk_bf16_f32 v%d, v%d, v%d" % (x, lo, hi))]
        return ops
    for k, t in center_ops(0): I(t)
    P.wait(vm=[("T", 0)])
    I("s_barrier")

    fr = []; sb = []
    def tr(areg, off, d2): return [("tr0", areg, off), ("tr1", areg, off + d2)]
    def add(reads, mf, ring, D): fr.append(dict(reads=reads, mf=mf, ring=ring, D=D))
    mark = {}
    for tau in range(7):
        sb.append(2 * len(fr))
        for ks in range(2):
            s = 2 * tau + ks
            mark[("F1", s)] = 2 * len(fr)
            for t in range(7):
                for kind in range(2):
                    ms = []
                    for G in range(2):
                        a = r4(GU + ((kind * 7 + t) * 2 + G) * 4, "a")
                        ms.append((a, r4(XC(s, G)), "0" if s == 0 else a))
                    add(tr(WA + 7 * kind + t, 8192 * ks + 16384 * (tau % 4), 4096), ms, "v", DW)
    for j in range(7):
        tau = 7 + j; sb.append(2 * len(fr))
        for hf in range(2):
            s = 2 * j + hf
            for t in range(16):
                ms = []
                for G in range(2):
                    a = r4(O + 8 * t + 4 * G, "a")
                    ms.append((a, r4(XC(s, G)), "0" if s == 0 else a))
                add(tr((VA if hf else VAL) + (t & 7), 256 * (t >> 3) + 16384 * (tau % 4), 8192), ms, "v", DW)
    outs = []
    def f2_half(tau, hf, chunk):
        for tt in range(4):
            acc = FA[tt]
            for k in range(4):
                ms = [(r4(acc + 4 * G), r4(H(k, G)), "0" if k == 0 else r4(acc + 4 * G)) for G in range(2)]
                add(tr(TA + 4 * hf + tt, 4096 * k + 16384 * (tau % 4), 2048), ms, "a", DV)
            outs.append(("F", 2 * len(fr), acc))
    for j in range(3):
        tau = 14 + j; sb.append(2 * len(fr))
        f2_half(tau, 0, 2 * j); f2_half(tau, 1, 2 * j + 1)
    def qk_block(n, tau):
        for kt in range(2):
            for s in range(8):
                ms = []
                for G in range(2):
                    d = r4(S[n % 2] + 8 * kt + 4 * G)
                    c = ("0" if n == 0 else r4(NEGM + 4 * G)) if s == 0 else d
                    ms.append((d, r4(QF(G, s)), c))
                add([("b128", KA + (s & 3), 256 * (s >> 2) + 8192 * kt + 16384 * (tau % 4))], ms, "a", DK)
    def pv_block(n, tau):
        for t in range(16):
            ms = []
            for G in range(2):
                o = r4(O + 8 * t + 4 * G, "a")
                ms.append((o, r4(PK[n % 2] + 4 * G), "0" if n == 0 else o))
            add(tr(VA + (t & 7), 256 * (t >> 3) + 16384 * (tau % 4), 8192), ms, "a", DV)
    sb.append(2 * len(fr)); qk_block(0, 17); f2_half(17, 1, 6)
    for n in range(NV):
        tau = AT + n; sb.append(2 * len(fr))
        if n < NV - 1: qk_block(n + 1, tau)
        pv_block(n, tau)
    OT = AT + NV
    for j in range(7):
        tau = OT + j; sb.append(2 * len(fr))
        order = [(tt, k) for k in range(8) for tt in range(4)] if j == 0 else [(tt, k) for tt in range(4) for k in range(8)]
        for tt, k in order:
            acc = 192 + 32 * (j & 1) + 8 * tt
            ms = [(r4(acc + 4 * G), r4(OF(k, G)), "0" if k == 0 else r4(acc + 4 * G)) for G in range(2)]
            if j == 0 and tt == 0: mark[("O", k)] = 2 * len(fr)
            add(tr(TA + 4 * (k >> 2) + tt, 4096 * (k & 3) + 16384 * (tau % 4), 2048), ms, "a", DV)
            if k == 7: outs.append(("S", 2 * len(fr), acc))
    N = 2 * len(fr); sb.append(N)
    G_ = Gaps(N + 40)
    END = N + 40
    for i in range(len(fr)): G_.put(2 * i, "N", ("waitslot", i), force=True)
    barpos = {}
    for tau in range(NT - 1):
        g = sb[tau + 1] - 15; barpos[tau] = g
        G_.put(g, "N", ("bar", tau), force=True); G_.used[g] += 1
    cnt = {"v": 0, "a": 0}
    for i, f in enumerate(fr):
        g = max(0, 2 * (i - f["D"]) + 1)
        if f["ring"] == "v": r = FRV + 4 * (cnt["v"] % 8)
        else: r = FRA + 4 * (cnt["a"] % 16)
        cnt[f["ring"]] += 1
        p = f["ring"]; f["fr"] = r4(r, p)
        for (k, a, off) in f["reads"]:
            assert off < 65536
            if k == "b128": txt = "ds_read_b128 %s[%d:%d], v%d offset:%d" % (p, r, r + 3, a, off)
            elif k == "tr0": txt = "ds_read_b64_tr_b16 %s[%d:%d], v%d offset:%d" % (p, r, r + 1, a, off)
            else: txt = "ds_read_b64_tr_b16 %s[%d:%d], v%d offset:%d" % (p, r + 2, r + 3, a, off)
            g = G_.put(g, "N", ("ds", txt, ("f", i)), force=(g == 0), limit=g + 2)
    for tau in range(NT - 3):
        g = barpos[tau] + dma_first
        dstep = min(dma_step, (barpos[tau + 1] - barpos[tau] - 6) // 8)
        for pre, d, post in dma_ops(tau + 3):
            g0 = g
            for x in pre: g0 = G_.put(g0 - 1, "N", ("ins", x), limit=g0 + 2) + 1
            g0 = G_.put(max(g, g0), "N", ("vm", d, ("T", tau + 3)), limit=max(g, g0) + 3)
            for x in post: G_.put(g0 + 1, "N", ("ins", x), limit=g0 + 3)
            g = max(g + dstep, g0 + 2)
        assert g0 + 3 < barpos[tau + 1] + dma_first - 2, (tau, g, barpos[tau + 1])
    sites = []
    def place_softmax(n, starts, limit):
        s = S[n % 2]; pk = PK[n % 2]; lo = LB[n % 2]; ln = LB[(n + 1) % 2]
        first = [True, True]; last = 0; gl = 0
        for e, (kt, G, r) in enumerate([(kt, G, r) for kt in range(2) for G in range(2) for r in range(4)]):
            src = s + 8 * kt + 4 * G + r; p = PT + e
            g = G_.put(max(starts[e], last), "T", ("ins", "v_exp_f32 v%d, v%d" % (p, src)), limit=min(limit - 3, max(starts[e], last) + 3)); last = g
            g2 = G_.put(max(g + 1, gl), "V", ("ins", "v_add_f32 v%d, v%d, v%d" % (ln + G, (lo if first[G] else ln) + G, p)), limit=min(limit - 2, g + 4)); first[G] = False
            gl = max(gl, g2)
            if r % 2 == 1:
                g3 = G_.put(g + 1, "V", ("ins", "v_cvt_pk_bf16_f32 v%d, v%d, v%d" % (pk + 4 * G + 2 * kt + r // 2, p - 1, p)), limit=min(limit - 2, g + 4))
                gl = max(gl, g3)
        g = G_.put(gl, "V", ("ins", "v_add_f32 v%d, v%d, v%d" % (TC, ln, ln + 1)), limit=limit - 1)
        g = G_.put(g, "V", ("ins", "v_cmp_nge_f32 vcc, s%d, v%d" % (sTH, TC)), limit=limit - 1)
        g = G_.put(g + 1, "N", ("chk", n), limit=limit)
    b17 = sb[17]
    ops = []
    for G in range(2):
        e = [S[0] + 8 * kt + 4 * G + r for kt in range(2) for r in range(4)]
        m = MX + G
        ops += [("V", "v_max3_f32 v%d, v%d, v%d, v%d" % (m, e[0], e[1], e[2])), ("V", "v_max3_f32 v%d, v%d, v%d, v%d" % (m, m, e[3], e[4])),
                ("V", "v_max3_f32 v%d, v%d, v%d, v%d" % (m, m, e[5], e[6])), ("V", "v_max_f32 v%d, v%d, v%d" % (m, m, e[7]))]
        ops += xlane("v_max_f32", m, T0)
        ops += [("V", "v_sub_f32 v%d, 0, v%d" % (NEGM + 4 * G + r, m)) for r in range(4)]
        ops += [("V", "v_sub_f32 v%d, v%d, v%d" % (x, x, m)) for x in e]
        ops += [("V", "v_mov_b32 v%d, 0" % (LB[0] + G))]
    g_init = G_.chain(ops, b17 + 36, b17 + 62)
    for n in range(NV):
        bn = sb[AT + n]; bp = sb[AT + n - 1]
        if n == 0: starts = [g_init + 1 + (26 * e) // 16 for e in range(16)]; lim = bn + 31
        elif n == NV - 1: starts = [bp + 38 + (22 * e) // 16 for e in range(16)]; lim = bn
        else:
            starts = [bp + 40 + (24 * e) // sm_pv for e in range(sm_pv)] + [bn + (26 * e) // (16 - sm_pv) for e in range(16 - sm_pv)]; lim = bn + 31
        place_softmax(n, starts, lim)
    for s in range(1, 14):
        G_.chain(center_ops(s), mark[("F1", s - 1)] + 1, mark[("F1", s)] - 1)
    q0 = sb[7]; q1 = sb[14]
    ops = []
    for s in range(14):
        for r in range(4):
            for G in range(2): ops.append(("V", "v_dot2c_f32_bf16 v%d, v%d, v%d" % (SS + G, XC(s, G) + r, XC(s, G) + r)))
    for G in range(2):
        a = SS + G; t = TMP + G
        ops += xlane("v_add_f32", a, t)
        ops += [("V", "v_mul_f32 v%d, v%d, v%d" % (t, DM + G, DM + G)), ("V", "v_mul_f32 v%d, 0x%x, v%d" % (a, f2u(1.0 / 448), a)), ("V", "v_sub_f32 v%d, v%d, v%d" % (a, a, t)),
                ("V", "v_max_f32 v%d, 0, v%d" % (a, a)),
                ("V", "v_cvt_pk_bf16_f32 v%d, v%d, v%d" % (a, a, a)), ("V", "v_lshlrev_b32 v%d, 16, v%d" % (a, a)),
                ("V", "v_add_f32 v%d, 0x%x, v%d" % (a, f2u(1e-5), a)), ("V", "v_cvt_pk_bf16_f32 v%d, v%d, v%d" % (a, a, a)), ("V", "v_lshlrev_b32 v%d, 16, v%d" % (a, a)),
                ("T", "v_sqrt_f32 v%d, v%d" % (a, a)), ("V", "v_nop"), ("V", "v_cvt_pk_bf16_f32 v%d, v%d, v%d" % (a, a, a)), ("V", "v_lshlrev_b32 v%d, 16, v%d" % (a, a)),
                ("T", "v_rcp_f32 v%d, v%d" % (t, a)), ("V", "v_mul_f32 v%d, v%d, v%d" % (CI + G, a, a)),
                ("V", "v_mul_f32 v%d, 0x%x, v%d" % (RSQ + G, f2u(LOG2E / 16), t)), ("V", "v_mul_f32 v%d, 0x%x, v%d" % (RSN + G, f2u(-LOG2E), t))]
    gv = G_.chain(ops, q0 + 1, q0 + 110)
    els = [(t, G, r) for t in range(7) for G in range(2) for r in range(4)]
    def stage(i, st):
        t, G, r = els[i]
        b = WA + 3 * (i % 4)
        hv = WA + 12 + (i % 2)
        ga = GU + ((0 * 7 + t) * 2 + G) * 4 + r; ua = GU + ((7 + t) * 2 + G) * 4 + r
        if st == 0: return [("V", "v_accvgpr_read_b32 v%d, a%d" % (b, ga)), ("V", "v_accvgpr_read_b32 v%d, a%d" % (b + 1, ua)), ("V", "v_mul_f32 v%d, v%d, v%d" % (b + 2, b, RSN + G)), ("T", "v_exp_f32 v%d, v%d" % (b + 2, b + 2))]
        if st == 1: return [("V", "v_mul_f32 v%d, v%d, v%d" % (b, b, b + 1)), ("V", "v_fma_f32 v%d, v%d, v%d, v%d" % (b + 2, b + 2, CI + G, CI + G)), ("T", "v_rcp_f32 v%d, v%d" % (b + 2, b + 2))]
        o = [("V", "v_mul_f32 v%d, v%d, v%d" % (hv, b, b + 2))]
        if r % 2 == 1: o.append(("V", "v_cvt_pk_bf16_f32 v%d, v%d, v%d" % (H(t // 2, G) + 2 * (t & 1) + r // 2, WA + 12, WA + 13)))
        return o
    ops = []
    for i in range(len(els) + 2):
        if i < len(els): ops += stage(i, 0)
        if 0 <= i - 1 < len(els): ops += stage(i - 1, 1)
        if 0 <= i - 2 < len(els): ops += stage(i - 2, 2)
    for G in range(2): ops += [("V", "v_mov_b32 v%d, 0" % (H(3, G) + 2)), ("V", "v_mov_b32 v%d, 0" % (H(3, G) + 3))]
    G_.chain(ops, max(gv + 1, sb[9] + 2), q1 - 2 * DV - 4)
    ops = []
    for k in range(8):
        for G in range(2):
            q = QF(G, k)
            for half in range(2):
                a = O + 8 * (2 * k + half) + 4 * G
                tb = WA + 4 * ((2 * (2 * k + G) + half) % 3)
                ops += [("V", "v_accvgpr_read_b32 v%d, a%d" % (tb + r, a + r)) for r in range(4)]
                ops += [("V", "v_mul_f32 v%d, v%d, v%d" % (tb + r, tb + r, RSQ + G)) for r in range(4)]
                ops += [("V", "v_cvt_pk_bf16_f32 v%d, v%d, v%d" % (q + 2 * half + p, tb + 2 * p, tb + 2 * p + 1)) for p in range(2)]
            ops += [("V", "v_permlane32_swap_b32 v%d, v%d" % (q + p, q + 2 + p)) for p in range(2)]
            ops += [("V", "v_permlane16_swap_b32 v%d, v%d" % (q + p, q + 2 + p)) for p in range(2)]
    G_.chain(ops, q1 + 5, sb[17] - 1)
    bl = sb[AT + NV - 1]
    lf = LB[NV % 2]
    ops = []
    for G in range(2):
        ops += xlane("v_add_f32", lf + G, T0) + [("T", "v_rcp_f32 v%d, v%d" % (RL + G, lf + G))]
    G_.chain(ops, bl + 1, bl + 10)
    gprev = bl + 10
    for k in range(8):
        ops = []
        for G in range(2):
            for half in range(2):
                a = O + 8 * (2 * k + half) + 4 * G
                tb = PT + 4 * ((2 * G + half) % 4)
                ops += [("V", "v_accvgpr_read_b32 v%d, a%d" % (tb + r, a + r)) for r in range(4)]
                ops += [("V", "v_cvt_pk_bf16_f32 v%d, v%d, v%d" % (OF(k, G) + 2 * half + p, tb + 2 * p, tb + 2 * p + 1)) for p in range(2)]
        st = max(gprev, bl + 4 * k + 4 + 5)
        en = max(st, mark[("O", k)] - 1)
        gprev = G_.chain(ops, st, en)
    gout = 0
    for idx, (kind, g, acc) in enumerate(outs):
        tb = TMP + 4 * (idx % 2)
        ops = []
        if kind == "S":
            ops += [("V", "v_mul_f32 v%d, v%d, v%d" % (acc + 4 * G + r, acc + 4 * G + r, RL + G)) for G in range(2) for r in range(4)]
        ops += [("V", "v_cvt_pk_bf16_f32 v%d, v%d, v%d" % (tb + 2 * G + p, acc + 4 * G + 2 * p, acc + 4 * G + 2 * p + 1)) for G in range(2) for p in range(2)]
        so = sFO if kind == "F" else sSOe
        ops += [("N", ("vm", "buffer_store_dwordx4 %s, v%d, %s, s%d offen %s" % (r4(tb), VL16, srd("WS"), so, stflag), "st")), ("N", "s_add_u32 s%d, s%d, 16384" % (so, so))]
        st = max(g + 5, gout + 1)
        gout = G_.chain(ops, st, min(st + (6 if kind == "F" else 9), END))
    loop_start = sb[AT + 1]; loop_end = sb[AT + 5]; chk_end = sb[AT + 9]
    rare_sites = []
    def stamp(k):
        if timing:
            I("s_memtime s[%d:%d]" % (94, 95)); I("s_waitcnt lgkmcnt(0)"); P.lgkm = []
            I("s_sub_u32 s94, s94, s90"); I("v_writelane_b32 v0, s94, %d" % k)
    for i in range(END + 1):
        if i == loop_start:
            I("s_mov_b32 s%d, 0" % sLOOP)
            P.label("L_loop"); mark0 = len(P.lines)
        if i == loop_end: mark1 = len(P.lines)
        if i == chk_end:
            A = P.lines[mark0:mark1]; B = P.lines[mark1:]
            norm = lambda L: [re.sub(r"L_(rare|back)_\d+", "L_x", x) for x in L]
            assert norm(A) == norm(B), [(a, b) for a, b in zip(A, B) if a != b][:8]
            del P.lines[mark1:]
            rare_sites = [x for x in rare_sites if not (5 <= x <= 8)]
            I("s_add_u32 s%d, s%d, 1" % (sLOOP, sLOOP)); I("s_cmp_lt_u32 s%d, 15" % sLOOP); I("s_cbranch_scc1 L_loop")
        if timing and i in (sb[0], sb[7], sb[14], sb[17], sb[AT + 1], sb[AT + 9], sb[OT], N) and i != loop_start:
            stamp([sb[0], sb[7], sb[14], sb[17], sb[AT + 1], sb[AT + 9], sb[OT], N].index(i))
        for it in G_.items(i):
            if it[0] == "ds": P.ds(it[1], it[2])
            elif it[0] == "bar":
                P.wait(vm=[("T", it[1] + 1)]); I("s_barrier")
            elif it[0] == "vm": P.vmem(it[1], it[2])
            elif it[0] == "waitslot":
                if i > 0: P.wait(lg=[("f", it[1])])
            elif it[0] == "chk":
                I("s_cbranch_vccnz L_rare_%d" % it[1]); P.label("L_back_%d" % it[1]); rare_sites.append(it[1])
            else: I(it[1])
        if i < N:
            f = fr[i // 2]; d, b, c = f["mf"][i % 2]
            if i % 2 == 0: P.wait(lg=[("f", i // 2)])
            I("v_mfma_f32_16x16x32_bf16 %s, %s, %s, %s" % (d, f["fr"], b, c))
    if timing:
        I("s_waitcnt vmcnt(0)"); P.vm = []
        stamp(8)
        I("s_memrealtime s[94:95]"); I("s_waitcnt lgkmcnt(0)"); I("s_sub_u32 s94, s94, s92"); I("v_writelane_b32 v0, s94, 9")
        I("s_lshl_b32 s94, s2, 2"); I("s_add_u32 s94, s94, s%d" % sW); I("s_lshl_b32 s94, s94, 10"); I("s_add_u32 s94, s94, 0x%x" % WS_T)
        I("buffer_store_dword v0, v%d, %s, s94 offen" % (VL16, srd("WS")))
    P.label("L_end"); I("s_endpgm")
    for n in rare_sites:
        P.label("L_rare_%d" % n); I("s_mov_b32 s%d, %d" % (sRET, n)); I("s_branch L_rp_%d" % (n % 2))
    for par in range(2):
        P.label("L_rp_%d" % par)
        I("s_nop 15")
        s = S[par]; s2 = S[1 - par]; lo = LB[par]; ln = LB[1 - par]; pk = PK[par]
        for G in range(2):
            e = [s + 8 * kt + 4 * G + r for kt in range(2) for r in range(4)]
            e2 = [s2 + 8 * kt + 4 * G + r for kt in range(2) for r in range(4)]
            m = MX + G
            I("v_log_f32 v%d, v%d" % (m, lo + G))
            I("v_max3_f32 v%d, v%d, v%d, v%d" % (T0, e[0], e[1], e[2])); I("v_max3_f32 v%d, v%d, v%d, v%d" % (T0, T0, e[3], e[4]))
            I("v_max3_f32 v%d, v%d, v%d, v%d" % (T0, T0, e[5], e[6])); I("v_max3_f32 v%d, v%d, v%d, v%d" % (m, m, T0, e[7]))
            for k, t in xlane("v_max_f32", m, T0): I(t)
            I("v_max_f32 v%d, 0, v%d" % (m, m))
            I("v_exp_f32 v%d, -v%d" % (TC, m))
            for x in e + e2 + [NEGM + 4 * G + r for r in range(4)]: I("v_sub_f32 v%d, v%d, v%d" % (x, x, m))
            I("v_mul_f32 v%d, v%d, v%d" % (lo + G, lo + G, TC))
            for t in range(16):
                for r in range(4):
                    a = O + 8 * t + 4 * G + r
                    I("v_accvgpr_read_b32 v%d, a%d" % (PT + r, a))
                for r in range(4): I("v_mul_f32 v%d, v%d, v%d" % (PT + r, PT + r, TC))
                for r in range(4): I("v_accvgpr_write_b32 a%d, v%d" % (O + 8 * t + 4 * G + r, PT + r))
            for j, x in enumerate(e): I("v_exp_f32 v%d, v%d" % (PT + j, x))
            I("v_add_f32 v%d, v%d, v%d" % (ln + G, lo + G, PT))
            for j in range(1, 8): I("v_add_f32 v%d, v%d, v%d" % (ln + G, ln + G, PT + j))
            for j in range(4): I("v_cvt_pk_bf16_f32 v%d, v%d, v%d" % (pk + 4 * G + j, PT + 2 * j, PT + 2 * j + 1))
        I("s_nop 3")
        mine = [n for n in rare_sites if n % 2 == par]
        for n in mine[:-1]:
            I("s_cmp_eq_u32 s%d, %d" % (sRET, n)); I("s_cbranch_scc1 L_back_%d" % n)
        I("s_branch L_back_%d" % mine[-1])
    rep = []
    P.lines = fix_hazards(P.lines, rep)
    if verbose:
        print("K1: MFMAs(virtual) %d, overflow placements %d, nops inserted %d (total ws %d)" % (N, G_.over, len(rep), sum(r[1] for r in rep)))
        for p in check_text(P.text()): print(p)
    return P.text(), rep, G_, sb

def gen_k2():
    P = Prog(); I = P.ins
    I("s_cmp_ge_u32 s2, 448"); I("s_cbranch_scc1 L2_end")
    I("s_load_dwordx2 s[4:5], s[0:1], 0"); I("s_load_dwordx2 s[6:7], s[0:1], 72"); I("s_load_dwordx2 s[8:9], s[0:1], 88")
    I("v_lshrrev_b32 v1, 6, v0"); I("s_nop 0"); I("v_readfirstlane_b32 s3, v1")
    I("s_lshl_b32 s10, s2, 2"); I("s_add_u32 s10, s10, s3")
    I("s_mul_i32 s11, s10, 9363"); I("s_lshr_b32 s11, s11, 18")
    I("s_mul_i32 s12, s11, 28"); I("s_sub_u32 s12, s10, s12")
    I("s_lshl_b32 s13, s10, 14")
    I("v_and_b32 v2, 63, v0"); I("v_lshlrev_b32 v2, 4, v2")
    I("v_and_b32 v3, 15, v0"); I("v_bfe_u32 v4, v0, 4, 2")
    I("v_mul_u32_u24 v5, 896, v3"); I("v_lshl_add_u32 v5, v4, 3, v5"); I("v_add_u32 v6, 14336, v5")
    I("s_mul_i32 s14, s11, %d" % (32 * 896)); I("s_lshl_b32 s15, s12, 5"); I("s_add_u32 s14, s14, s15")
    I("s_waitcnt lgkmcnt(0)")
    for d, lo, size in ((16, 4, 2048 * 896), (20, 6, 2048 * 896), (24, 8, 0x10000000)):
        I("s_mov_b32 s%d, s%d" % (d, lo)); I("s_mov_b32 s%d, s%d" % (d + 1, lo + 1)); I("s_mov_b32 s%d, 0x%x" % (d + 2, size)); I("s_mov_b32 s%d, 0x20000" % (d + 3))
    for part, base in ((0, WS_F), (1, WS_S)):
        for h in range(16):
            if h % 4 == 0: I("s_add_u32 s%d, s13, 0x%x" % (28 + part * 4 + h // 4, base + 1024 * h))
            P.vmem("buffer_load_dwordx4 %s, v2, s[24:27], s%d offen offset:%d" % (r4(16 + 64 * part + 4 * h), 28 + part * 4 + h // 4, 1024 * (h % 4)), (part, h))
    P.vmem("buffer_load_dwordx2 v[8:9], v5, s[16:19], s14 offen", "x"); P.vmem("buffer_load_dwordx2 v[10:11], v6, s[16:19], s14 offen", "x")
    I("s_mov_b32 s36, 0xffff0000")
    ACC = [144, 152]
    for part in range(2):
        for h in range(16):
            P.wait(vm=[(part, h)])
            b = 16 + 64 * part + 4 * h
            for j in range(4):
                a = ACC[part] + 2 * j
                if h == 0:
                    I("v_lshlrev_b32 v%d, 16, v%d" % (a, b + j)); I("v_and_b32 v%d, s36, v%d" % (a + 1, b + j))
                else:
                    I("v_lshlrev_b32 v12, 16, v%d" % (b + j)); I("v_and_b32 v13, s36, v%d" % (b + j))
                    I("v_add_f32 v%d, v%d, v12" % (a, a)); I("v_add_f32 v%d, v%d, v13" % (a + 1, a + 1))
    P.wait(vm=["x"])
    def rnd2(a):
        I("v_cvt_pk_bf16_f32 v12, v%d, v%d" % (a, a + 1)); I("v_lshlrev_b32 v%d, 16, v12" % a); I("v_and_b32 v%d, s36, v12" % (a + 1))
    for j in range(4):
        f = ACC[0] + 2 * j; s = ACC[1] + 2 * j
        rnd2(f); rnd2(s)
        for e in range(2):
            I("v_mul_f32 v%d, 0x%x, v%d" % (14 + e, f2u(-LOG2E), f + e)); I("v_exp_f32 v%d, v%d" % (14 + e, 14 + e))
        for e in range(2): I("v_add_f32 v%d, 1.0, v%d" % (14 + e, 14 + e))
        for e in range(2): I("v_rcp_f32 v%d, v%d" % (14 + e, 14 + e))
        for e in range(2): I("v_mul_f32 v%d, v%d, v%d" % (f + e, f + e, 14 + e))
        rnd2(f)
        for e in range(2): I("v_mul_f32 v%d, v%d, v%d" % (s + e, s + e, f + e))
        rnd2(s)
        I("v_lshlrev_b32 v14, 16, v%d" % (8 + j)); I("v_and_b32 v15, s36, v%d" % (8 + j))
        for e in range(2): I("v_add_f32 v%d, v%d, v%d" % (s + e, s + e, 14 + e))
        I("v_cvt_pk_bf16_f32 v%d, v%d, v%d" % (160 + j, s, s + 1))
    I("buffer_store_dwordx2 v[160:161], v5, s[20:23], s14 offen"); I("buffer_store_dwordx2 v[162:163], v6, s[20:23], s14 offen")
    P.label("L2_end"); I("s_endpgm")
    assert all((w * 9363) >> 18 == w // 28 for w in range(1792))
    P.lines = fix_hazards(P.lines)
    for p in check_text(P.text()): print(p)
    return P.text()

HEAD = open("cdna_kernels/%s.s.ref" % NAME).read().split("; Override launch")[0]
def kd(name, nv, acc):
    return """.amdhsa_kernel %s
  .amdhsa_next_free_vgpr %d
  .amdhsa_next_free_sgpr 102
  .amdhsa_accum_offset %d
  .amdhsa_group_segment_fixed_size 0
  .amdhsa_kernarg_size 96
  .amdhsa_user_sgpr_count 2
  .amdhsa_user_sgpr_kernarg_segment_ptr 1
  .amdhsa_system_sgpr_workgroup_id_x 1
.end_amdhsa_kernel
""" % (name, nv, acc)
def build(**kw):
    k1, rep, G_, sb = gen_k1(**kw)
    k2 = gen_k2()
    s = HEAD
    s += "; @launch kernel=%s grid=(256,1,1) block=(256,1,1) lds=131072\n" % K1
    s += "; @launch kernel=%s grid=(448,1,1) block=(256,1,1) lds=0\n" % K2
    s += '.amdgcn_target "amdgcn-amd-amdhsa--gfx950"\n.text\n'
    for nm, body in ((K1, k1), (K2, k2)):
        s += ".globl %s\n.p2align 8\n.type %s,@function\n%s:\n%s" % (nm, nm, nm, body)
    s += '.section .rodata,"a"\n.p2align 6\n' + kd(K1, 512, 256) + ".p2align 6\n" + kd(K2, 168, 168)
    return s, rep, G_, sb

if __name__ == "__main__":
    s, rep, G_, sb = build()
    open("k_v1.s", "w").write(s)
    s, _, _, _ = build(timing=True, verbose=False)
    open("k_v1t.s", "w").write(s)
    for t in range(len(sb) - 1):
        u = G_.used[sb[t]:sb[t + 1]]; v = G_.vused[sb[t]:sb[t + 1]]
        print("step %2d: mfma %d slots %d (cap %d) valu %d over-gaps %d excess %d" % (t, sb[t + 1] - sb[t], sum(u), 3 * len(u), sum(v), sum(1 for x, y in zip(u, v) if x > 3 or y > 2), sum(max(x - 3, y - 2, 0) for x, y in zip(u, v))))
    from collections import Counter
    print(Counter(r[2].split("|")[0] for r in rep))
```

```python
import re

class Prog:
    def __init__(self):
        self.lines = []
        self.lgkm = []
        self.vm = []
    def ins(self, t):
        self.lines.append("    " + t)
    def label(self, l):
        self.lines.append(l + ":")
    def comment(self, c):
        self.lines.append("    ; " + c)
    def ds(self, t, tag):
        self.ins(t); self.lgkm.append(tag)
        assert len(self.lgkm) <= 15, "lgkm overflow: %s" % (self.lgkm,)
    def vmem(self, t, tag):
        self.ins(t); self.vm.append(tag)
        assert len(self.vm) <= 63, "vm overflow"
    def _need(self, q, tags):
        last = -1
        for i, t in enumerate(q):
            if t in tags: last = i
        return last
    def wait(self, lg=(), vm=(), force=False, maxq=None):
        parts = []
        if lg == "all": lg = set(self.lgkm)
        if vm == "all": vm = set(self.vm)
        i = self._need(self.vm, set(vm))
        if i >= 0:
            n = len(self.vm) - 1 - i
            parts.append("vmcnt(%d)" % n); self.vm = self.vm[i + 1:]
        i = self._need(self.lgkm, set(lg))
        if maxq is not None: i = max(i, len(self.lgkm) - 1 - maxq)
        if i >= 0:
            n = len(self.lgkm) - 1 - i
            parts.append("lgkmcnt(%d)" % n); self.lgkm = self.lgkm[i + 1:]
        if parts:
            self.ins("s_waitcnt " + " ".join(parts))
            return True
        return False
    def text(self):
        return "\n".join(self.lines) + "\n"

_reg_re = re.compile(r"\b([vas])(\d+)\b|\b([vas])\[(\d+):(\d+)\]|\b(vcc|exec|m0|scc)\b")
def regs_of(op):
    out = set()
    for m in _reg_re.finditer(op):
        if m.group(1): out.add((m.group(1), int(m.group(2))))
        elif m.group(3):
            for i in range(int(m.group(4)), int(m.group(5)) + 1): out.add((m.group(3), i))
        else: out.add((m.group(6), 0))
    return out

TRANS = ("v_exp_f32", "v_log_f32", "v_rcp_f32", "v_rsq_f32", "v_sqrt_f32", "v_sin_f32", "v_cos_f32")
class I:
    pass
def parse(line):
    s = line.split(";")[0].strip()
    if not s or s.endswith(":") or s.startswith("."): return None
    sp = s.split(None, 1)
    i = I(); i.op = sp[0]; i.text = s
    ops = []
    if len(sp) > 1:
        depth = 0; cur = ""
        for ch in sp[1]:
            if ch == "[": depth += 1
            if ch == "]": depth -= 1
            if ch == "," and depth == 0: ops.append(cur.strip()); cur = ""
            else: cur += ch
        ops.append(cur.strip())
    i.ops = ops
    op = i.op
    i.kind = "other"; i.wr = set(); i.rd = set(); i.ws = 1
    if op.startswith("v_mfma"):
        i.kind = "mfma"; i.wr = regs_of(ops[0]); i.a = regs_of(ops[1]); i.b = regs_of(ops[2]); i.c = regs_of(ops[3])
        i.rd = i.a | i.b | i.c
        i.passes = 8 if "32x32x16" in op else 4
    elif op == "v_nop":
        i.kind = "valu"; i.trans = False
    elif op.startswith("v_"):
        i.kind = "valu"
        if op.startswith("v_cmp"):
            i.wr = regs_of(ops[0]); i.rd = set().union(*[regs_of(o) for o in ops[1:]])
        elif op.startswith("v_permlane") and "swap" in op:
            i.wr = regs_of(ops[0]) | regs_of(ops[1]); i.rd = set(i.wr)
        elif op.startswith(("v_add_co", "v_sub_co", "v_addc_co", "v_subb_co")):
            i.wr = regs_of(ops[0]) | regs_of(ops[1]); i.rd = set().union(*[regs_of(o) for o in ops[2:]])
        else:
            i.wr = regs_of(ops[0]); i.rd = set().union(*[regs_of(o) for o in ops[1:]]) if len(ops) > 1 else set()
            if op.startswith(("v_fmac", "v_dot2c", "v_pk_fmac")): i.rd |= i.wr
        i.trans = op.replace("_e32", "").replace("_e64", "") in TRANS
    elif op.startswith("ds_"):
        i.kind = "ds"
        if op.startswith("ds_read") or op.startswith("ds_bpermute") or op.startswith("ds_swizzle"):
            i.wr = regs_of(ops[0]); i.rd = set().union(*[regs_of(o) for o in ops[1:]])
        else:
            i.rd = set().union(*[regs_of(o) for o in ops])
    elif op.startswith("buffer_") or op.startswith("global_"):
        i.kind = "vmem"
        lds = s.rstrip().endswith(" lds") or "_lds_" in op
        i.lds = lds
        if "store" in op or "atomic" in op or lds:
            i.rd = set().union(*[regs_of(o) for o in ops])
            if lds: i.rd.add(("m0", 0))
            if "store" in op:
                i.sdata = regs_of(ops[0]) if op.startswith("buffer_") else regs_of(ops[1])
                i.wide = ("x4" in op or "x3" in op)
        else:
            i.wr = regs_of(ops[0]); i.rd = set().union(*[regs_of(o) for o in ops[1:]])
    elif op.startswith("s_"):
        i.kind = "salu"
        if op == "s_nop": i.ws = int(ops[0], 0) + 1
        elif op.startswith(("s_cmp", "s_cbranch", "s_branch", "s_waitcnt", "s_barrier", "s_endpgm", "s_setprio", "s_sleep")):
            i.rd = set().union(*[regs_of(o) for o in ops]) if ops else set()
        elif ops:
            i.wr = regs_of(ops[0]); i.rd = set().union(*[regs_of(o) for o in ops[1:]]) if len(ops) > 1 else set()
    return i

def check_seq(seq, where=""):
    probs = []
    n = len(seq)
    for k, c in enumerate(seq):
        dist = 0
        j = k - 1
        while j >= 0 and dist < 24:
            p = seq[j]
            need = 0; why = ""
            if p.kind == "mfma":
                P = p.passes
                big = {4: 8, 8: 12}[P]; ovl = {4: 6, 8: 10}[P]; war = {4: 3, 8: 7}[P]
                if c.kind == "mfma":
                    if (c.a | c.b) & p.wr: need, why = big, "mfma D->AB"
                    elif c.c & p.wr and not (c.c == p.wr and c.passes == p.passes): need, why = ovl, "mfma D->C overlap"
                    elif c.wr & p.wr and not (c.c == p.wr): need, why = big, "mfma WAW(?)"
                elif c.kind in ("valu", "ds", "vmem"):
                    if (c.rd | c.wr) & p.wr: need, why = big, "mfma D->valu/mem"
                    elif c.kind == "valu" and c.wr & p.c: need, why = war, "mfma C WAR"
            elif p.kind == "valu":
                vw = {r for r in p.wr if r[0] in "va"}
                sw = {r for r in p.wr if r[0] not in "va"}
                if c.kind == "mfma" and c.rd & vw: need, why = 2, "valu->mfma"
                if c.kind == "valu":
                    if getattr(p, "trans", False) and not c.trans and (c.rd & vw): need, why = max(need, 1), "trans->valu"
                    if c.op.startswith("v_permlane") and c.rd & vw: need, why = 2, "valu->permlane"
                    if c.op.startswith(("v_readfirstlane", "v_readlane")) and c.rd & vw: need, why = max(need, 1), "valu->readlane"
                    if "dpp" in c.text and c.rd & vw: need, why = 2, "valu->dpp"
                    if c.rd & sw: need, why = max(need, 2), "valu sgpr->valu"
                    if "sdwa" in p.op and c.rd & vw: need, why = max(need, 1), "sdwa->valu"
                if c.kind == "vmem" and c.rd & sw: need, why = 5, "valu sgpr->vmem"
                if ("exec", 0) in sw and c.kind == "mfma": need, why = 4, "exec->mfma"
            elif p.kind == "salu":
                if ("m0", 0) in p.wr and c.kind == "vmem" and getattr(c, "lds", False): need, why = 1, "m0->dma"
            elif p.kind == "vmem" and hasattr(p, "sdata") and p.wide:
                if c.wr & p.sdata: need, why = (2 if c.kind == "valu" else 1), "store data WAR"
            if need > dist:
                probs.append("%s hazard %s: need %d have %d\n   P: %s\n   C: %s" % (where, why, need, dist, p.text, c.text))
            dist += p.ws
            j -= 1
    return probs

def check_text(text):
    lines = text.split("\n")
    items = []; labels = {}
    for ln in lines:
        s = ln.split(";")[0].strip()
        if s.endswith(":") and not s.startswith("."):
            labels[s[:-1]] = len(items); continue
        if s.endswith(":"):
            labels[s[:-1]] = len(items); continue
        p = parse(ln)
        if p: items.append(p)
    probs = []
    seg = []
    for it in items:
        seg.append(it)
        if it.op in ("s_branch", "s_endpgm", "s_setpc_b64"):
            probs += check_seq(seg, "lin"); seg = []
    probs += check_seq(seg, "lin")
    for k, it in enumerate(items):
        if it.op.startswith("s_cbranch") or it.op == "s_branch":
            tgt = it.ops[0]
            if tgt in labels:
                t = labels[tgt]
                pre = []
                j = k
                while j >= 0 and len(pre) < 30:
                    if j != k and items[j].op in ("s_branch", "s_endpgm", "s_setpc_b64"): break
                    pre.insert(0, items[j]); j -= 1
                post = []
                j = t
                while j < len(items) and len(post) < 30:
                    post.append(items[j])
                    if items[j].op in ("s_branch", "s_endpgm", "s_setpc_b64"): break
                    j += 1
                probs += check_seq(pre + post, "edge->%s" % tgt)
    return sorted(set(probs))

def need_between(p, c):
    need = 0; why = ""
    if p.kind == "mfma":
        P = p.passes
        big = {4: 8, 8: 12}[P]; ovl = {4: 6, 8: 10}[P]; war = {4: 3, 8: 7}[P]
        if c.kind == "mfma":
            if (c.a | c.b) & p.wr: need, why = big, "mfma D->AB"
            elif c.c & p.wr and not (c.c == p.wr and c.passes == p.passes): need, why = ovl, "mfma D->C overlap"
            elif c.wr & p.wr and not (c.c == p.wr): need, why = big, "mfma WAW(?)"
        elif c.kind in ("valu", "ds", "vmem"):
            if (c.rd | c.wr) & p.wr: need, why = big, "mfma D->valu/mem"
            elif c.kind == "valu" and c.wr & p.c: need, why = war, "mfma C WAR"
    elif p.kind == "valu":
        vw = {r for r in p.wr if r[0] in "va"}
        sw = {r for r in p.wr if r[0] not in "va"}
        if c.kind == "mfma" and c.rd & vw: need, why = 2, "valu->mfma"
        if p.op.startswith("v_dot") and c.kind in ("valu", "mfma", "vmem", "ds") and ((c.rd | c.wr) & vw):
            same_acc = (c.op == p.op and not ((c.rd - c.wr) & vw))
            if not same_acc: need, why = max(need, 3), "dot->other"
        if c.kind == "valu":
            if getattr(p, "trans", False) and not c.trans and (c.rd & vw): need, why = max(need, 1), "trans->valu"
            if c.op.startswith("v_permlane") and c.rd & vw: need, why = max(need, 2), "valu->permlane"
            if c.op.startswith(("v_readfirstlane", "v_readlane")) and c.rd & vw: need, why = max(need, 1), "valu->readlane"
            if "dpp" in c.text and c.rd & vw: need, why = max(need, 2), "valu->dpp"
            if c.rd & sw: need, why = max(need, 2), "valu sgpr->valu"
            if "sdwa" in p.op and c.rd & vw: need, why = max(need, 1), "sdwa->valu"
        if c.kind == "vmem" and c.rd & sw: need, why = 5, "valu sgpr->vmem"
        if c.kind == "salu" and c.rd & sw: need, why = max(need, 1), "valu sgpr->salu (pad)"
        if ("exec", 0) in sw and c.kind == "mfma": need, why = 4, "exec->mfma"
    elif p.kind == "salu":
        if ("m0", 0) in p.wr and c.kind == "vmem" and getattr(c, "lds", False): need, why = 1, "m0->dma"
    elif p.kind == "vmem" and hasattr(p, "sdata") and p.wide:
        if c.wr & p.sdata: need, why = (2 if c.kind == "valu" else 1), "store data WAR"
    return need, why

def fix_hazards(lines, report=None):
    out = []; hist = []
    for ln in lines:
        c = parse(ln)
        if c is None:
            out.append(ln); continue
        dist = 0; extra = 0; w = ""
        for p in reversed(hist[-24:]):
            need, why = need_between(p, c)
            if need - dist > extra: extra = need - dist; w = why + " | " + p.text
            dist += p.ws
            if dist >= 24: break
        if extra > 0:
            if report is not None: report.append((len(out), extra, w, c.text))
            nl = "    s_nop %d" % (extra - 1)
            out.append(nl); hist.append(parse(nl))
        out.append(ln); hist.append(c)
        if c.op in ("s_branch", "s_endpgm", "s_setpc_b64"): hist = []
    return out

class Gaps:
    def __init__(self, n, cap=3, vcap=2):
        self.n = n
        self.g = [[] for _ in range(n + 1)]
        self.used = [0] * (n + 1); self.vused = [0] * (n + 1)
        self.cap = cap; self.vcap = vcap
        self.over = 0
    def cost(self, kind):
        return {"V": (1, 1), "T": (2, 2), "N": (1, 0), "Z": (0, 0)}[kind]
    def fits(self, i, kind):
        c, v = self.cost(kind)
        return self.used[i] + c <= self.cap and self.vused[i] + v <= self.vcap
    def put(self, i, kind, item, limit=None, force=False):
        c, v = self.cost(kind)
        if limit is None: limit = self.n
        limit = min(limit, self.n)
        assert i <= limit, (i, limit, item)
        if not force:
            j = i
            while j <= limit and not self.fits(j, kind): j += 1
            if j > limit:
                j = i; self.over += 1
            i = j
        self.g[i].append((kind, item)); self.used[i] += c; self.vused[i] += v
        return i
    def items(self, i):
        a = [x for x in self.g[i] if x[0] in "NZ"]
        b = [x for x in self.g[i] if x[0] in "VT"]
        return [x[1] for x in a + b]
    def chain(self, ops, start, end, window=6):
        n = len(ops); last = start; lastv = -1
        tot = sum(self.cost(k)[0] for k, _ in ops); acc = 0
        for k, t in ops:
            tgt = start + ((end - start) * acc) // max(tot, 1)
            acc += self.cost(k)[0]
            g = max(tgt, last)
            if k in "NZ" and lastv == g: g += 1
            g = min(g, end)
            item = t if isinstance(t, tuple) else ("ins", t)
            if k in "NZ" and lastv == g:
                k2 = "V"
            else: k2 = k
            g = self.put(g, k2, item, limit=min(end, g + window))
            last = g
            if k2 in "VT": lastv = g
        return last

class Gaps2:
    def __init__(self, n):
        self.n = n
        self.g = [[] for _ in range(n + 1)]
    @staticmethod
    def units(kinds):
        nS = kinds.count("S"); nD = kinds.count("D")
        return max(0, nS - 1) + kinds.count("V") + 2 * (kinds.count("T") + kinds.count("M")) + nD + max(0, nD - 1)
    def pen(self, i, extra=None):
        k = [x[0] for x in self.g[i]] + ([extra] if extra else [])
        return max(0, self.units(k) - 2)
    def put(self, i, kind, item, limit=None, force=False, after_v=False):
        if limit is None: limit = self.n
        limit = min(limit, self.n)
        assert i <= limit, (i, limit, item)
        if not force:
            best = None
            for j in range(i, limit + 1):
                d = self.pen(j, kind) - self.pen(j)
                if best is None or d < best[0]: best = (d, j)
                if d == 0: break
            i = best[1]
        self.g[i].append((kind, item, after_v))
        return i
    def items(self, i):
        it = self.g[i]
        a = [x for x in it if x[0] == "S" and not x[2]]
        b = [x for x in it if x[0] in "DM" and not x[2]]
        c = [x for x in it if x[0] in "VT" or x[2]]
        return [x[1] for x in a + b + c]
    def chain(self, ops, start, end, window=4):
        cost = {"S": 0, "V": 1, "T": 2, "D": 1, "M": 2}
        tot = sum(cost[k] for k, _ in ops); acc = 0; last = start; lastk = None
        order = {"S": 0, "D": 1, "M": 1, "V": 2, "T": 2}
        for k, t in ops:
            tgt = start + ((end - start) * acc) // max(tot, 1)
            acc += cost[k]
            g = min(max(tgt, last), end)
            av = False
            if lastk is not None and g == last and order[k] < lastk:
                if g < end: g += 1
                else: av = True
            item = t if isinstance(t, tuple) else ("ins", t)
            lim = min(end, max(g, tgt + window))
            g2 = self.put(g, k, item, limit=lim, after_v=av)
            lastk = max(lastk, 2 if av else order[k]) if (lastk is not None and g2 == last) else (2 if av else order[k])
            last = g2
        return last
    def total_pen(self, a, b): return sum(self.pen(i) for i in range(a, b))
```

```python
import sys
from gen import *
NAME = "recurrent_scan__mha_block_cached__glu_gated_swiglu__prompt"
K1 = NAME + "_kernel"
K2 = "reduce_out_kernel"
LOG2E = 1.4426950408889634
import struct
def f2u(x): return struct.unpack("<I", struct.pack("<f", x))[0]
def r4(x, p="v"): return "%s[%d:%d]" % (p, x, x + 3)

WS_S = 0x0
WS_F = 0x2000000
WS_T = 0xa000000

def gen_k1(DK=6, DV=5, DW=5, sm_pv=6, stflag="", timing=False, dma_step=5, dma_first=3, verbose=True, align=0, pad=0, nostore=False):
    P = Prog()
    O = 0; GU = 128; FRA = 192
    S = [16, 32]; NEGM = 48; LB = [56, 58]; MX = 60; TC = 62; T0 = 63
    WA = 48
    FRV = 64
    PT = 64; PK = [80, 88]
    KA = 96; VA = 100; KD = 108; VD = 112; TA = 116; TD = 124
    XC = lambda s, G: 128 + 8 * (13 - s) + 4 * G
    QF = lambda G, k: 128 + 32 * G + 4 * k
    H = lambda k, G: XC(k, G)
    OF = lambda k, G: 128 + 8 * k + 4 * G
    VAL = 240; WD = 248; QD = 252
    FA = [192, 200, 240, 248]
    VL16 = 1; MB = 2; RSQ = 2; DM = 4; RSN = 4; SS = 6; CI = 6; RL = 60
    TMP = 8
    SRD = dict(X=28, K=32, V=36, WQ=40, WO=44, W1=48, W3=52, W2=56, WS=60)
    def srd(n): return "s[%d:%d]" % (SRD[n], SRD[n] + 3)
    sH, sQB, sW, sM0, sSO, sLOOP, sTH, sRET, sFO, sSOe, sONE = 64, 65, 66, 67, 68, 70, 71, 72, 74, 75, 76
    sW13, sWQ, sW2, sWO, sK, sV, sT0, sT1, sMASK = 78, 79, 80, 81, 82, 83, 84, 85, 86
    I = P.ins
    I("s_cmp_ge_u32 s2, 256"); I("s_cbranch_scc1 L_end")
    I("s_load_dwordx16 s[4:19], s[0:1], 0"); I("s_load_dwordx8 s[20:27], s[0:1], 64")
    I("s_and_b32 s%d, s2, 7" % sH); I("s_lshr_b32 s%d, s2, 3" % sQB)
    I("s_lshr_b32 s%d, s%d, 4" % (sT0, sQB)); I("s_lshl_b32 s%d, s%d, 1" % (sH, sH)); I("s_add_u32 s%d, s%d, s%d" % (sH, sH, sT0))
    I("s_and_b32 s%d, s%d, 15" % (sQB, sQB))
    I("v_lshrrev_b32 v8, 6, v0"); I("s_nop 0"); I("v_readfirstlane_b32 s%d, v8" % sW)
    I("v_and_b32 v9, 63, v0")
    I("v_and_b32 v10, 15, v0")
    I("v_bfe_u32 v11, v0, 4, 2")
    I("v_lshlrev_b32 v%d, 4, v9" % VL16)
    I("v_mul_u32_u24 v2, 896, v10"); I("v_lshl_add_u32 v2, v11, 4, v2"); I("v_add_u32 v3, 14336, v2")
    I("s_lshl_b32 s%d, s%d, 2" % (sT0, sQB)); I("s_add_u32 s%d, s%d, s%d" % (sT0, sT0, sW))
    I("s_mul_i32 s%d, s%d, %d" % (sT1, sT0, 32 * 896))
    I("s_waitcnt lgkmcnt(0)")
    def mk(n, lo, size, add=None):
        d = SRD[n]
        if add is None: I("s_mov_b32 s%d, s%d" % (d, lo)); I("s_mov_b32 s%d, s%d" % (d + 1, lo + 1))
        else: I("s_add_u32 s%d, s%d, s%d" % (d, lo, add)); I("s_addc_u32 s%d, s%d, 0" % (d + 1, lo + 1))
        I("s_mov_b32 s%d, 0x%x" % (d + 2, size)); I("s_mov_b32 s%d, 0x20000" % (d + 3))
    mk("X", 4, 2048 * 896)
    for G in range(2):
        for s in range(14):
            P.vmem("buffer_load_dwordx4 %s, v%d, %s, s%d offen offset:%d" % (r4(XC(s, G)), 2 + G, srd("X"), sT1, 64 * s), "x")
    if timing: I("s_memtime s[90:91]"); I("s_memrealtime s[92:93]")
    mk("W1", 16, 448 * 3584); mk("W3", 18, 448 * 3584)
    I("s_lshl_b32 s%d, s%d, 12" % (sM0, sW))
    I("s_mul_i32 s%d, s%d, 224" % (sW13, sH))
    I("s_lshr_b32 s%d, s%d, 1" % (sK, sW)); I("s_lshl_b32 s%d, s%d, 5" % (sK, sK)); I("s_and_b32 s%d, s%d, 1" % (sV, sW)); I("s_lshl_b32 s%d, s%d, 2" % (sV, sV))
    I("s_add_u32 s%d, s%d, s%d" % (sK, sK, sV))
    I("v_add_u32 v12, s%d, v11" % sK); I("v_mul_u32_u24 v12, 3584, v12")
    I("v_and_b32 v13, 1, v10"); I("v_lshl_add_u32 v12, v13, 4, v12"); I("v_lshrrev_b32 v13, 1, v10")
    for j in range(4):
        I("v_add_u32 v14, %d, v11" % (4 * (j & 1))); I("v_xor_b32 v14, v14, v13"); I("v_lshl_add_u32 v14, v14, 5, v12")
        I("v_add_u32 v%d, %d, v14" % (WD + j, j * (8 * 3584 - 1024)))
    NV = 12
    tiles = []
    for t in range(7): tiles.append([("W1", WD, (sW13, t * 64 * 3584)), ("W3", WD, (sW13, t * 64 * 3584))])
    for j in range(7): tiles.append([("WQ", QD, (sWQ, 64 * j * 8192)), ("WQ", QD, (sWQ, (64 * j + 32) * 8192))])
    for j in range(3): tiles.append([("W2", TD, (sW2, 256 * j)), ("W2", TD, (sW2, 256 * j + 128))])
    tiles.append([("K", KD, "inc"), ("W2", TD, (sW2, 768))])
    for n in range(NV): tiles.append([("K", KD, "inc"), ("V", VD, "inc")])
    for j in range(7): tiles.append([("WO", TD, (sWO, 128 * j)), ("WO", TD, (sWO, 128 * 896 + 128 * j))])
    NT = len(tiles); AT = 18
    def dma_ops(tau):
        groups = []
        for hf, (sn, vb, so) in enumerate(tiles[tau]):
            m0 = "s_add_u32 m0, s%d, %d" % (sM0, 65536 * hf + 16384 * (tau % 4))
            if so == "inc": sreg = sK if sn == "K" else sV; pre = [m0]; post = ["s_add_u32 s%d, s%d, 16384" % (sreg, sreg)]
            else: sreg = sSO + hf; pre = [m0, "s_add_u32 s%d, s%d, %d" % (sreg, so[0], so[1])]; post = []
            for j in range(4):
                groups.append((pre if j == 0 else [], "buffer_load_dwordx4 v%d, %s, s%d offen offset:%d lds" % (vb + j, srd(sn), sreg, 1024 * j), post if j == 3 else []))
        return groups
    def issue_now(tau):
        for pre, d, post in dma_ops(tau):
            for x in pre: I(x)
            if pre: I("s_nop 0")
            P.vmem(d, ("T", tau))
            for x in post: I(x)
    def sstamp(k):
        if timing: I("s_memtime s[94:95]"); I("s_waitcnt lgkmcnt(0)"); I("s_sub_u32 s%d, s94, s90" % (96 + k))
    sstamp(1)
    issue_now(0); issue_now(1); issue_now(2)
    sstamp(2)
    I("s_lshl_b32 s%d, s%d, 20" % (sT1, sH))
    mk("K", 6, 0x100000, sT1); mk("V", 8, 0x100000, sT1)
    mk("WQ", 10, 448 * 8192); mk("WO", 12, 4096 * 896); mk("W2", 20, 1792 * 896); mk("WS", 26, 0x10000000)
    I("s_lshl_b32 s%d, s%d, 9" % (sWQ, sH)); I("s_mul_i32 s%d, s%d, %d" % (sW2, sH, 112 * 896)); I("s_mul_i32 s%d, s%d, %d" % (sWO, sH, 256 * 896))
    I("s_mul_i32 s%d, s%d, %d" % (sFO, sT0, 28 * 16)); I("s_add_u32 s%d, s%d, s%d" % (sFO, sFO, sH)); I("s_lshl_b32 s%d, s%d, 10" % (sFO, sFO))
    I("s_add_u32 s%d, s%d, 0x%x" % (sSOe, sFO, WS_S)); I("s_add_u32 s%d, s%d, 0x%x" % (sFO, sFO, WS_F))
    I("s_mov_b32 s%d, 0x3f803f80" % sONE); I("s_mov_b32 s%d, 0x53800000" % sTH); I("s_mov_b32 s%d, 0xffff0000" % sMASK)
    I("v_and_b32 v12, 31, v0"); I("v_bfe_u32 v13, v0, 5, 1")
    I("v_lshlrev_b32 v14, 9, v10")
    for s in range(4):
        I("v_add_u32 v15, %d, v11" % (4 * s)); I("v_xor_b32 v15, v15, v10"); I("v_lshl_add_u32 v%d, v15, 4, v14" % (KA + s))
    I("v_bfe_u32 v4, v0, 2, 4"); I("v_and_b32 v5, 3, v0"); I("v_and_b32 v6, 7, v4")
    I("v_lshlrev_b32 v14, 9, v4"); I("v_lshl_add_u32 v14, v5, 3, v14")
    for b in range(8):
        I("v_xor_b32 v15, %d, v6" % b); I("v_lshl_add_u32 v%d, v15, 5, v14" % (VAL + b)); I("v_add_u32 v%d, 0x10000, v%d" % (VA + b, VAL + b))
    I("v_lshlrev_b32 v14, 8, v4"); I("v_lshl_add_u32 v14, v5, 3, v14")
    for t in range(7):
        I("v_xor_b32 v15, %d, v6" % t); I("v_lshl_add_u32 v%d, v15, 5, v14" % (WA + t)); I("v_add_u32 v%d, 0x10000, v%d" % (WA + 7 + t, WA + t))
    I("v_lshlrev_b32 v14, 7, v4"); I("v_lshl_add_u32 v14, v5, 3, v14"); I("v_bfe_u32 v7, v4, 1, 2")
    for t in range(4):
        I("v_xor_b32 v15, %d, v7" % t); I("v_lshl_add_u32 v%d, v15, 5, v14" % (TA + t)); I("v_add_u32 v%d, 0x10000, v%d" % (TA + 4 + t, TA + t))
    I("s_and_b32 s%d, s%d, 1" % (sT1, sW)); I("s_lshl_b32 s%d, s%d, 3" % (sT1, sT1))
    I("v_lshlrev_b32 v14, 9, v13"); I("v_add_u32 v14, s%d, v14" % sM0)
    for j in range(4):
        I("v_add_u32 v15, %d, v13" % (2 * j)); I("v_add_u32 v15, s%d, v15" % sT1); I("v_xor_b32 v15, v15, v12"); I("v_lshl_add_u32 v%d, v15, 4, v14" % (KD + j))
    I("s_lshl_b32 s%d, s%d, 1" % (sT1, sT1)); I("s_lshr_b32 s%d, s%d, 1" % (sK, sW)); I("s_lshl_b32 s%d, s%d, 2" % (sK, sK)); I("s_add_u32 s%d, s%d, s%d" % (sT1, sT1, sK))
    I("v_add_u32 v7, s%d, v13" % sT1); I("v_lshlrev_b32 v7, 13, v7")
    for j in range(4):
        I("v_add_u32 v15, %d, v13" % (2 * j)); I("v_lshlrev_b32 v15, 1, v15"); I("v_xor_b32 v15, v15, v12")
        I("v_lshl_add_u32 v%d, v15, 4, v14" % (VD + j))
        I("v_lshl_add_u32 v15, v15, 4, v7"); I("v_add_u32 v%d, %d, v15" % (QD + j, (8 * (j >> 1) + 2 * (j & 1)) * 8192 - 1024 * j))
    I("s_lshl_b32 s%d, s%d, 5" % (sT1, sW)); I("v_lshrrev_b32 v14, 3, v9"); I("v_add_u32 v14, s%d, v14" % sT1); I("v_mul_u32_u24 v14, 896, v14")
    I("v_bfe_u32 v15, v0, 1, 2"); I("v_xor_b32 v15, v15, v11"); I("v_lshl_add_u32 v14, v15, 5, v14"); I("v_and_b32 v15, 1, v0"); I("v_lshl_add_u32 v14, v15, 4, v14")
    for j in range(4): I("v_add_u32 v%d, %d, v14" % (TD + j, j * (8 * 896 - 1024)))
    I("s_mov_b32 s%d, 0" % sK); I("s_mov_b32 s%d, 0" % sV)
    for i in range(4): I("v_mov_b32 v%d, 0" % (TMP + i))
    sstamp(3)
    P.wait(vm=["x"])
    sstamp(4)
    for s in range(14):
        for r in range(4):
            for G in range(2):
                I("v_dot2c_f32_bf16 v%d, s%d, v%d" % (TMP + 2 * G + (r & 1), sONE, XC(s, G) + r))
    def xlane(op, reg, tmp):
        ops = []
        for sw in ("v_permlane32_swap_b32", "v_permlane16_swap_b32"):
            ops += [("V", "v_mov_b32 v%d, v%d" % (tmp, reg)), ("V", "%s v%d, v%d" % (sw, reg, tmp)), ("V", "%s v%d, v%d, v%d" % (op, reg, reg, tmp))]
        return ops
    for G in range(2):
        a = TMP + 2 * G
        I("v_add_f32 v%d, v%d, v%d" % (a, a, a + 1))
        for k, t in xlane("v_add_f32", a, a + 1): I(t)
        I("v_mul_f32 v%d, 0x%x, v%d" % (a, f2u(1.0 / 448), a))
        I("v_cvt_pk_bf16_f32 v%d, v%d, v%d" % (MB + G, a, a)); I("v_lshlrev_b32 v%d, 16, v%d" % (MB + G, MB + G))
        I("v_sub_f32 v%d, v%d, v%d" % (DM + G, a, MB + G))
        I("v_mov_b32 v%d, 0" % (SS + G))
    def center_ops(s):
        ops = []
        regs = [(G, XC(s, G) + r) for G in range(2) for r in range(4)]
        for i, (G, x) in enumerate(regs):
            lo = TMP + 2 * (i % 3); hi = lo + 1
            ops += [("V", "v_lshlrev_b32 v%d, 16, v%d" % (lo, x)), ("V", "v_and_b32 v%d, s%d, v%d" % (hi, sMASK, x)),
                    ("V", "v_sub_f32 v%d, v%d, v%d" % (lo, lo, MB + G)), ("V", "v_sub_f32 v%d, v%d, v%d" % (hi, hi, MB + G)),
                    ("V", "v_cvt_pk_bf16_f32 v%d, v%d, v%d" % (x, lo, hi))]
        return ops
    for k, t in center_ops(0): I(t)
    sstamp(5)
    P.wait(vm=[("T", 0)])
    I("s_barrier")
    if timing:
        for k in range(1, 6): I("v_writelane_b32 v0, s%d, %d" % (96 + k, 55 + k))

    fr = []; sb = []
    def tr(areg, off, d2): return [("tr0", areg, off), ("tr1", areg, off + d2)]
    def add(reads, mf, ring, D): fr.append(dict(reads=reads, mf=mf, ring=ring, D=D))
    mark = {}
    for tau in range(7):
        sb.append(2 * len(fr))
        for ks in range(2):
            s = 2 * tau + ks
            mark[("F1", s)] = 2 * len(fr)
            for t in range(7):
                for kind in range(2):
                    ms = []
                    for G in range(2):
                        a = r4(GU + ((kind * 7 + t) * 2 + G) * 4, "a")
                        ms.append((a, r4(XC(s, G)), "0" if s == 0 else a))
                    add(tr(WA + 7 * kind + t, 8192 * ks + 16384 * (tau % 4), 4096), ms, "v", DW)
    for j in range(7):
        tau = 7 + j; sb.append(2 * len(fr))
        for hf in range(2):
            s = 2 * j + hf
            for t in range(16):
                ms = []
                for G in range(2):
                    a = r4(O + 8 * t + 4 * G, "a")
                    ms.append((a, r4(XC(s, G)), "0" if s == 0 else a))
                add(tr((VA if hf else VAL) + (t & 7), 256 * (t >> 3) + 16384 * (tau % 4), 8192), ms, "v", DW)
    outs = []
    def f2_half(tau, hf, chunk):
        for tt in range(4):
            acc = FA[tt]
            for k in range(4):
                ms = [(r4(acc + 4 * G), r4(H(k, G)), "0" if k == 0 else r4(acc + 4 * G)) for G in range(2)]
                add(tr(TA + 4 * hf + tt, 4096 * k + 16384 * (tau % 4), 2048), ms, "a", DV)
            outs.append(("F", 2 * len(fr), acc))
    for j in range(3):
        tau = 14 + j; sb.append(2 * len(fr))
        f2_half(tau, 0, 2 * j); f2_half(tau, 1, 2 * j + 1)
    def qk_block(n, tau):
        for kt in range(2):
            for s in range(8):
                ms = []
                for G in range(2):
                    d = r4(S[n % 2] + 8 * kt + 4 * G)
                    c = ("0" if n == 0 else r4(NEGM + 4 * G)) if s == 0 else d
                    ms.append((d, r4(QF(G, s)), c))
                add([("b128", KA + (s & 3), 256 * (s >> 2) + 8192 * kt + 16384 * (tau % 4))], ms, "a", DK)
    def pv_block(n, tau):
        for t in range(16):
            ms = []
            for G in range(2):
                o = r4(O + 8 * t + 4 * G, "a")
                ms.append((o, r4(PK[n % 2] + 4 * G), "0" if n == 0 else o))
            add(tr(VA + (t & 7), 256 * (t >> 3) + 16384 * (tau % 4), 8192), ms, "a", DV)
    sb.append(2 * len(fr)); qk_block(0, 17); f2_half(17, 1, 6)
    for n in range(NV):
        tau = AT + n; sb.append(2 * len(fr))
        if n < NV - 1: qk_block(n + 1, tau)
        pv_block(n, tau)
    OT = AT + NV
    for j in range(7):
        tau = OT + j; sb.append(2 * len(fr))
        order = [(tt, k) for k in range(8) for tt in range(4)] if j == 0 else [(tt, k) for tt in range(4) for k in range(8)]
        for tt, k in order:
            acc = 192 + 32 * (j & 1) + 8 * tt
            ms = [(r4(acc + 4 * G), r4(OF(k, G)), "0" if k == 0 else r4(acc + 4 * G)) for G in range(2)]
            if j == 0 and tt == 0: mark[("O", k)] = 2 * len(fr)
            add(tr(TA + 4 * (k >> 2) + tt, 4096 * (k & 3) + 16384 * (tau % 4), 2048), ms, "a", DV)
            if k == 7: outs.append(("S", 2 * len(fr), acc))
    N = 2 * len(fr); sb.append(N)
    G_ = Gaps(N + 40)
    END = N + 40
    for i in range(len(fr)): G_.put(2 * i, "N", ("waitslot", i), force=True)
    barpos = {}
    for tau in range(NT - 1):
        g = sb[tau + 1] - 15; barpos[tau] = g
        G_.put(g, "N", ("bar", tau), force=True); G_.used[g] += 1
    cnt = {"v": 0, "a": 0}
    for i, f in enumerate(fr):
        g = max(0, 2 * (i - f["D"]) + 1)
        if f["ring"] == "v": r = FRV + 4 * (cnt["v"] % 8)
        else: r = FRA + 4 * (cnt["a"] % 16)
        cnt[f["ring"]] += 1
        p = f["ring"]; f["fr"] = r4(r, p)
        for (k, a, off) in f["reads"]:
            assert off < 65536
            if k == "b128": txt = "ds_read_b128 %s[%d:%d], v%d offset:%d" % (p, r, r + 3, a, off)
            elif k == "tr0": txt = "ds_read_b64_tr_b16 %s[%d:%d], v%d offset:%d" % (p, r, r + 1, a, off)
            else: txt = "ds_read_b64_tr_b16 %s[%d:%d], v%d offset:%d" % (p, r + 2, r + 3, a, off)
            g = G_.put(g, "N", ("ds", txt, ("f", i)), force=(g == 0), limit=g + 2)
    for tau in range(NT - 3):
        g = barpos[tau] + dma_first
        dstep = min(dma_step, (barpos[tau + 1] - barpos[tau] - 6) // 8)
        for pre, d, post in dma_ops(tau + 3):
            g0 = g
            for x in pre: g0 = G_.put(g0 - 1, "N", ("ins", x), limit=g0 + 2) + 1
            g0 = G_.put(max(g, g0), "N", ("vm", d, ("T", tau + 3)), limit=max(g, g0) + 3)
            for x in post: G_.put(g0 + 1, "N", ("ins", x), limit=g0 + 3)
            g = max(g + dstep, g0 + 2)
        assert g0 + 3 < barpos[tau + 1] + dma_first - 2, (tau, g, barpos[tau + 1])
    sites = []
    def place_softmax(n, starts, limit):
        s = S[n % 2]; pk = PK[n % 2]; lo = LB[n % 2]; ln = LB[(n + 1) % 2]
        first = [True, True]; last = 0; gl = 0
        for e, (kt, G, r) in enumerate([(kt, G, r) for kt in range(2) for G in range(2) for r in range(4)]):
            src = s + 8 * kt + 4 * G + r; p = PT + e
            g = G_.put(max(starts[e], last), "T", ("ins", "v_exp_f32 v%d, v%d" % (p, src)), limit=min(limit - 3, max(starts[e], last) + 3)); last = g
            g2 = G_.put(max(g + 1, gl), "V", ("ins", "v_add_f32 v%d, v%d, v%d" % (ln + G, (lo if first[G] else ln) + G, p)), limit=min(limit - 2, g + 4)); first[G] = False
            gl = max(gl, g2)
            if r % 2 == 1:
                g3 = G_.put(g + 1, "V", ("ins", "v_cvt_pk_bf16_f32 v%d, v%d, v%d" % (pk + 4 * G + 2 * kt + r // 2, p - 1, p)), limit=min(limit - 2, g + 4))
                gl = max(gl, g3)
        g = G_.put(gl, "V", ("ins", "v_add_f32 v%d, v%d, v%d" % (TC, ln, ln + 1)), limit=limit - 1)
        g = G_.put(g, "V", ("ins", "v_cmp_nge_f32 vcc, s%d, v%d" % (sTH, TC)), limit=limit - 1)
        g = G_.put(g + 1, "N", ("chk", n), limit=limit)
    b17 = sb[17]
    ops = []
    for G in range(2):
        e = [S[0] + 8 * kt + 4 * G + r for kt in range(2) for r in range(4)]
        m = MX + G
        ops += [("V", "v_max3_f32 v%d, v%d, v%d, v%d" % (m, e[0], e[1], e[2])), ("V", "v_max3_f32 v%d, v%d, v%d, v%d" % (m, m, e[3], e[4])),
                ("V", "v_max3_f32 v%d, v%d, v%d, v%d" % (m, m, e[5], e[6])), ("V", "v_max_f32 v%d, v%d, v%d" % (m, m, e[7]))]
        ops += xlane("v_max_f32", m, T0)
        ops += [("V", "v_sub_f32 v%d, 0, v%d" % (NEGM + 4 * G + r, m)) for r in range(4)]
        ops += [("V", "v_sub_f32 v%d, v%d, v%d" % (x, x, m)) for x in e]
        ops += [("V", "v_mov_b32 v%d, 0" % (LB[0] + G))]
    g_init = G_.chain(ops, b17 + 36, b17 + 62)
    for n in range(NV):
        bn = sb[AT + n]; bp = sb[AT + n - 1]
        if n == 0: starts = [g_init + 1 + (26 * e) // 16 for e in range(16)]; lim = bn + 31
        elif n == NV - 1: starts = [bp + 38 + (22 * e) // 16 for e in range(16)]; lim = bn
        else:
            starts = [bp + 40 + (24 * e) // sm_pv for e in range(sm_pv)] + [bn + (26 * e) // (16 - sm_pv) for e in range(16 - sm_pv)]; lim = bn + 31
        place_softmax(n, starts, lim)
    for s in range(1, 14):
        G_.chain(center_ops(s), mark[("F1", s - 1)] + 1, mark[("F1", s)] - 1)
    q0 = sb[7]; q1 = sb[14]
    ops = []
    for s in range(14):
        for r in range(4):
            for G in range(2): ops.append(("V", "v_dot2c_f32_bf16 v%d, v%d, v%d" % (SS + G, XC(s, G) + r, XC(s, G) + r)))
    for G in range(2):
        a = SS + G; t = TMP + G
        ops += xlane("v_add_f32", a, t)
        ops += [("V", "v_mul_f32 v%d, v%d, v%d" % (t, DM + G, DM + G)), ("V", "v_mul_f32 v%d, 0x%x, v%d" % (a, f2u(1.0 / 448), a)), ("V", "v_sub_f32 v%d, v%d, v%d" % (a, a, t)),
                ("V", "v_max_f32 v%d, 0, v%d" % (a, a)),
                ("V", "v_cvt_pk_bf16_f32 v%d, v%d, v%d" % (a, a, a)), ("V", "v_lshlrev_b32 v%d, 16, v%d" % (a, a)),
                ("V", "v_add_f32 v%d, 0x%x, v%d" % (a, f2u(1e-5), a)), ("V", "v_cvt_pk_bf16_f32 v%d, v%d, v%d" % (a, a, a)), ("V", "v_lshlrev_b32 v%d, 16, v%d" % (a, a)),
                ("T", "v_sqrt_f32 v%d, v%d" % (a, a)), ("V", "v_nop"), ("V", "v_cvt_pk_bf16_f32 v%d, v%d, v%d" % (a, a, a)), ("V", "v_lshlrev_b32 v%d, 16, v%d" % (a, a)),
                ("T", "v_rcp_f32 v%d, v%d" % (t, a)), ("V", "v_mul_f32 v%d, v%d, v%d" % (CI + G, a, a)),
                ("V", "v_mul_f32 v%d, 0x%x, v%d" % (RSQ + G, f2u(LOG2E / 16), t)), ("V", "v_mul_f32 v%d, 0x%x, v%d" % (RSN + G, f2u(-LOG2E), t))]
    gv = G_.chain(ops, q0 + 1, q0 + 110)
    els = [(t, G, r) for t in range(7) for G in range(2) for r in range(4)]
    def stage(i, st):
        t, G, r = els[i]
        b = WA + 3 * (i % 4)
        hv = WA + 12 + (i % 2)
        ga = GU + ((0 * 7 + t) * 2 + G) * 4 + r; ua = GU + ((7 + t) * 2 + G) * 4 + r
        if st == 0: return [("V", "v_accvgpr_read_b32 v%d, a%d" % (b, ga)), ("V", "v_accvgpr_read_b32 v%d, a%d" % (b + 1, ua)), ("V", "v_mul_f32 v%d, v%d, v%d" % (b + 2, b, RSN + G)), ("T", "v_exp_f32 v%d, v%d" % (b + 2, b + 2))]
        if st == 1: return [("V", "v_mul_f32 v%d, v%d, v%d" % (b, b, b + 1)), ("V", "v_fma_f32 v%d, v%d, v%d, v%d" % (b + 2, b + 2, CI + G, CI + G)), ("T", "v_rcp_f32 v%d, v%d" % (b + 2, b + 2))]
        o = [("V", "v_mul_f32 v%d, v%d, v%d" % (hv, b, b + 2))]
        if r % 2 == 1: o.append(("V", "v_cvt_pk_bf16_f32 v%d, v%d, v%d" % (H(t // 2, G) + 2 * (t & 1) + r // 2, WA + 12, WA + 13)))
        return o
    ops = []
    for i in range(len(els) + 2):
        if i < len(els): ops += stage(i, 0)
        if 0 <= i - 1 < len(els): ops += stage(i - 1, 1)
        if 0 <= i - 2 < len(els): ops += stage(i - 2, 2)
    for G in range(2): ops += [("V", "v_mov_b32 v%d, 0" % (H(3, G) + 2)), ("V", "v_mov_b32 v%d, 0" % (H(3, G) + 3))]
    G_.chain(ops, max(gv + 1, sb[9] + 2), q1 - 2 * DV - 4)
    ops = []
    for k in range(8):
        for G in range(2):
            q = QF(G, k)
            for half in range(2):
                a = O + 8 * (2 * k + half) + 4 * G
                tb = WA + 4 * ((2 * (2 * k + G) + half) % 3)
                ops += [("V", "v_accvgpr_read_b32 v%d, a%d" % (tb + r, a + r)) for r in range(4)]
                ops += [("V", "v_mul_f32 v%d, v%d, v%d" % (tb + r, tb + r, RSQ + G)) for r in range(4)]
                ops += [("V", "v_cvt_pk_bf16_f32 v%d, v%d, v%d" % (q + 2 * half + p, tb + 2 * p, tb + 2 * p + 1)) for p in range(2)]
            ops += [("V", "v_permlane32_swap_b32 v%d, v%d" % (q + p, q + 2 + p)) for p in range(2)]
            ops += [("V", "v_permlane16_swap_b32 v%d, v%d" % (q + p, q + 2 + p)) for p in range(2)]
    G_.chain(ops, q1 + 5, sb[17] - 1)
    bl = sb[AT + NV - 1]
    lf = LB[NV % 2]
    ops = []
    for G in range(2):
        ops += xlane("v_add_f32", lf + G, T0) + [("T", "v_rcp_f32 v%d, v%d" % (RL + G, lf + G))]
    G_.chain(ops, bl + 1, bl + 10)
    gprev = bl + 10
    for k in range(8):
        ops = []
        for G in range(2):
            for half in range(2):
                a = O + 8 * (2 * k + half) + 4 * G
                tb = PT + 4 * ((2 * G + half) % 4)
                ops += [("V", "v_accvgpr_read_b32 v%d, a%d" % (tb + r, a + r)) for r in range(4)]
                ops += [("V", "v_cvt_pk_bf16_f32 v%d, v%d, v%d" % (OF(k, G) + 2 * half + p, tb + 2 * p, tb + 2 * p + 1)) for p in range(2)]
        st = max(gprev, bl + 4 * k + 4 + 5)
        en = max(st, mark[("O", k)] - 1)
        gprev = G_.chain(ops, st, en)
    gout = 0
    for idx, (kind, g, acc) in enumerate(outs):
        tb = TMP + 4 * (idx % 2)
        ops = []
        if kind == "S":
            ops += [("V", "v_mul_f32 v%d, v%d, v%d" % (acc + 4 * G + r, acc + 4 * G + r, RL + G)) for G in range(2) for r in range(4)]
        ops += [("V", "v_cvt_pk_bf16_f32 v%d, v%d, v%d" % (tb + 2 * G + p, acc + 4 * G + 2 * p, acc + 4 * G + 2 * p + 1)) for G in range(2) for p in range(2)]
        so = sFO if kind == "F" else sSOe
        if not nostore: ops += [("N", ("vm", "buffer_store_dwordx4 %s, v%d, %s, s%d offen %s" % (r4(tb), VL16, srd("WS"), so, stflag), "st")), ("N", "s_add_u32 s%d, s%d, 16384" % (so, so))]
        st = max(g + 5, gout + 1)
        gout = G_.chain(ops, st, min(st + (6 if kind == "F" else 9), END))
    loop_start = sb[AT + 1]; loop_end = sb[AT + 5]; chk_end = sb[AT + 9]
    rare_sites = []
    def stamp(k):
        if timing:
            I("s_memtime s[%d:%d]" % (94, 95)); I("s_waitcnt lgkmcnt(0)"); P.lgkm = []
            I("s_sub_u32 s94, s94, s90"); I("v_writelane_b32 v0, s94, %d" % k)
    def loop_stamp():
        I("s_sub_u32 s94, s94, s90"); I("s_add_u32 s96, s96, 16"); I("v_mov_b32 v15, s94"); I("v_cmp_eq_u32 vcc, s96, v%d" % VL16); I("s_nop 1"); I("v_cndmask_b32 v0, v0, v15, vcc")
        I("s_memtime s[94:95]")
    for i in range(END + 1):
        if i == loop_start:
            I("s_mov_b32 s%d, 0" % sLOOP)
            if timing: I("s_mov_b32 s96, %d" % (39 * 16))
            if align: I(".p2align %d" % align)
            for _ in range(pad): I("s_nop 0")
            P.label("L_loop")
            if timing: loop_stamp()
            mark0 = len(P.lines)
        if i == loop_end: mark1 = len(P.lines)
        if i == chk_end:
            A = P.lines[mark0:mark1]; B = P.lines[mark1:]
            norm = lambda L: [re.sub(r"L_(rare|back)_\d+", "L_x", x) for x in L]
            assert norm(A) == norm(B), [(a, b) for a, b in zip(A, B) if a != b][:8]
            del P.lines[mark1:]
            rare_sites = [x for x in rare_sites if not (5 <= x <= 8)]
            I("s_add_u32 s%d, s%d, 1" % (sLOOP, sLOOP)); I("s_cmp_lt_u32 s%d, 15" % sLOOP); I("s_cbranch_scc1 L_loop")
        if timing and i in sb and not (loop_start <= i < chk_end): stamp(sb.index(i))
        for it in G_.items(i):
            if it[0] == "ds": P.ds(it[1], it[2])
            elif it[0] == "bar":
                P.wait(vm=[("T", it[1] + 1)]); I("s_barrier")
            elif it[0] == "vm": P.vmem(it[1], it[2])
            elif it[0] == "waitslot":
                if i > 0: P.wait(lg=[("f", it[1])])
            elif it[0] == "chk":
                I("s_cbranch_vccnz L_rare_%d" % it[1]); P.label("L_back_%d" % it[1]); rare_sites.append(it[1])
            else: I(it[1])
        if i < N:
            f = fr[i // 2]; d, b, c = f["mf"][i % 2]
            if i % 2 == 0: P.wait(lg=[("f", i // 2)])
            I("v_mfma_f32_16x16x32_bf16 %s, %s, %s, %s" % (d, f["fr"], b, c))
    if timing:
        I("s_waitcnt vmcnt(0)"); P.vm = []
        stamp(38)
        I("s_memrealtime s[94:95]"); I("s_waitcnt lgkmcnt(0)"); I("s_sub_u32 s94, s94, s92"); I("v_writelane_b32 v0, s94, 39")
        I("s_lshl_b32 s94, s2, 2"); I("s_add_u32 s94, s94, s%d" % sW); I("s_lshl_b32 s94, s94, 10"); I("s_add_u32 s94, s94, 0x%x" % WS_T)
        I("buffer_store_dword v0, v%d, %s, s94 offen" % (VL16, srd("WS")))
    P.label("L_end"); I("s_endpgm")
    for n in rare_sites:
        P.label("L_rare_%d" % n); I("s_mov_b32 s%d, %d" % (sRET, n)); I("s_branch L_rp_%d" % (n % 2))
    for par in range(2):
        P.label("L_rp_%d" % par)
        I("s_nop 15")
        s = S[par]; s2 = S[1 - par]; lo = LB[par]; ln = LB[1 - par]; pk = PK[par]
        for G in range(2):
            e = [s + 8 * kt + 4 * G + r for kt in range(2) for r in range(4)]
            e2 = [s2 + 8 * kt + 4 * G + r for kt in range(2) for r in range(4)]
            m = MX + G
            I("v_log_f32 v%d, v%d" % (m, lo + G))
            I("v_max3_f32 v%d, v%d, v%d, v%d" % (T0, e[0], e[1], e[2])); I("v_max3_f32 v%d, v%d, v%d, v%d" % (T0, T0, e[3], e[4]))
            I("v_max3_f32 v%d, v%d, v%d, v%d" % (T0, T0, e[5], e[6])); I("v_max3_f32 v%d, v%d, v%d, v%d" % (m, m, T0, e[7]))
            for k, t in xlane("v_max_f32", m, T0): I(t)
            I("v_max_f32 v%d, 0, v%d" % (m, m))
            I("v_exp_f32 v%d, -v%d" % (TC, m))
            for x in e + e2 + [NEGM + 4 * G + r for r in range(4)]: I("v_sub_f32 v%d, v%d, v%d" % (x, x, m))
            I("v_mul_f32 v%d, v%d, v%d" % (lo + G, lo + G, TC))
            for t in range(16):
                for r in range(4):
                    a = O + 8 * t + 4 * G + r
                    I("v_accvgpr_read_b32 v%d, a%d" % (PT + r, a))
                for r in range(4): I("v_mul_f32 v%d, v%d, v%d" % (PT + r, PT + r, TC))
                for r in range(4): I("v_accvgpr_write_b32 a%d, v%d" % (O + 8 * t + 4 * G + r, PT + r))
            for j, x in enumerate(e): I("v_exp_f32 v%d, v%d" % (PT + j, x))
            I("v_add_f32 v%d, v%d, v%d" % (ln + G, lo + G, PT))
            for j in range(1, 8): I("v_add_f32 v%d, v%d, v%d" % (ln + G, ln + G, PT + j))
            for j in range(4): I("v_cvt_pk_bf16_f32 v%d, v%d, v%d" % (pk + 4 * G + j, PT + 2 * j, PT + 2 * j + 1))
        I("s_nop 3")
        mine = [n for n in rare_sites if n % 2 == par]
        for n in mine[:-1]:
            I("s_cmp_eq_u32 s%d, %d" % (sRET, n)); I("s_cbranch_scc1 L_back_%d" % n)
        I("s_branch L_back_%d" % mine[-1])
    rep = []
    P.lines = fix_hazards(P.lines, rep)
    if verbose:
        print("K1: MFMAs(virtual) %d, overflow placements %d, nops inserted %d (total ws %d)" % (N, G_.over, len(rep), sum(r[1] for r in rep)))
        for p in check_text(P.text()): print(p)
    return P.text(), rep, G_, sb

def gen_k2():
    P = Prog(); I = P.ins
    I("s_cmp_ge_u32 s2, 448"); I("s_cbranch_scc1 L2_end")
    I("s_load_dwordx2 s[4:5], s[0:1], 0"); I("s_load_dwordx2 s[6:7], s[0:1], 72"); I("s_load_dwordx2 s[8:9], s[0:1], 88")
    I("v_lshrrev_b32 v1, 6, v0"); I("s_nop 0"); I("v_readfirstlane_b32 s3, v1")
    I("s_lshl_b32 s10, s2, 2"); I("s_add_u32 s10, s10, s3")
    I("s_mul_i32 s11, s10, 9363"); I("s_lshr_b32 s11, s11, 18")
    I("s_mul_i32 s12, s11, 28"); I("s_sub_u32 s12, s10, s12")
    I("s_lshl_b32 s13, s10, 14")
    I("v_and_b32 v2, 63, v0"); I("v_lshlrev_b32 v2, 4, v2")
    I("v_and_b32 v3, 15, v0"); I("v_bfe_u32 v4, v0, 4, 2")
    I("v_mul_u32_u24 v5, 896, v3"); I("v_lshl_add_u32 v5, v4, 3, v5"); I("v_add_u32 v6, 14336, v5")
    I("s_mul_i32 s14, s11, %d" % (32 * 896)); I("s_lshl_b32 s15, s12, 5"); I("s_add_u32 s14, s14, s15")
    I("s_waitcnt lgkmcnt(0)")
    for d, lo, size in ((16, 4, 2048 * 896), (20, 6, 2048 * 896), (24, 8, 0x10000000)):
        I("s_mov_b32 s%d, s%d" % (d, lo)); I("s_mov_b32 s%d, s%d" % (d + 1, lo + 1)); I("s_mov_b32 s%d, 0x%x" % (d + 2, size)); I("s_mov_b32 s%d, 0x20000" % (d + 3))
    for part, base in ((0, WS_F), (1, WS_S)):
        for h in range(16):
            if h % 4 == 0: I("s_add_u32 s%d, s13, 0x%x" % (28 + part * 4 + h // 4, base + 1024 * h))
            P.vmem("buffer_load_dwordx4 %s, v2, s[24:27], s%d offen offset:%d" % (r4(16 + 64 * part + 4 * h), 28 + part * 4 + h // 4, 1024 * (h % 4)), (part, h))
    P.vmem("buffer_load_dwordx2 v[8:9], v5, s[16:19], s14 offen", "x"); P.vmem("buffer_load_dwordx2 v[10:11], v6, s[16:19], s14 offen", "x")
    I("s_mov_b32 s36, 0xffff0000")
    ACC = [144, 152]
    for part in range(2):
        for h in range(16):
            P.wait(vm=[(part, h)])
            b = 16 + 64 * part + 4 * h
            for j in range(4):
                a = ACC[part] + 2 * j
                if h == 0:
                    I("v_lshlrev_b32 v%d, 16, v%d" % (a, b + j)); I("v_and_b32 v%d, s36, v%d" % (a + 1, b + j))
                else:
                    I("v_lshlrev_b32 v12, 16, v%d" % (b + j)); I("v_and_b32 v13, s36, v%d" % (b + j))
                    I("v_add_f32 v%d, v%d, v12" % (a, a)); I("v_add_f32 v%d, v%d, v13" % (a + 1, a + 1))
    P.wait(vm=["x"])
    def rnd2(a):
        I("v_cvt_pk_bf16_f32 v12, v%d, v%d" % (a, a + 1)); I("v_lshlrev_b32 v%d, 16, v12" % a); I("v_and_b32 v%d, s36, v12" % (a + 1))
    for j in range(4):
        f = ACC[0] + 2 * j; s = ACC[1] + 2 * j
        rnd2(f); rnd2(s)
        for e in range(2):
            I("v_mul_f32 v%d, 0x%x, v%d" % (14 + e, f2u(-LOG2E), f + e)); I("v_exp_f32 v%d, v%d" % (14 + e, 14 + e))
        for e in range(2): I("v_add_f32 v%d, 1.0, v%d" % (14 + e, 14 + e))
        for e in range(2): I("v_rcp_f32 v%d, v%d" % (14 + e, 14 + e))
        for e in range(2): I("v_mul_f32 v%d, v%d, v%d" % (f + e, f + e, 14 + e))
        rnd2(f)
        for e in range(2): I("v_mul_f32 v%d, v%d, v%d" % (s + e, s + e, f + e))
        rnd2(s)
        I("v_lshlrev_b32 v14, 16, v%d" % (8 + j)); I("v_and_b32 v15, s36, v%d" % (8 + j))
        for e in range(2): I("v_add_f32 v%d, v%d, v%d" % (s + e, s + e, 14 + e))
        I("v_cvt_pk_bf16_f32 v%d, v%d, v%d" % (160 + j, s, s + 1))
    I("buffer_store_dwordx2 v[160:161], v5, s[20:23], s14 offen"); I("buffer_store_dwordx2 v[162:163], v6, s[20:23], s14 offen")
    P.label("L2_end"); I("s_endpgm")
    assert all((w * 9363) >> 18 == w // 28 for w in range(1792))
    P.lines = fix_hazards(P.lines)
    for p in check_text(P.text()): print(p)
    return P.text()

HEAD = open("cdna_kernels/%s.s.ref" % NAME).read().split("; Override launch")[0]
def kd(name, nv, acc):
    return """.amdhsa_kernel %s
  .amdhsa_next_free_vgpr %d
  .amdhsa_next_free_sgpr 102
  .amdhsa_accum_offset %d
  .amdhsa_group_segment_fixed_size 0
  .amdhsa_kernarg_size 96
  .amdhsa_user_sgpr_count 2
  .amdhsa_user_sgpr_kernarg_segment_ptr 1
  .amdhsa_system_sgpr_workgroup_id_x 1
.end_amdhsa_kernel
""" % (name, nv, acc)
def build(**kw):
    k1, rep, G_, sb = gen_k1(**kw)
    k2 = gen_k2()
    s = HEAD
    s += "; @launch kernel=%s grid=(256,1,1) block=(256,1,1) lds=131072\n" % K1
    s += "; @launch kernel=%s grid=(448,1,1) block=(256,1,1) lds=0\n" % K2
    s += '.amdgcn_target "amdgcn-amd-amdhsa--gfx950"\n.text\n'
    for nm, body in ((K1, k1), (K2, k2)):
        s += ".globl %s\n.p2align 8\n.type %s,@function\n%s:\n%s" % (nm, nm, nm, body)
    s += '.section .rodata,"a"\n.p2align 6\n' + kd(K1, 512, 256) + ".p2align 6\n" + kd(K2, 168, 168)
    return s, rep, G_, sb

def report(G_, sb, rep):
    for t in range(len(sb) - 1):
        u = G_.used[sb[t]:sb[t + 1]]; v = G_.vused[sb[t]:sb[t + 1]]
        print("step %2d: mfma %d slots %d (cap %d) valu %d over-gaps %d excess %d" % (t, sb[t + 1] - sb[t], sum(u), 3 * len(u), sum(v), sum(1 for x, y in zip(u, v) if x > 3 or y > 2), sum(max(x - 3, y - 2, 0) for x, y in zip(u, v))))
    from collections import Counter
    print(Counter(r[2].split("|")[0] for r in rep))

if __name__ == "__main__":
    V = dict(a=dict())
    for k, v in V.items():
        s, rep, G_, sb = build(timing=True, verbose=False, **v)
        open("k_%st.s" % k, "w").write(s)
```

```python
import sys
from gen import *
from kgen import gen_k2, HEAD, kd, NAME, K1, K2, LOG2E, f2u, r4, WS_S, WS_F, WS_T

def gen_k1(L=10, LW=9, estep=3, e0=8, stflag="", fstflag="", timing=False, verbose=True, nostore=False, bar_off=25, pfl=True, dma_step=6):
    P = Prog()
    O = 0; GU = 128; FRA = 192; FRF = 128
    S = [16, 32]; NEGM = 48; LB = [56, 58]; MX = 60; TC = 62; T0 = 63
    WA = 48; FRV = 64; PT = 64; PK = [80, 88]
    KA = 96; VA = 100; KD = 108; VD = 112; TA = 116; TD = 124
    XC = lambda s, G: 128 + 8 * (13 - s) + 4 * G
    QF = lambda G, k: 128 + 32 * G + 4 * k
    H = lambda k, G: XC(k, G)
    OF = lambda k, G: 128 + 8 * k + 4 * G
    VAL = 240; WD = 248; QD = 252
    UA = 240; UD = 242; PFV = 244; PFD = 245; PFW = 246
    FA = [192, 200]
    ST = 16
    VL16 = 1; MB = 2; RSQ = 2; DM = 4; RSN = 4; CI = 6; RL = 60
    TMP = 8
    SRD = dict(X=28, K=32, V=36, WQ=40, WO=44, W1=48, W3=52, W2=56, WS=60)
    def srd(n): return "s[%d:%d]" % (SRD[n], SRD[n] + 3)
    sH, sQB, sW, sM0, sSO, sLOOP, sTH, sRET, sFO, sSOe = 64, 65, 66, 67, 68, 70, 71, 72, 74, 75
    sW13, sWQ, sW2, sWO, sK, sV, sT0, sT1, sMASK, sM0F = 78, 79, 80, 81, 82, 83, 84, 85, 86, 87
    sDG = 4
    I = P.ins
    def sstamp(k):
        if timing:
            I("s_memtime s[94:95]"); I("s_waitcnt lgkmcnt(0)"); P.lgkm = []; I("s_sub_u32 s%d, s94, s90" % (96 + k))
    I("s_cmp_ge_u32 s2, 256"); I("s_cbranch_scc1 L_end")
    I("s_load_dwordx16 s[4:19], s[0:1], 0"); I("s_load_dwordx8 s[20:27], s[0:1], 64")
    if timing: I("s_memtime s[90:91]"); I("s_memrealtime s[92:93]")
    I("s_and_b32 s%d, s2, 7" % sH); I("s_lshr_b32 s%d, s2, 3" % sQB)
    I("s_lshr_b32 s%d, s%d, 4" % (sT0, sQB)); I("s_lshl_b32 s%d, s%d, 1" % (sH, sH)); I("s_add_u32 s%d, s%d, s%d" % (sH, sH, sT0))
    I("s_and_b32 s%d, s%d, 15" % (sQB, sQB))
    I("v_lshrrev_b32 v8, 6, v0"); I("s_nop 0"); I("v_readfirstlane_b32 s%d, v8" % sW)
    I("v_and_b32 v9, 63, v0"); I("v_and_b32 v10, 15, v0"); I("v_bfe_u32 v11, v0, 4, 2")
    I("v_lshlrev_b32 v%d, 4, v9" % VL16)
    I("s_lshl_b32 s%d, s%d, 2" % (sT0, sQB)); I("s_add_u32 s%d, s%d, s%d" % (sT0, sT0, sW))
    I("s_mul_i32 s%d, s%d, %d" % (sSO, sQB, 128 * 896))
    I("s_lshl_b32 s%d, s%d, 5" % (sT1, sW)); I("s_lshl_b32 s%d, s%d, 12" % (sM0, sW))
    I("v_lshrrev_b32 v14, 3, v9"); I("v_add_u32 v14, s%d, v14" % sT1); I("v_mul_u32_u24 v14, 896, v14")
    I("v_bfe_u32 v15, v0, 1, 2"); I("v_xor_b32 v15, v15, v11"); I("v_lshl_add_u32 v14, v15, 5, v14"); I("v_and_b32 v15, 1, v0"); I("v_lshl_add_u32 v14, v15, 4, v14")
    for j in range(4): I("v_add_u32 v%d, %d, v14" % (TD + j, j * (8 * 896 - 1024)))
    Q_ = []
    J = Q_.append
    J("s_mul_i32 s%d, s%d, 224" % (sW13, sH))
    J("s_lshr_b32 s%d, s%d, 1" % (sK, sW)); J("s_lshl_b32 s%d, s%d, 5" % (sK, sK)); J("s_and_b32 s%d, s%d, 1" % (sV, sW)); J("s_lshl_b32 s%d, s%d, 2" % (sV, sV))
    J("s_add_u32 s%d, s%d, s%d" % (sK, sK, sV))
    J("v_add_u32 v12, s%d, v11" % sK); J("v_mul_u32_u24 v12, 3584, v12")
    J("v_and_b32 v13, 1, v10"); J("v_lshl_add_u32 v12, v13, 4, v12"); J("v_lshrrev_b32 v13, 1, v10")
    for j in range(4):
        J("v_add_u32 v14, %d, v11" % (4 * (j & 1))); J("v_xor_b32 v14, v14, v13"); J("v_min_u32 v14, 6, v14"); J("v_lshl_add_u32 v14, v14, 5, v12")
        J("v_add_u32 v%d, %d, v14" % (WD + j, j * (8 * 3584 - 1024)))
    def mk(n, lo, size, add=None, f=None):
        f = f or J; d = SRD[n]
        if add is None: f("s_mov_b32 s%d, s%d" % (d, lo)); f("s_mov_b32 s%d, s%d" % (d + 1, lo + 1))
        else: f("s_add_u32 s%d, s%d, s%d\n    s_addc_u32 s%d, s%d, 0" % (d, lo, add, d + 1, lo + 1))
        f("s_mov_b32 s%d, 0x%x" % (d + 2, size)); f("s_mov_b32 s%d, 0x20000" % (d + 3))
    mk("W1", 16, 448 * 3584); mk("W3", 18, 448 * 3584)
    J("s_lshl_b32 s%d, s%d, 20" % (sK, sH))
    mk("K", 6, 0x100000, sK); mk("V", 8, 0x100000, sK)
    mk("WQ", 10, 448 * 8192); mk("WO", 12, 4096 * 896); mk("W2", 20, 1792 * 896); mk("WS", 26, 0x10000000)
    J("s_lshl_b32 s%d, s%d, 9" % (sWQ, sH)); J("s_mul_i32 s%d, s%d, %d" % (sW2, sH, 112 * 896)); J("s_mul_i32 s%d, s%d, %d" % (sWO, sH, 256 * 896))
    J("s_mul_i32 s%d, s%d, %d" % (sFO, sT0, 28 * 16)); J("s_add_u32 s%d, s%d, s%d" % (sFO, sFO, sH)); J("s_lshl_b32 s%d, s%d, 10" % (sFO, sFO))
    J("s_add_u32 s%d, s%d, 0x%x" % (sSOe, sFO, WS_S)); J("s_add_u32 s%d, s%d, 0x%x" % (sFO, sFO, WS_F))
    J("s_mov_b32 s%d, 0x53800000" % sTH); J("s_mov_b32 s%d, 0xffff0000" % sMASK)
    J("s_lshr_b32 s%d, s%d, 1" % (sM0F, sM0)); J("s_add_u32 s%d, s%d, 0x20000" % (sM0F, sM0F))
    for r in range(4):
        m = (1 << r) | (1 << (20 + r)) | (1 << (40 + r)) | (1 << (60 + r))
        J("s_mov_b32 s%d, 0x%x" % (sDG + 2 * r, m & 0xffffffff)); J("s_mov_b32 s%d, 0x%x" % (sDG + 2 * r + 1, m >> 32))
    for r in range(4): J("v_mov_b32 v%d, 0x3f803f80" % (ST + 16 + r))
    J("v_and_b32 v12, 31, v0"); J("v_bfe_u32 v13, v0, 5, 1")
    J("v_lshlrev_b32 v14, 9, v10")
    for s in range(4):
        J("v_add_u32 v15, %d, v11" % (4 * s)); J("v_xor_b32 v15, v15, v10"); J("v_lshl_add_u32 v%d, v15, 4, v14" % (KA + s))
    J("v_bfe_u32 v4, v0, 2, 4"); J("v_and_b32 v5, 3, v0"); J("v_and_b32 v6, 7, v4")
    J("v_lshlrev_b32 v14, 8, v4"); J("v_lshl_add_u32 v14, v5, 3, v14")
    for t in range(7):
        J("v_xor_b32 v15, %d, v6" % t); J("v_lshl_add_u32 v%d, v15, 5, v14" % (WA + t)); J("v_add_u32 v%d, 0x10000, v%d" % (WA + 7 + t, WA + t))
    J("v_lshlrev_b32 v14, 9, v4"); J("v_lshl_add_u32 v14, v5, 3, v14")
    for b in range(8):
        J("v_xor_b32 v15, %d, v6" % b); J("v_lshl_add_u32 v%d, v15, 5, v14" % (VAL + b)); J("v_add_u32 v%d, 0x10000, v%d" % (VA + b, VAL + b))
    J("v_lshlrev_b32 v14, 7, v4"); J("v_lshl_add_u32 v14, v5, 3, v14"); J("v_bfe_u32 v7, v4, 1, 2")
    for t in range(4):
        J("v_xor_b32 v15, %d, v7" % t); J("v_lshl_add_u32 v%d, v15, 5, v14" % (TA + t)); J("v_add_u32 v%d, 0x10000, v%d" % (TA + 4 + t, TA + t))
    J("v_lshlrev_b32 v14, 6, v4"); J("v_lshl_add_u32 v14, v5, 3, v14"); J("v_add_u32 v14, 0x20000, v14"); J("v_bfe_u32 v7, v4, 2, 1")
    for t in range(2):
        J("v_xor_b32 v15, %d, v7" % t); J("v_lshl_add_u32 v%d, v15, 5, v14" % (36 + t))
    J("v_lshrrev_b32 v14, 2, v9"); J("v_add_u32 v14, s%d, v14" % sT1); J("v_mul_u32_u24 v14, 896, v14")
    J("v_bfe_u32 v15, v0, 1, 1"); J("v_bfe_u32 v7, v0, 4, 1"); J("v_xor_b32 v15, v15, v7"); J("v_lshl_add_u32 v14, v15, 5, v14"); J("v_and_b32 v15, 1, v0"); J("v_lshl_add_u32 v38, v15, 4, v14")
    J("v_add_u32 v39, %d, v38" % (16 * 896 - 1024))
    J("s_and_b32 s%d, s%d, 1" % (sT1, sW)); J("s_lshl_b32 s%d, s%d, 3" % (sT1, sT1))
    J("v_lshlrev_b32 v14, 9, v13"); J("v_add_u32 v14, s%d, v14" % sM0)
    for j in range(4):
        J("v_add_u32 v15, %d, v13" % (2 * j)); J("v_add_u32 v15, s%d, v15" % sT1); J("v_xor_b32 v15, v15, v12"); J("v_lshl_add_u32 v%d, v15, 4, v14" % (KD + j))
    J("s_lshl_b32 s%d, s%d, 1" % (sT1, sT1)); J("s_lshr_b32 s%d, s%d, 1" % (sK, sW)); J("s_lshl_b32 s%d, s%d, 2" % (sK, sK)); J("s_add_u32 s%d, s%d, s%d" % (sT1, sT1, sK))
    J("v_add_u32 v7, s%d, v13" % sT1); J("v_lshlrev_b32 v7, 13, v7")
    for j in range(4):
        J("v_add_u32 v15, %d, v13" % (2 * j)); J("v_lshlrev_b32 v15, 1, v15"); J("v_xor_b32 v15, v15, v12")
        J("v_lshl_add_u32 v%d, v15, 4, v14" % (VD + j))
        J("v_lshl_add_u32 v15, v15, 4, v7"); J("v_add_u32 v%d, %d, v15" % (QD + j, (8 * (j >> 1) + 2 * (j & 1)) * 8192 - 1024 * j))
    J("s_mov_b32 s%d, 0" % sK); J("s_mov_b32 s%d, 0" % sV)
    J("v_lshrrev_b32 v14, 3, v10"); J("v_lshlrev_b32 v14, 10, v14"); J("v_and_b32 v15, 7, v10"); J("v_lshl_add_u32 v14, v15, 7, v14"); J("v_add_u32 v14, s%d, v14" % sM0)
    J("v_bfe_u32 v15, v10, 1, 2"); J("v_lshlrev_b32 v15, 1, v15"); J("v_xor_b32 v15, v15, v11")
    J("v_lshl_add_u32 v2, v15, 4, v14"); J("v_xor_b32 v3, 64, v2")
    for k in range(2): J("v_add_u32 v%d, 0x10000, v%d" % (4 + k, 2 + k)); J("v_add_u32 v%d, 0x20000, v%d" % (6 + k, 2 + k))
    J("s_mul_i32 s%d, s%d, 14" % (sT1, sT0)); J("v_add_u32 v14, s%d, v9" % sT1); J("v_mov_b32 v13, 0x7f000000"); J("v_cmp_gt_u32 vcc, 14, v9")
    J("v_lshlrev_b32 v42, 7, v14"); J("v_cndmask_b32 v42, v13, v42, vcc")
    J("s_and_b32 s%d, s%d, 1" % (sT1, sW)); J("s_lshl_b32 s%d, s%d, 13" % (sT1, sT1)); J("v_lshlrev_b32 v43, 7, v9"); J("v_add_u32 v43, s%d, v43" % sT1)
    J("s_cmp_lt_u32 s%d, 2\n    s_cselect_b32 s12, s%d, s%d\n    s_cselect_b32 s13, s%d, s%d" % (sW, SRD["K"], SRD["V"], SRD["K"] + 1, SRD["V"] + 1)); J("s_mov_b32 s14, 0x100000"); J("s_mov_b32 s15, 0x20000")
    J("s_and_b32 s16, s%d, 3" % sQB); J("s_lshl_b32 s16, s16, 14"); J("s_lshr_b32 s17, s%d, 2" % sQB)
    J("s_sub_u32 s17, 4, s17"); J("s_lshl_b32 s17, s17, 30"); J("s_add_u32 s16, s16, s17")
    def drain(n):
        for _ in range(min(n, len(Q_))):
            for x in Q_.pop(0).split("\n"): I(x.strip())
    nk = [x for x in Q_[:31]]
    drain(31)
    I("s_waitcnt lgkmcnt(0)")
    mk("X", 4, 2048 * 896, f=I)
    XS = [0x4000, 0x8000, 0xc000, 0x14000, 0x18000, 0x1c000, 0x20000]
    per = (len(Q_) + 27) // 28
    for j in range(7):
        I("s_add_u32 m0, s%d, %d" % (sM0, XS[j]))
        if j: I("s_add_u32 s%d, s%d, 128" % (sSO, sSO))
        else: I("s_nop 0")
        for i in range(4):
            P.vmem("buffer_load_dwordx4 v%d, %s, s%d offen offset:%d lds" % (TD + i, srd("X"), sSO, 1024 * i), ("x", j))
            drain(per)
    drain(10 ** 6)
    sstamp(1)
    NV = 16
    tiles = []
    for t in range(7): tiles.append([("W1", WD, (sW13, t * 64 * 3584)), ("W3", WD, (sW13, t * 64 * 3584))])
    for j in range(7): tiles.append([("WQ", QD, (sWQ, 64 * j * 8192)), ("WQ", QD, (sWQ, (64 * j + 32) * 8192))])
    tiles.append([("K", KD, "inc"), None])
    for n in range(NV): tiles.append([("K", KD, "inc") if n < NV - 1 else None, ("V", VD, "inc")])
    for j in range(7): tiles.append([("WO", TD, (sWO, 128 * j)), ("WO", TD, (sWO, 128 * 896 + 128 * j))])
    NT = len(tiles); AT = 15
    def dma_ops(tau):
        groups = []
        for hf, half in enumerate(tiles[tau]):
            if half is None: continue
            sn, vb, so = half
            m0 = "s_add_u32 m0, s%d, %d" % (sM0, 65536 * hf + 16384 * (tau % 4))
            if so == "inc": sreg = sK if sn == "K" else sV; pre = [m0]; post = ["s_add_u32 s%d, s%d, 16384" % (sreg, sreg)]
            else: sreg = sSO + hf; pre = [m0, "s_add_u32 s%d, s%d, %d" % (sreg, so[0], so[1])]; post = []
            for j in range(4):
                groups.append((pre if j == 0 else [], "buffer_load_dwordx4 v%d, %s, s%d offen offset:%d lds" % (vb + j, srd(sn), sreg, 1024 * j), post if j == 3 else []))
        return groups
    def f2_dma_ops(UD=UD):
        return [(["s_mov_b32 m0, s%d" % sM0F], "buffer_load_dwordx4 v%d, %s, s%d offen lds" % (UD, srd("W2"), sW2), []),
                ([], "buffer_load_dwordx4 v%d, %s, s%d offen offset:1024 lds" % (UD + 1, srd("W2"), sW2), ["s_add_u32 s%d, s%d, 64" % (sW2, sW2)])]
    def issue_group(g, tag):
        pre, d, post = g
        for x in pre: I(x)
        if pre: I("s_nop 0")
        P.vmem(d, tag)
        for x in post: I(x)
    t0 = dma_ops(0)
    def xread(s):
        j = s >> 1; base = XS[j]
        P.wait(vm=[("x", j)])
        for G in range(2):
            P.ds("ds_read_b128 %s, v%d offset:%d" % (r4(XC(s, G)), 2 + (s & 1) + 2 * (base >> 16), (base & 0xffff) + 2048 * G), ("xf", s))
    for g in t0[:4]: issue_group(g, ("T", 0))
    for s in range(4): xread(s)
    for g in t0[4:]: issue_group(g, ("T", 0))
    sstamp(2)
    for s in range(14):
        if s + 4 < 14: xread(s + 4)
        P.wait(lg=[("xf", s)])
        for G in range(2):
            I("v_mfma_f32_16x16x32_bf16 %s, %s, %s, %s" % (r4(ST + 4 * G), r4(ST + 16), r4(XC(s, G)), "0" if s == 0 else r4(ST + 4 * G)))
    sstamp(3)
    def xlane(op, reg, tmp):
        ops = []
        for sw in ("v_permlane32_swap_b32", "v_permlane16_swap_b32"):
            ops += [("V", "v_mov_b32 v%d, v%d" % (tmp, reg)), ("T", "%s v%d, v%d" % (sw, reg, tmp)), ("V", "%s v%d, v%d, v%d" % (op, reg, reg, tmp))]
        return ops
    def center_ops(s):
        ops = []
        regs = [(G, XC(s, G) + r) for G in range(2) for r in range(4)]
        for i, (G, x) in enumerate(regs):
            lo = TMP + 2 * (i % 3); hi = lo + 1
            ops += [("V", "v_lshlrev_b32 v%d, 16, v%d" % (lo, x)), ("V", "v_and_b32 v%d, s%d, v%d" % (hi, sMASK, x)),
                    ("V", "v_sub_f32 v%d, v%d, v%d" % (lo, lo, MB + G)), ("V", "v_sub_f32 v%d, v%d, v%d" % (hi, hi, MB + G)),
                    ("V", "v_cvt_pk_bf16_f32 v%d, v%d, v%d" % (x, lo, hi))]
        return ops
    pre_ops = []
    for G in range(2):
        a = TMP + G
        pre_ops += ["v_mul_f32 v%d, 0x%x, v%d" % (a, f2u(1.0 / 448), ST + 4 * G), "v_cvt_pk_bf16_f32 v%d, v%d, v%d" % (MB + G, a, a), "v_lshlrev_b32 v%d, 16, v%d" % (MB + G, MB + G),
                    "v_sub_f32 v%d, v%d, v%d" % (DM + G, a, MB + G)]
    pre_ops += [t for k, t in center_ops(0)]
    t1 = dma_ops(1)
    for i, g in enumerate(t1):
        issue_group(g, ("T", 1))
        for x in pre_ops[6 * i:6 * i + 6]: I(x)
    sstamp(4)
    P.wait(vm=[("T", 0)])
    I("s_barrier")
    sstamp(5)
    if timing:
        for k in range(1, 6): I("v_writelane_b32 v0, s%d, %d" % (96 + k, 55 + k))

    fr = []; sb = []
    def tr(areg, off, d2): return [("tr0", areg, off), ("tr1", areg, off + d2)]
    def add(reads, mf, ring): fr.append(dict(reads=reads, mf=mf, ring=ring))
    mark = {}
    for tau in range(7):
        sb.append(2 * len(fr))
        for ks in range(2):
            s = 2 * tau + ks
            mark[("F1", s)] = 2 * len(fr)
            for t in range(7):
                for kind in range(2):
                    ms = []
                    for G in range(2):
                        a = r4(GU + ((kind * 7 + t) * 2 + G) * 4, "a")
                        ms.append((a, r4(XC(s, G)), "0" if s == 0 else a, None))
                    add(tr(WA + 7 * kind + t, 8192 * ks + 16384 * (tau % 4), 4096), ms, "v")
                if t == 3:
                    add([], [(r4(ST + 8 + 4 * G), r4(XC(s, G)), "0" if s == 0 else r4(ST + 8 + 4 * G), r4(XC(s, G))) for G in range(2)], None)
    for j in range(7):
        tau = 7 + j; sb.append(2 * len(fr))
        order = [(hf, t) for hf in range(2) for t in range(16)] if j < 6 else [(hf, t) for t in range(16) for hf in range(2)]
        for hf, t in order:
            s = 2 * j + hf
            ms = []
            for G in range(2):
                a = r4(O + 8 * t + 4 * G, "a")
                ms.append((a, r4(XC(s, G)), "0" if s == 0 else a, None))
            add(tr((VA if hf else VAL) + (t & 7), 256 * (t >> 3) + 16384 * (tau % 4), 8192), ms, "v")
    outs = []
    def f2_unit():
        for tt in range(2):
            acc = FA[tt]
            for k in range(4):
                ms = [(r4(acc + 4 * G), r4(H(k, G)), "0" if k == 0 else r4(acc + 4 * G), None) for G in range(2)]
                add(tr(UA + tt, 2048 * k, 1024), ms, "f")
            outs.append(("F", 2 * len(fr), acc))
    def qk_block(n, tau):
        order = [(kt, s) for kt in range(2) for s in range(8)] if n > 0 else [(kt, s) for s in range(8) for kt in range(2)]
        for kt, s in order:
            ms = []
            for G in range(2):
                d = r4(S[n % 2] + 8 * kt + 4 * G)
                c = ("0" if n <= 1 else r4(NEGM + 4 * G)) if s == 0 else d
                ms.append((d, r4(QF(G, s)), c, None))
            if n == 0 and kt == 0: mark[("QK0", s)] = 2 * len(fr)
            add([("b128", KA + (s & 3), 256 * (s >> 2) + 8192 * kt + 16384 * (tau % 4))], ms, "a")
    def pv_block(n, tau):
        for t in range(16):
            ms = []
            for G in range(2):
                o = r4(O + 8 * t + 4 * G, "a")
                ms.append((o, r4(PK[n % 2] + 4 * G), "0" if n == 0 else o, None))
            add(tr(VA + (t & 7), 256 * (t >> 3) + 16384 * (tau % 4), 8192), ms, "a")
    sb.append(2 * len(fr)); qk_block(0, 14)
    pvs = {}
    for n in range(NV):
        tau = AT + n; sb.append(2 * len(fr))
        if n < NV - 1: qk_block(n + 1, tau)
        if n in (1, 5): f2_unit()
        pvs[n] = 2 * len(fr)
        pv_block(n, tau)
    OT = AT + NV
    for j in range(7):
        tau = OT + j; sb.append(2 * len(fr))
        order = [(tt, k) for k in range(8) for tt in range(4)] if j == 0 else [(tt, k) for tt in range(4) for k in range(8)]
        for tt, k in order:
            acc = 192 + 32 * (j & 1) + 8 * tt
            ms = [(r4(acc + 4 * G), r4(OF(k, G)), "0" if k == 0 else r4(acc + 4 * G), None) for G in range(2)]
            if j == 0 and tt == 0: mark[("O", k)] = 2 * len(fr)
            add(tr(TA + 4 * (k >> 2) + tt, 4096 * (k & 3) + 16384 * (tau % 4), 2048), ms, "a")
            if k == 7: outs.append(("S", 2 * len(fr), acc))
    N = 2 * len(fr); sb.append(N)
    END = N + 40
    G_ = Gaps2(END)
    for i in range(len(fr)):
        if fr[i]["reads"]: G_.put(2 * i, "S", ("waitslot", i), force=True)
    barpos = {}
    for tau in range(NT - 1):
        g = sb[tau + 1] - bar_off; barpos[tau] = g
        assert g % 2 == 1
        G_.put(g, "S", ("bar", tau), force=True); G_.put(g, "S", ("nil",), force=True)
    holes = set()
    estart = {}
    for n in range(1, NV - 1):
        estart[n] = pvs[n - 1] + e0
        for e in range(16): holes.add(estart[n] + estep * e)
    cnt = {"v": 0, "a": 0, "f": 0}
    rl = []
    for i, f in enumerate(fr):
        if not f["reads"]: continue
        if f["ring"] == "v": r = FRV + 4 * (cnt["v"] % 8); p = "v"; lead = LW; rs = 8
        elif f["ring"] == "f": r = FRF + 4 * (cnt["f"] % 8); p = "a"; lead = L; rs = 8
        else: r = FRA + 4 * (cnt["a"] % 16); p = "a"; lead = L; rs = 16
        cnt[f["ring"]] += 1
        f["fr"] = r4(r, p)
        for q, (k, a, off) in enumerate(f["reads"]):
            assert off < 65536
            if k == "b128": txt = "ds_read_b128 %s[%d:%d], v%d offset:%d" % (p, r, r + 3, a, off)
            elif k == "tr0": txt = "ds_read_b64_tr_b16 %s[%d:%d], v%d offset:%d" % (p, r, r + 1, a, off)
            else: txt = "ds_read_b64_tr_b16 %s[%d:%d], v%d offset:%d" % (p, r + 2, r + 3, a, off)
            rl.append([2 * i - lead, txt, i])
    nxt = 10 ** 9
    for x in reversed(rl):
        g = min(x[0], nxt - 1)
        while g in holes: g -= 1
        x[0] = g; nxt = g
    lastuse = {}
    for g, txt, i in rl:
        g = max(g, 0)
        key = fr[i]["fr"]
        if key in lastuse and lastuse[key] != i: assert g > 2 * lastuse[key] + 1, ("ring WAR", i, g, lastuse[key])
        lastuse[key] = i
        tau = max(t for t in range(NT) if sb[t] <= 2 * i)
        if tau > 0: assert g > barpos[tau - 1], ("read before barrier", i, g, tau, barpos[tau - 1])
        G_.put(g, "D", ("ds", txt, ("f", i)), force=True)
    def place_softmax(n, e0, estep, limit, dense=False):
        s = S[n % 2]; pk = PK[n % 2]; lo = LB[n % 2]; ln = LB[(n + 1) % 2]
        first = [True, True]; gl = 0; pend = []
        for e, (kt, G, r) in enumerate([(kt, G, r) for kt in range(2) for G in range(2) for r in range(4)]):
            src = s + 8 * kt + 4 * G + r; p = PT + e
            g = G_.put(e0 + int(estep * e), "T", ("ins", "v_exp_f32 v%d, v%d" % (p, src)), force=True)
            pend.append((g + 1, "v_add_f32 v%d, v%d, v%d" % (ln + G, (lo if first[G] else ln) + G, p))); first[G] = False
            if r % 2 == 1: pend.append((g + 1, "v_cvt_pk_bf16_f32 v%d, v%d, v%d" % (pk + 4 * G + 2 * kt + r // 2, p - 1, p)))
        pend.append((0, "v_add_f32 v%d, v%d, v%d" % (TC, ln, ln + 1))); pend.append((0, "v_cmp_nge_f32 vcc, s%d, v%d" % (sTH, TC)))
        for k, (g, t) in enumerate(pend):
            st = max(g, gl)
            gl = G_.put(st, "V", ("ins", t), limit=min(st + (1 if dense else 4), limit - 1))
        G_.put(gl + 1, "S", ("chk", n), limit=limit)
    b0 = sb[AT]
    ops = []
    for G in range(2):
        e = [S[0] + 8 * kt + 4 * G + r for kt in range(2) for r in range(4)]
        m = MX + G
        ops += [("V", "v_max3_f32 v%d, v%d, v%d, v%d" % (m, e[0], e[1], e[2])), ("V", "v_max3_f32 v%d, v%d, v%d, v%d" % (m, m, e[3], e[4])),
                ("V", "v_max3_f32 v%d, v%d, v%d, v%d" % (m, m, e[5], e[6])), ("V", "v_max_f32 v%d, v%d, v%d" % (m, m, e[7]))]
        ops += xlane("v_max_f32", m, T0)
        ops += [("V", "v_sub_f32 v%d, v%d, v%d" % (x, x, m)) for x in e]
        ops += [("V", "v_mov_b32 v%d, 0" % (LB[0] + G))]
    g_init = G_.chain(ops, b0 + 4, b0 + 15)
    for n in range(NV):
        bn = sb[AT + n]
        if n == 0: place_softmax(0, g_init + 1, 0.75, pvs[0] - 1, dense=True)
        elif n == NV - 1: place_softmax(n, pvs[n - 1] + 6, 1.4, bn, dense=True)
        else: place_softmax(n, estart[n], estep, bn + 31)
    def fix_ops(kt): return [("V", "v_sub_f32 v%d, v%d, v%d" % (S[1] + 8 * kt + 4 * G + r, S[1] + 8 * kt + 4 * G + r, MX + G)) for G in range(2) for r in range(4)]
    G_.chain(fix_ops(0), b0 + 30, estart[1] - 1)
    G_.chain(fix_ops(1) + [("V", "v_sub_f32 v%d, 0, v%d" % (NEGM + 4 * G + r, MX + G)) for G in range(2) for r in range(4)], estart[1], min(estart[1] + 8 * estep + 6, b0 + 62))
    def place_dma(groups, g, dstep, tag, hi):
        for pre, d, post in groups:
            g0 = g
            for x in pre: g0 = G_.put(g0 - 1, "S", ("ins", x), limit=g0 + 1) + 1
            g0 = G_.put(max(g, g0), "M", ("vm", d, tag), limit=min(hi, max(g, g0) + 2))
            for x in post: G_.put(g0 + 1, "S", ("ins", x), limit=g0 + 2)
            g = max(g + dstep, g0 + 3)
        return g, g0
    place_dma(dma_ops(2), 3, 4, ("T", 2), END)
    lead_pf = ([], "buffer_load_dword v%d, v%d, s[12:15], s16 offen", ["s_add_u32 s16, s16, 0x40010000"])
    for tau in range(NT - 3):
        nn = tau - AT
        groups = dma_ops(tau + 3)
        if nn in (2, 6): groups = groups + f2_dma_ops()
        if nn == -4: groups = groups + f2_dma_ops(38)
        extra = []
        if pfl:
            if tau in (3, 7, 11): extra = [([], lead_pf[1] % (44, 43), lead_pf[2])]
            if nn in (1, 5): extra = [([], lead_pf[1] % (PFD, PFV), lead_pf[2])]
            if tau == 9: extra = [([], "buffer_load_dword v44, v42, %s, s%d offen" % (srd("W2"), sW2), [])]
            if nn in (9, 10): extra = [(["s_add_u32 s17, s%d, %d" % (sWO, (nn - 9) * 896 * 128)], "buffer_load_dword v%d, v%d, %s, s17 offen" % (PFD, PFW, srd("WO")), [])]
        g = barpos[tau] + 3; hi = barpos[tau + 1] - 1
        dstep = min(dma_step, (hi - g) // (len(groups) + len(extra)))
        g, g0 = place_dma(groups, g, dstep, ("T", tau + 3), END)
        if extra: g, g0 = place_dma(extra, g, dstep, ("T", tau + 4), END)
        assert g0 <= barpos[tau + 1] + 1, (tau, g0, barpos[tau + 1])
    for s in range(1, 14):
        G_.chain(center_ops(s), mark[("F1", s - 1)] + 1, mark[("F1", s)] - 1)
    q0 = sb[7]; q1 = sb[14]
    ops = []
    for G in range(2):
        a = CI + G; t = TMP + G; g = ST + 8 + 4 * G
        ops += [("V", "v_cndmask_b32 v%d, 0, v%d, s[%d:%d]" % (a, g, sDG, sDG + 1))]
        ops += [("V", "v_cndmask_b32 v%d, v%d, v%d, s[%d:%d]" % (a, a, g + r, sDG + 2 * r, sDG + 2 * r + 1)) for r in range(1, 4)]
        ops += xlane("v_add_f32", a, t)
        ops += [("V", "v_mul_f32 v%d, v%d, v%d" % (t, DM + G, DM + G)), ("V", "v_mul_f32 v%d, 0x%x, v%d" % (a, f2u(1.0 / 448), a)), ("V", "v_sub_f32 v%d, v%d, v%d" % (a, a, t)),
                ("V", "v_max_f32 v%d, 0, v%d" % (a, a)),
                ("V", "v_cvt_pk_bf16_f32 v%d, v%d, v%d" % (a, a, a)), ("V", "v_lshlrev_b32 v%d, 16, v%d" % (a, a)),
                ("V", "v_add_f32 v%d, 0x%x, v%d" % (a, f2u(1e-5), a)), ("V", "v_cvt_pk_bf16_f32 v%d, v%d, v%d" % (a, a, a)), ("V", "v_lshlrev_b32 v%d, 16, v%d" % (a, a)),
                ("T", "v_sqrt_f32 v%d, v%d" % (a, a)), ("V", "v_cvt_pk_bf16_f32 v%d, v%d, v%d" % (a, a, a)), ("V", "v_lshlrev_b32 v%d, 16, v%d" % (a, a)),
                ("T", "v_rcp_f32 v%d, v%d" % (t, a)), ("V", "v_mul_f32 v%d, v%d, v%d" % (a, a, a)),
                ("V", "v_mul_f32 v%d, 0x%x, v%d" % (RSQ + G, f2u(LOG2E / 16), t)), ("V", "v_mul_f32 v%d, 0x%x, v%d" % (RSN + G, f2u(-LOG2E), t))]
    gv = G_.chain(ops, mark[("F1", 13)] + 24, q0 + 32)
    els = [(t, G, r) for t in range(7) for G in range(2) for r in range(4)]
    def stage(i, st):
        t, G, r = els[i]
        b = WA + 3 * (i % 4); hv = WA + 12 + (i % 2)
        ga = GU + ((0 * 7 + t) * 2 + G) * 4 + r; ua = GU + ((7 + t) * 2 + G) * 4 + r
        if st == 0: return [("V", "v_accvgpr_read_b32 v%d, a%d" % (b, ga)), ("V", "v_accvgpr_read_b32 v%d, a%d" % (b + 1, ua)), ("V", "v_mul_f32 v%d, v%d, v%d" % (b + 2, b, RSN + G)), ("T", "v_exp_f32 v%d, v%d" % (b + 2, b + 2))]
        if st == 1: return [("V", "v_mul_f32 v%d, v%d, v%d" % (b, b, b + 1)), ("V", "v_fma_f32 v%d, v%d, v%d, v%d" % (b + 2, b + 2, CI + G, CI + G)), ("T", "v_rcp_f32 v%d, v%d" % (b + 2, b + 2))]
        o = [("V", "v_mul_f32 v%d, v%d, v%d" % (hv, b, b + 2))]
        if r % 2 == 1: o.append(("V", "v_cvt_pk_bf16_f32 v%d, v%d, v%d" % (H(t // 2, G) + 2 * (t & 1) + r // 2, WA + 12, WA + 13)))
        return o
    ops = []
    for i in range(len(els) + 2):
        if i < len(els): ops += stage(i, 0)
        if 0 <= i - 1 < len(els): ops += stage(i - 1, 1)
        if 0 <= i - 2 < len(els): ops += stage(i - 2, 2)
    for G in range(2): ops += [("V", "v_mov_b32 v%d, 0" % (H(3, G) + 2)), ("V", "v_mov_b32 v%d, 0" % (H(3, G) + 3))]
    gsw = G_.chain(ops, max(gv + 1, q0 + 34), sb[13] + 10, window=1)
    gprev = gsw + 1
    for k in range(8):
        ops = []
        for G in range(2):
            q = QF(G, k)
            dst = (16 + 4 * k) if q < 128 + 16 else q
            for half in range(2):
                a = O + 8 * (2 * k + half) + 4 * G
                tb = WA + 4 * ((2 * (2 * k + G) + half) % 3)
                ops += [("V", "v_accvgpr_read_b32 v%d, a%d" % (tb + r, a + r)) for r in range(4)]
                ops += [("V", "v_mul_f32 v%d, v%d, v%d" % (tb + r, tb + r, RSQ + G)) for r in range(4)]
                ops += [("V", "v_cvt_pk_bf16_f32 v%d, v%d, v%d" % (dst + 2 * half + p, tb + 2 * p, tb + 2 * p + 1)) for p in range(2)]
            ops += [("T", "v_permlane32_swap_b32 v%d, v%d" % (dst + p, dst + 2 + p)) for p in range(2)]
            ops += [("T", "v_permlane16_swap_b32 v%d, v%d" % (dst + p, dst + 2 + p)) for p in range(2)]
        st = max(gprev, sb[13] + 8 * k + 8 + 4)
        en = max(st, min(mark[("QK0", k)] - 1, (sb[13] + 12 + 13 * (k + 1)) if k < 4 else 10 ** 9, q1 - 1 if k < 4 else 10 ** 9))
        gprev = G_.chain(ops, st, en, window=1)
    for i in range(16): G_.put(q1, "V", ("ins", "v_mov_b32 v%d, v%d" % (128 + i, 16 + i)), force=True)
    for i in range(4): G_.put(q1 - 6, "V", ("ins", "v_mov_b32 v%d, v%d" % (UA + i, 36 + i)), force=True)
    G_.put(q1, "V", ("ins", "v_mov_b32 v%d, v43" % PFV), force=True); G_.put(q1, "V", ("ins", "v_mov_b32 v%d, v42" % PFW), force=True)
    bl = sb[AT + NV - 1]
    lf = LB[NV % 2]
    ops = []
    for G in range(2):
        ops += xlane("v_add_f32", lf + G, T0) + [("T", "v_rcp_f32 v%d, v%d" % (RL + G, lf + G))]
    gprev = G_.chain(ops, bl + 1, bl + 10)
    for k in range(8):
        ops = []
        for G in range(2):
            for half in range(2):
                a = O + 8 * (2 * k + half) + 4 * G
                tb = PT + 4 * ((2 * G + half) % 4)
                ops += [("V", "v_accvgpr_read_b32 v%d, a%d" % (tb + r, a + r)) for r in range(4)]
                ops += [("V", "v_cvt_pk_bf16_f32 v%d, v%d, v%d" % (OF(k, G) + 2 * half + p, tb + 2 * p, tb + 2 * p + 1)) for p in range(2)]
        st = max(gprev, bl + 4 * k + 4 + 5)
        en = max(st, min(mark[("O", k)] - 1, bl + 10 + 10 * (k + 1)))
        gprev = G_.chain(ops, st, en, window=1)
    gout = 0
    for idx, (kind, g, acc) in enumerate(outs):
        tb = TMP + 4 * (idx % 2)
        ops = []
        if kind == "S":
            ops += [("V", "v_mul_f32 v%d, v%d, v%d" % (acc + 4 * G + r, acc + 4 * G + r, RL + G)) for G in range(2) for r in range(4)]
        ops += [("V", "v_cvt_pk_bf16_f32 v%d, v%d, v%d" % (tb + 2 * G + p, acc + 4 * G + 2 * p, acc + 4 * G + 2 * p + 1)) for G in range(2) for p in range(2)]
        so = sFO if kind == "F" else sSOe
        if not nostore: ops += [("M", ("vm", "buffer_store_dwordx4 %s, v%d, %s, s%d offen %s" % (r4(tb), VL16, srd("WS"), so, fstflag if kind == "F" else stflag), "st")), ("S", "s_add_u32 s%d, s%d, 16384" % (so, so))]
        st = max(g + 5, gout + 1)
        gout = G_.chain(ops, st, min(st + (7 if kind == "F" else 13), END))
    loop_start = sb[AT + 1]; loop_end = sb[AT + 5]; chk_end = sb[AT + 9]
    rare_sites = []
    def stamp(k):
        I("s_memtime s[%d:%d]" % (94, 95)); I("s_waitcnt lgkmcnt(0)"); P.lgkm = []
        I("s_sub_u32 s94, s94, s90"); I("v_writelane_b32 v0, s94, %d" % k)
    def loop_stamp():
        I("s_sub_u32 s94, s94, s90"); I("s_add_u32 s96, s96, 16"); I("v_mov_b32 v7, s94"); I("v_cmp_eq_u32 vcc, s96, v%d" % VL16); I("s_nop 1"); I("v_cndmask_b32 v0, v0, v7, vcc")
        I("s_memtime s[94:95]")
    for i in range(END + 1):
        if i == loop_start:
            I("s_mov_b32 s%d, 0" % sLOOP)
            if timing: I("s_mov_b32 s96, %d" % (40 * 16))
            P.label("L_loop")
            if timing: loop_stamp()
            mark0 = len(P.lines)
        if i == loop_end: mark1 = len(P.lines)
        if i == chk_end:
            A = P.lines[mark0:mark1]; B = P.lines[mark1:]
            norm = lambda L_: [re.sub(r"L_(rare|back)_\d+", "L_x", x) for x in L_]
            assert norm(A) == norm(B), [(a, b) for a, b in zip(norm(A), norm(B)) if a != b][:8]
            del P.lines[mark1:]
            rare_sites = [x for x in rare_sites if not (5 <= x <= 8)]
            I("s_add_u32 s%d, s%d, 1" % (sLOOP, sLOOP)); I("s_cmp_lt_u32 s%d, 14" % sLOOP); I("s_cbranch_scc1 L_loop")
        if timing and i in sb and not (loop_start <= i < chk_end): stamp(sb.index(i))
        for it in G_.items(i):
            if it[0] == "ds": P.ds(it[1], it[2])
            elif it[0] == "bar":
                P.wait(vm=[("T", it[1] + 1)]); I("s_barrier")
            elif it[0] == "vm": P.vmem(it[1], it[2])
            elif it[0] == "waitslot":
                if i > 0: P.wait(lg=[("f", it[1])], maxq=12)
            elif it[0] == "chk":
                if it[1] > 0:
                    I("s_cbranch_vccnz L_rare_%d" % it[1]); P.label("L_back_%d" % it[1]); rare_sites.append(it[1])
            elif it[0] == "nil": pass
            else: I(it[1])
        if i < N:
            f = fr[i // 2]; d, b, c, ao = f["mf"][i % 2]
            if i % 2 == 0: P.wait(lg=[("f", i // 2)])
            I("v_mfma_f32_16x16x32_bf16 %s, %s, %s, %s" % (d, ao or f["fr"], b, c))
    if timing:
        I("s_waitcnt vmcnt(0)"); P.vm = []
        stamp(39)
        I("s_memrealtime s[94:95]"); I("s_waitcnt lgkmcnt(0)"); I("s_sub_u32 s94, s94, s92"); I("v_writelane_b32 v0, s94, 40")
        I("s_lshl_b32 s94, s2, 2"); I("s_add_u32 s94, s94, s%d" % sW); I("s_lshl_b32 s94, s94, 10"); I("s_add_u32 s94, s94, 0x%x" % WS_T)
        I("buffer_store_dword v0, v%d, %s, s94 offen" % (VL16, srd("WS")))
    P.label("L_end"); I("s_endpgm")
    for n in rare_sites:
        P.label("L_rare_%d" % n); I("s_mov_b32 s%d, %d" % (sRET, n)); I("s_branch L_rp_%d" % (n % 2))
    for par in range(2):
        P.label("L_rp_%d" % par)
        I("s_nop 15")
        s = S[par]; s2 = S[1 - par]; lo = LB[par]; ln = LB[1 - par]; pk = PK[par]
        for G in range(2):
            e = [s + 8 * kt + 4 * G + r for kt in range(2) for r in range(4)]
            e2 = [s2 + 8 * kt + 4 * G + r for kt in range(2) for r in range(4)]
            m = MX + G
            I("v_log_f32 v%d, v%d" % (m, lo + G))
            I("v_max3_f32 v%d, v%d, v%d, v%d" % (T0, e[0], e[1], e[2])); I("v_max3_f32 v%d, v%d, v%d, v%d" % (T0, T0, e[3], e[4]))
            I("v_max3_f32 v%d, v%d, v%d, v%d" % (T0, T0, e[5], e[6])); I("v_max3_f32 v%d, v%d, v%d, v%d" % (m, m, T0, e[7]))
            for k, t in xlane("v_max_f32", m, T0): I(t)
            I("v_max_f32 v%d, 0, v%d" % (m, m))
            I("v_exp_f32 v%d, -v%d" % (TC, m))
            for x in e + e2 + [NEGM + 4 * G + r for r in range(4)]: I("v_sub_f32 v%d, v%d, v%d" % (x, x, m))
            I("v_mul_f32 v%d, v%d, v%d" % (lo + G, lo + G, TC))
            for t in range(16):
                for r in range(4): I("v_accvgpr_read_b32 v%d, a%d" % (PT + r, O + 8 * t + 4 * G + r))
                for r in range(4): I("v_mul_f32 v%d, v%d, v%d" % (PT + r, PT + r, TC))
                for r in range(4): I("v_accvgpr_write_b32 a%d, v%d" % (O + 8 * t + 4 * G + r, PT + r))
            for j, x in enumerate(e): I("v_exp_f32 v%d, v%d" % (PT + j, x))
            I("v_add_f32 v%d, v%d, v%d" % (ln + G, lo + G, PT))
            for j in range(1, 8): I("v_add_f32 v%d, v%d, v%d" % (ln + G, ln + G, PT + j))
            for j in range(4): I("v_cvt_pk_bf16_f32 v%d, v%d, v%d" % (pk + 4 * G + j, PT + 2 * j, PT + 2 * j + 1))
        I("s_nop 3")
        mine = [n for n in rare_sites if n % 2 == par]
        for n in mine[:-1]:
            I("s_cmp_eq_u32 s%d, %d" % (sRET, n)); I("s_cbranch_scc1 L_back_%d" % n)
        I("s_branch L_back_%d" % mine[-1])
    rep = []
    P.lines = fix_hazards(P.lines, rep)
    if verbose:
        print("K1: MFMAs(virtual) %d, nops inserted %d (total ws %d)" % (N, len(rep), sum(r[1] for r in rep)))
        print("penalty per step:", [G_.total_pen(sb[t], sb[t + 1]) for t in range(len(sb) - 1)])
    for p in check_text(P.text()): print(p)
    return P.text(), rep, G_, sb

def build(**kw):
    k1, rep, G_, sb = gen_k1(**kw)
    k2 = gen_k2()
    s = HEAD
    s += "; @launch kernel=%s grid=(256,1,1) block=(256,1,1) lds=147456\n" % K1
    s += "; @launch kernel=%s grid=(448,1,1) block=(256,1,1) lds=0\n" % K2
    s += '.amdgcn_target "amdgcn-amd-amdhsa--gfx950"\n.text\n'
    for nm, body in ((K1, k1), (K2, k2)):
        s += ".globl %s\n.p2align 8\n.type %s,@function\n%s:\n%s" % (nm, nm, nm, body)
    s += '.section .rodata,"a"\n.p2align 6\n' + kd(K1, 512, 256) + ".p2align 6\n" + kd(K2, 168, 168)
    return s, rep, G_, sb

if __name__ == "__main__":
    s, rep, G_, sb = build()
    open("k4_a.s", "w").write(s)
    V = dict(a=dict())
    for k, v in V.items():
        s, rep, G_, sb = build(timing=True, verbose=False, **v)
        open("k4_%st.s" % k, "w").write(s)
```

```python
import sys, struct
from gen import *
NAME = "recurrent_scan__mha_block_cached__glu_gated_swiglu__prompt"
K1 = NAME + "_kernel"
LOG2E = 1.4426950408889634
def f2u(x): return struct.unpack("<I", struct.pack("<f", x))[0]
def r4(x, p="v"): return "%s[%d:%d]" % (p, x, x + 3)
WS_S = 0x0; WS_F = 0x2000000; WS_FL = 0x4000000; WS_G = 0x4100000; WS_T = 0xa000000
BIG = 0x40000000
MF = "v_mfma_f32_16x16x32_bf16"

def gen_k1(L=10, LW=9, estep=3, e0=8, timing=False, verbose=True, bar_off=25, dma_step=6, spin=3000, test_fail=0, test_nof=0, pub_lag=50, NB=5, NU=2, rank_at=20):
    P = Prog(); I = P.ins
    O = 0; GU = 128; FRA = 192; FRF = 128
    S = [16, 32]; NEGM = 48; LB = [56, 58]; MX = 60; TC = 62; T0 = 63
    WA = 48; FRV = 64; PT = 64; PK = [80, 88]
    KA = 96; VA = 100; KD = 108; VD = 112; TA = 116; TD = 124
    XC = lambda s, G: 128 + 8 * (13 - s) + 4 * G
    QF = lambda G, k: 128 + 32 * G + 4 * k
    H = lambda k, G: XC(k, G)
    OF = lambda k, G: 128 + 8 * k + 4 * G
    VAL = 240; WD = 248; QD = 252
    UA = 240; PFV = 244; PFD = 245; PFW = 246; SELT = 248; FST = 208
    FA = [192, 200]; AVP = 247; AVW = 54
    ST = 16
    VL16 = 1; MB = 2; RSQ = 2; DM = 4; RSN = 4; CI = 6; RL = 60
    TMP = 8
    SRD = dict(X=28, K=32, V=36, WQ=40, WO=44, W1=48, W3=52, W2=56, WS=60, DBG=20, OUT=24, PF=12)
    def srd(n): return "s[%d:%d]" % (SRD[n], SRD[n] + 3)
    sH, sQB, sW, sM0, sSO, sLOOP, sTH, sRET, sCW, sFO, sSOe, sFC = 64, 65, 66, 67, 68, 70, 71, 72, 73, 74, 75, 76
    sW13, sWQ, sW2, sWO, sK, sV, sT0, sT1, sMASK, sAT, sFLW = 78, 79, 80, 81, 82, 83, 84, 85, 86, 87, 3
    sDG = 4; sPFO = 16
    I("s_cmp_ge_u32 s2, 256"); I("s_cbranch_scc1 L_end")
    I("s_load_dwordx16 s[4:19], s[0:1], 0"); I("s_load_dwordx8 s[20:27], s[0:1], 64")
    if timing: I("s_memtime s[98:99]"); I("s_memrealtime s[100:101]")
    I("s_and_b32 s%d, s2, 7" % sH); I("s_lshr_b32 s%d, s2, 3" % sQB)
    I("s_lshr_b32 s%d, s%d, 4" % (sT0, sQB)); I("s_lshl_b32 s%d, s%d, 1" % (sH, sH)); I("s_add_u32 s%d, s%d, s%d" % (sH, sH, sT0))
    I("s_and_b32 s%d, s%d, 15" % (sQB, sQB))
    I("v_lshrrev_b32 v8, 6, v0"); I("s_nop 0"); I("v_readfirstlane_b32 s%d, v8" % sW)
    I("v_and_b32 v9, 63, v0"); I("v_and_b32 v10, 15, v0"); I("v_bfe_u32 v11, v0, 4, 2")
    I("v_lshlrev_b32 v%d, 4, v9" % VL16)
    I("s_lshl_b32 s%d, s%d, 2" % (sT0, sQB)); I("s_add_u32 s%d, s%d, s%d" % (sT0, sT0, sW))
    I("s_getpc_b64 s[88:89]"); P.label("L_pc")
    I("s_and_b32 s%d, s%d, 15" % (sT1, sT0)); I("s_lshl_b32 s%d, s%d, 13" % (sT1, sT1))
    I("v_lshlrev_b32 v14, 7, v9"); I("v_add_u32 v14, s%d, v14" % sT1); I("v_min_u32 v14, L_code_end-L_pc-4, v14")
    P.vmem("global_load_dword v44, v14, s[88:89]", "cpf")
    I("s_mul_i32 s%d, s%d, %d" % (sSO, sQB, 128 * 896))
    I("s_lshl_b32 s%d, s%d, 5" % (sT1, sW)); I("s_lshl_b32 s%d, s%d, 12" % (sM0, sW))
    I("v_lshrrev_b32 v14, 3, v9"); I("v_add_u32 v14, s%d, v14" % sT1); I("v_mul_u32_u24 v14, 896, v14")
    I("v_bfe_u32 v15, v0, 1, 2"); I("v_xor_b32 v15, v15, v11"); I("v_lshl_add_u32 v14, v15, 5, v14"); I("v_and_b32 v15, 1, v0"); I("v_lshl_add_u32 v14, v15, 4, v14")
    for j in range(4): I("v_add_u32 v%d, %d, v14" % (TD + j, j * (8 * 896 - 1024)))
    Q_ = []; J = Q_.append
    J("s_mul_i32 s%d, s%d, 224" % (sW13, sH))
    J("s_lshr_b32 s%d, s%d, 1" % (sK, sW)); J("s_lshl_b32 s%d, s%d, 5" % (sK, sK)); J("s_and_b32 s%d, s%d, 1" % (sV, sW)); J("s_lshl_b32 s%d, s%d, 2" % (sV, sV))
    J("s_add_u32 s%d, s%d, s%d" % (sK, sK, sV))
    J("v_add_u32 v12, s%d, v11" % sK); J("v_mul_u32_u24 v12, 3584, v12")
    J("v_and_b32 v13, 1, v10"); J("v_lshl_add_u32 v12, v13, 4, v12"); J("v_lshrrev_b32 v13, 1, v10")
    for j in range(4):
        J("v_add_u32 v14, %d, v11" % (4 * (j & 1))); J("v_xor_b32 v14, v14, v13"); J("v_min_u32 v14, 6, v14"); J("v_lshl_add_u32 v14, v14, 5, v12")
        J("v_add_u32 v%d, %d, v14" % (WD + j, j * (8 * 3584 - 1024)))
    NOK = len(Q_)
    def mk(n, lo, size, add=None, f=None):
        f = f or J; d = SRD[n]
        if add is None: f("s_mov_b32 s%d, s%d" % (d, lo)); f("s_mov_b32 s%d, s%d" % (d + 1, lo + 1))
        else: f("s_add_u32 s%d, s%d, s%d\n    s_addc_u32 s%d, s%d, 0" % (d, lo, add, d + 1, lo + 1))
        f("s_mov_b32 s%d, 0x%x" % (d + 2, size)); f("s_mov_b32 s%d, 0x20000" % (d + 3))
    mk("W1", 16, 448 * 3584); mk("W3", 18, 448 * 3584)
    J("s_lshl_b32 s%d, s%d, 20" % (sK, sH))
    mk("K", 6, 0x100000, sK); mk("V", 8, 0x100000, sK)
    mk("WQ", 10, 448 * 8192); mk("WO", 12, 4096 * 896); mk("W2", 20, 1792 * 896); mk("WS", 26, 0x10000000)
    J("s_mov_b32 s20, s24"); J("s_mov_b32 s21, s25"); J("s_mov_b32 s24, s22"); J("s_mov_b32 s25, s23")
    J("s_mov_b32 s22, 256"); J("s_mov_b32 s23, 0x20000"); J("s_mov_b32 s26, %d" % (2048 * 896)); J("s_mov_b32 s27, 0x20000")
    J("s_lshl_b32 s%d, s%d, 4" % (sCW, sQB)); J("s_add_u32 s%d, s%d, 4096" % (sAT, sCW))
    J("s_lshl_b32 s%d, s%d, 5" % (sFLW, sT0)); J("s_add_u32 s%d, s%d, s%d" % (sFLW, sFLW, sH)); J("s_lshl_b32 s%d, s%d, 2" % (sFLW, sFLW)); J("s_add_u32 s%d, s%d, 0x%x" % (sFLW, sFLW, WS_FL))
    J("s_and_b32 s93, s%d, 0xffffff80" % sFLW)
    J("v_mov_b32 v47, 0x7f000000"); J("v_cmp_eq_u32 vcc, 0, v9"); J("s_nop 0"); J("v_cndmask_b32 v47, v47, 0, vcc")
    J("v_mov_b32 v45, 0x7f000000"); J("v_cmp_eq_u32 vcc, 0, v0"); J("v_mov_b32 v46, 0"); J("v_cndmask_b32 v45, v45, 0, vcc")
    J("s_lshl_b32 s%d, s%d, 9" % (sWQ, sH)); J("s_mul_i32 s%d, s%d, %d" % (sW2, sH, 112 * 896)); J("s_mul_i32 s%d, s%d, %d" % (sWO, sH, 256 * 896))
    J("s_mul_i32 s%d, s%d, %d" % (sFO, sT0, 28 * 16)); J("s_add_u32 s%d, s%d, s%d" % (sFO, sFO, sH)); J("s_lshl_b32 s%d, s%d, 10" % (sFO, sFO))
    J("s_add_u32 s%d, s%d, 0x%x" % (sSOe, sFO, WS_S)); J("s_add_u32 s%d, s%d, 0x%x" % (sFO, sFO, WS_F))
    J("s_mov_b32 s%d, 0x53800000" % sTH); J("s_mov_b32 s%d, 0xffff0000" % sMASK)
    for r in range(4):
        m = (1 << r) | (1 << (20 + r)) | (1 << (40 + r)) | (1 << (60 + r))
        J("s_mov_b32 s%d, 0x%x" % (sDG + 2 * r, m & 0xffffffff)); J("s_mov_b32 s%d, 0x%x" % (sDG + 2 * r + 1, m >> 32))
    for r in range(4): J("v_mov_b32 v%d, 0x3f803f80" % (ST + 16 + r))
    J("v_and_b32 v12, 31, v0"); J("v_bfe_u32 v13, v0, 5, 1")
    J("v_lshlrev_b32 v14, 9, v10")
    for s in range(4):
        J("v_add_u32 v15, %d, v11" % (4 * s)); J("v_xor_b32 v15, v15, v10"); J("v_lshl_add_u32 v%d, v15, 4, v14" % (KA + s))
    J("v_bfe_u32 v4, v0, 2, 4"); J("v_and_b32 v5, 3, v0"); J("v_and_b32 v6, 7, v4")
    J("v_lshlrev_b32 v14, 8, v4"); J("v_lshl_add_u32 v14, v5, 3, v14")
    for t in range(7):
        J("v_xor_b32 v15, %d, v6" % t); J("v_lshl_add_u32 v%d, v15, 5, v14" % (WA + t)); J("v_add_u32 v%d, 0x10000, v%d" % (WA + 7 + t, WA + t))
    J("v_lshlrev_b32 v14, 9, v4"); J("v_lshl_add_u32 v14, v5, 3, v14")
    for b in range(8):
        J("v_xor_b32 v15, %d, v6" % b); J("v_lshl_add_u32 v%d, v15, 5, v14" % (VAL + b)); J("v_add_u32 v%d, 0x10000, v%d" % (VA + b, VAL + b))
    J("v_lshlrev_b32 v14, 7, v4"); J("v_lshl_add_u32 v14, v5, 3, v14"); J("v_bfe_u32 v7, v4, 1, 2")
    for t in range(4):
        J("v_xor_b32 v15, %d, v7" % t); J("v_lshl_add_u32 v%d, v15, 5, v14" % (TA + t)); J("v_add_u32 v%d, 0x10000, v%d" % (TA + 4 + t, TA + t))
    J("s_and_b32 s%d, s%d, 1" % (sT1, sW)); J("s_lshl_b32 s%d, s%d, 3" % (sT1, sT1))
    J("v_lshlrev_b32 v14, 9, v13"); J("v_add_u32 v14, s%d, v14" % sM0)
    for j in range(4):
        J("v_add_u32 v15, %d, v13" % (2 * j)); J("v_add_u32 v15, s%d, v15" % sT1); J("v_xor_b32 v15, v15, v12"); J("v_lshl_add_u32 v%d, v15, 4, v14" % (KD + j))
    J("s_lshl_b32 s%d, s%d, 1" % (sT1, sT1)); J("s_lshr_b32 s%d, s%d, 1" % (sK, sW)); J("s_lshl_b32 s%d, s%d, 2" % (sK, sK)); J("s_add_u32 s%d, s%d, s%d" % (sT1, sT1, sK))
    J("v_add_u32 v7, s%d, v13" % sT1); J("v_lshlrev_b32 v7, 13, v7")
    for j in range(4):
        J("v_add_u32 v15, %d, v13" % (2 * j)); J("v_lshlrev_b32 v15, 1, v15"); J("v_xor_b32 v15, v15, v12")
        J("v_lshl_add_u32 v%d, v15, 4, v14" % (VD + j))
        J("v_lshl_add_u32 v15, v15, 4, v7"); J("v_add_u32 v%d, %d, v15" % (QD + j, (8 * (j >> 1) + 2 * (j & 1)) * 8192 - 1024 * j))
    J("s_mov_b32 s%d, 0" % sK); J("s_mov_b32 s%d, 0" % sV)
    J("v_lshrrev_b32 v14, 3, v10"); J("v_lshlrev_b32 v14, 10, v14"); J("v_and_b32 v15, 7, v10"); J("v_lshl_add_u32 v14, v15, 7, v14"); J("v_add_u32 v14, s%d, v14" % sM0)
    J("v_bfe_u32 v15, v10, 1, 2"); J("v_lshlrev_b32 v15, 1, v15"); J("v_xor_b32 v15, v15, v11")
    J("v_lshl_add_u32 v2, v15, 4, v14"); J("v_xor_b32 v3, 64, v2")
    for k in range(2): J("v_add_u32 v%d, 0x10000, v%d" % (4 + k, 2 + k)); J("v_add_u32 v%d, 0x20000, v%d" % (6 + k, 2 + k))
    J("s_mul_i32 s%d, s%d, 14" % (sT1, sT0)); J("v_add_u32 v14, s%d, v9" % sT1); J("v_mov_b32 v13, 0x7f000000"); J("v_cmp_gt_u32 vcc, 14, v9")
    J("v_lshlrev_b32 v42, 7, v14"); J("v_cndmask_b32 v42, v13, v42, vcc")
    J("s_and_b32 s%d, s%d, 1" % (sT1, sW)); J("s_lshl_b32 s%d, s%d, 13" % (sT1, sT1)); J("v_lshlrev_b32 v43, 7, v9"); J("v_add_u32 v43, s%d, v43" % sT1)
    J("s_cmp_lt_u32 s%d, 2\n    s_cselect_b32 s12, s%d, s%d\n    s_cselect_b32 s13, s%d, s%d" % (sW, SRD["K"], SRD["V"], SRD["K"] + 1, SRD["V"] + 1)); J("s_mov_b32 s14, 0x100000"); J("s_mov_b32 s15, 0x20000")
    J("s_and_b32 s16, s%d, 3" % sQB); J("s_lshl_b32 s16, s16, 14"); J("s_lshr_b32 s17, s%d, 2" % sQB)
    J("s_sub_u32 s17, 4, s17"); J("s_lshl_b32 s17, s17, 30"); J("s_add_u32 s16, s16, s17")
    def drain(n):
        for _ in range(min(n, len(Q_))):
            for x in Q_.pop(0).split("\n"): I(x.strip())
    drain(NOK)
    I("s_waitcnt lgkmcnt(0)")
    mk("X", 4, 2048 * 896, f=I)
    XS = [0x4000, 0x8000, 0xc000, 0x14000, 0x18000, 0x1c000, 0x20000]
    per = (len(Q_) + 27) // 28
    for j in range(7):
        I("s_add_u32 m0, s%d, %d" % (sM0, XS[j]))
        if j: I("s_add_u32 s%d, s%d, 128" % (sSO, sSO))
        else: I("s_nop 0")
        for i in range(4):
            P.vmem("buffer_load_dwordx4 v%d, %s, s%d offen offset:%d lds" % (TD + i, srd("X"), sSO, 1024 * i), ("x", j))
            drain(per)
    drain(10 ** 6)
    NV = 17 + 7 + 4 * (7 - NB)
    TL = 17
    tiles = []
    for t in range(7): tiles.append([("W1", WD, (sW13, t * 64 * 3584)), ("W3", WD, (sW13, t * 64 * 3584))])
    for j in range(7): tiles.append([("WQ", QD, (sWQ, 64 * j * 8192)), ("WQ", QD, (sWQ, (64 * j + 32) * 8192))])
    tiles.append([("K", KD, "inc"), None])
    for n in range(NV): tiles.append([("K", KD, "inc") if n < NV - 1 else None, ("V", VD, "inc")])
    for j in range(7): tiles.append([("WO", TD, (sWO, 128 * j)), ("WO", TD, (sWO, 128 * 896 + 128 * j))])
    NT = len(tiles); AT = 15
    def dma_ops(tau):
        groups = []
        for hf, half in enumerate(tiles[tau]):
            if half is None: continue
            sn, vb, so = half
            m0 = "s_add_u32 m0, s%d, %d" % (sM0, 65536 * hf + 16384 * (tau % 4))
            if so == "inc": sreg = sK if sn == "K" else sV; pre = [m0]; post = ["s_add_u32 s%d, s%d, 16384" % (sreg, sreg)]
            else: sreg = sSO + hf; pre = [m0, "s_add_u32 s%d, s%d, %d" % (sreg, so[0], so[1])]; post = []
            for j in range(4):
                groups.append((pre if j == 0 else [], "buffer_load_dwordx4 v%d, %s, s%d offen offset:%d lds" % (vb + j, srd(sn), sreg, 1024 * j), post if j == 3 else []))
        return groups
    def f2_dma_ops(js):
        return [(["s_add_u32 m0, s%d, 0x20000" % sM0] if j == js[0] else [], "buffer_load_dwordx4 v%d, %s, s%d offen offset:%d lds" % (TD + j, srd("W2"), sW2, 1024 * j),
                 ["s_add_u32 s%d, s%d, 128" % (sW2, sW2)] if j == 3 else []) for j in js]
    def issue_group(g, tag):
        pre, d, post = g
        for x in pre: I(x)
        if pre: I("s_nop 0")
        P.vmem(d, tag)
        for x in post: I(x)
    t0 = dma_ops(0)
    def xread(s):
        j = s >> 1; base = XS[j]
        P.wait(vm=[("x", j)])
        for G in range(2):
            P.ds("ds_read_b128 %s, v%d offset:%d" % (r4(XC(s, G)), 2 + (s & 1) + 2 * (base >> 16), (base & 0xffff) + 2048 * G), ("xf", s))
    for g in t0[:4]: issue_group(g, ("T", 0))
    for s in range(4): xread(s)
    for g in t0[4:]: issue_group(g, ("T", 0))
    for s in range(14):
        if s + 4 < 14: xread(s + 4)
        P.wait(lg=[("xf", s)])
        for G in range(2): I("%s %s, %s, %s, %s" % (MF, r4(ST + 4 * G), r4(ST + 16), r4(XC(s, G)), "0" if s == 0 else r4(ST + 4 * G)))
    def xlane(op, reg, tmp):
        ops = []
        for sw in ("v_permlane32_swap_b32", "v_permlane16_swap_b32"):
            ops += [("V", "v_mov_b32 v%d, v%d" % (tmp, reg)), ("T", "%s v%d, v%d" % (sw, reg, tmp)), ("V", "%s v%d, v%d, v%d" % (op, reg, reg, tmp))]
        return ops
    def center_ops(s):
        ops = []
        regs = [(G, XC(s, G) + r) for G in range(2) for r in range(4)]
        for i, (G, x) in enumerate(regs):
            lo = TMP + 2 * (i % 3); hi = lo + 1
            ops += [("V", "v_lshlrev_b32 v%d, 16, v%d" % (lo, x)), ("V", "v_and_b32 v%d, s%d, v%d" % (hi, sMASK, x)),
                    ("V", "v_sub_f32 v%d, v%d, v%d" % (lo, lo, MB + G)), ("V", "v_sub_f32 v%d, v%d, v%d" % (hi, hi, MB + G)),
                    ("V", "v_cvt_pk_bf16_f32 v%d, v%d, v%d" % (x, lo, hi))]
        return ops
    pre_ops = []
    for G in range(2):
        a = TMP + G
        pre_ops += ["v_mul_f32 v%d, 0x%x, v%d" % (a, f2u(1.0 / 448), ST + 4 * G), "v_cvt_pk_bf16_f32 v%d, v%d, v%d" % (MB + G, a, a), "v_lshlrev_b32 v%d, 16, v%d" % (MB + G, MB + G),
                    "v_sub_f32 v%d, v%d, v%d" % (DM + G, a, MB + G)]
    pre_ops += [t for k, t in center_ops(0)]
    for i, g in enumerate(dma_ops(1)):
        issue_group(g, ("T", 1))
        for x in pre_ops[6 * i:6 * i + 6]: I(x)
    P.wait(vm=[("T", 0)])
    I("s_barrier")

    fr = []; sb = []
    def tr(areg, off, d2): return [("tr0", areg, off), ("tr1", areg, off + d2)]
    def add(reads, mf, ring, **kw): fr.append(dict(reads=reads, mf=mf, ring=ring, **kw))
    mark = {}
    for tau in range(7):
        sb.append(2 * len(fr))
        for ks in range(2):
            s = 2 * tau + ks
            mark[("F1", s)] = 2 * len(fr)
            for t in range(7):
                for kind in range(2):
                    ms = []
                    for G in range(2):
                        a = r4(GU + ((kind * 7 + t) * 2 + G) * 4, "a")
                        ms.append((a, r4(XC(s, G)), "0" if s == 0 else a, None))
                    add(tr(WA + 7 * kind + t, 8192 * ks + 16384 * (tau % 4), 4096), ms, "v")
                if t == 3:
                    add([], [(r4(ST + 8 + 4 * G), r4(XC(s, G)), "0" if s == 0 else r4(ST + 8 + 4 * G), r4(XC(s, G))) for G in range(2)], None)
    for j in range(7):
        tau = 7 + j; sb.append(2 * len(fr))
        order = [(hf, t) for hf in range(2) for t in range(16)] if j < 6 else [(hf, t) for t in range(16) for hf in range(2)]
        for hf, t in order:
            s = 2 * j + hf
            ms = []
            for G in range(2):
                a = r4(O + 8 * t + 4 * G, "a")
                ms.append((a, r4(XC(s, G)), "0" if s == 0 else a, None))
            add(tr((VA if hf else VAL) + (t & 7), 256 * (t >> 3) + 16384 * (tau % 4), 8192), ms, "v")
    outs = []
    def f2_part(tts):
        for tt in tts:
            acc = FA[tt & 1]
            for k in range(4):
                ms = [(r4(acc + 4 * G), r4(H(k, G)), "0" if k == 0 else r4(acc + 4 * G), None) for G in range(2)]
                add(tr(UA + tt, 4096 * k, 2048), ms, "f")
            outs.append(("F", 2 * len(fr), acc, None))
    def qk_block(n, tau):
        order = [(kt, s) for kt in range(2) for s in range(8)] if n > 0 else [(kt, s) for s in range(8) for kt in range(2)]
        for kt, s in order:
            ms = []
            for G in range(2):
                d = r4(S[n % 2] + 8 * kt + 4 * G)
                c = ("0" if n <= 1 else r4(NEGM + 4 * G)) if s == 0 else d
                ms.append((d, r4(QF(G, s)), c, None))
            if n == 0 and kt == 0: mark[("QK0", s)] = 2 * len(fr)
            add([("b128", KA + (s & 3), 256 * (s >> 2) + 8192 * kt + 16384 * (tau % 4))], ms, "a")
    def pv_block(n, tau):
        for t in range(16):
            ms = []
            for G in range(2):
                o = r4(O + 8 * t + 4 * G, "a")
                ms.append((o, r4(PK[n % 2] + 4 * G), "0" if n == 0 else o, None))
            add(tr(VA + (t & 7), 256 * (t >> 3) + 16384 * (tau % 4), 8192), ms, "a")
    sb.append(2 * len(fr)); qk_block(0, 14)
    pvs = {}; fsum_at = {}
    for n in range(NV):
        tau = AT + n; sb.append(2 * len(fr))
        if n < NV - 1: qk_block(n + 1, tau)
        if n in (1, 5): f2_part((0, 1))
        if n in (2, 6): f2_part((2, 3))
        if n >= NV - 11:
            for jj in range(3):
                j = 3 * (n - NV + 11) + jj; u = j & 1; hh = j >> 1
                if j >= 32: break
                fsum_at[j] = 2 * len(fr)
                add([], [(r4(FST + 8 * u + 4 * hi), r4(128 + 4 * (j % 16), "a"), "0" if hh == 0 else r4(FST + 8 * u + 4 * hi), r4(SELT + (0 if hi else 2))) for hi in range(2)], None, vmwait=("fl", j))
        pvs[n] = 2 * len(fr)
        pv_block(n, tau)
    OT = AT + NV
    for j in range(7):
        tau = OT + j; sb.append(2 * len(fr))
        order = [(tt, k) for k in range(8) for tt in range(4)] if j == 0 else [(tt, k) for tt in range(4) for k in range(8)]
        for tt, k in order:
            acc = 192 + 32 * (j & 1) + 8 * tt
            ms = [(r4(acc + 4 * G), r4(OF(k, G)), "0" if k == 0 else r4(acc + 4 * G), None) for G in range(2)]
            if j == 0 and tt == 0: mark[("O", k)] = 2 * len(fr)
            add(tr(TA + 4 * (k >> 2) + tt, 4096 * (k & 3) + 16384 * (tau % 4), 2048), ms, "a")
            if k == 7: outs.append(("S", 2 * len(fr), acc, j))
    N = 2 * len(fr); sb.append(N)
    END = N + 40
    G_ = Gaps2(END)
    for i in range(len(fr)): G_.put(2 * i, "S", ("waitslot", i), force=True)
    barpos = {}
    for tau in range(NT):
        g = sb[tau + 1] - bar_off; barpos[tau] = g
        assert g % 2 == 1
        G_.put(g, "S", ("bar", tau), force=True); G_.put(g, "S", ("nil",), force=True)
    holes = set(); estart = {}
    for n in range(1, NV - 1):
        estart[n] = pvs[n - 1] + e0
        for e in range(16): holes.add(estart[n] + estep * e)
    cnt = {"v": 0, "a": 0, "f": 0}
    rl = []
    for i, f in enumerate(fr):
        if not f["reads"]: continue
        if f["ring"] == "v": r = FRV + 4 * (cnt["v"] % 8); p = "v"; lead = LW
        elif f["ring"] == "f": r = FRF + 4 * (cnt["f"] % 16); p = "a"; lead = L
        else: r = FRA + 4 * (cnt["a"] % 16); p = "a"; lead = L
        cnt[f["ring"]] += 1
        f["fr"] = r4(r, p)
        for q, (k, a, off) in enumerate(f["reads"]):
            assert off < 65536
            if k == "b128": txt = "ds_read_b128 %s[%d:%d], v%d offset:%d" % (p, r, r + 3, a, off)
            elif k == "tr0": txt = "ds_read_b64_tr_b16 %s[%d:%d], v%d offset:%d" % (p, r, r + 1, a, off)
            else: txt = "ds_read_b64_tr_b16 %s[%d:%d], v%d offset:%d" % (p, r + 2, r + 3, a, off)
            rl.append([2 * i - lead, txt, i])
    nxt = 10 ** 9
    for x in reversed(rl):
        g = min(x[0], nxt - 1)
        while g in holes: g -= 1
        x[0] = g; nxt = g
    lastuse = {}
    for g, txt, i in rl:
        g = max(g, 0)
        key = fr[i]["fr"]
        if key in lastuse and lastuse[key] != i: assert g > 2 * lastuse[key] + 1, ("ring WAR", i, g, lastuse[key])
        lastuse[key] = i
        tau = max(t for t in range(NT) if sb[t] <= 2 * i)
        if tau > 0: assert g > barpos[tau - 1], ("read before barrier", i, g, tau, barpos[tau - 1])
        G_.put(g, "D", ("ds", txt, ("f", i)), force=True)
    def place_softmax(n, e0_, estep_, limit, dense=False):
        s = S[n % 2]; pk = PK[n % 2]; lo = LB[n % 2]; ln = LB[(n + 1) % 2]
        first = [True, True]; gl = 0; pend = []
        for e, (kt, G, r) in enumerate([(kt, G, r) for kt in range(2) for G in range(2) for r in range(4)]):
            src = s + 8 * kt + 4 * G + r; p = PT + e
            g = G_.put(e0_ + int(estep_ * e), "T", ("ins", "v_exp_f32 v%d, v%d" % (p, src)), force=True)
            pend.append((g + 1, "v_add_f32 v%d, v%d, v%d" % (ln + G, (lo if first[G] else ln) + G, p))); first[G] = False
            if r % 2 == 1: pend.append((g + 1, "v_cvt_pk_bf16_f32 v%d, v%d, v%d" % (pk + 4 * G + 2 * kt + r // 2, p - 1, p)))
        pend.append((0, "v_add_f32 v%d, v%d, v%d" % (TC, ln, ln + 1))); pend.append((0, "v_cmp_nge_f32 vcc, s%d, v%d" % (sTH, TC)))
        for k, (g, t) in enumerate(pend):
            st = max(g, gl)
            gl = G_.put(st, "V", ("ins", t), limit=min(st + (1 if dense else 4), limit - 1))
        G_.put(gl + 1, "S", ("chk", n), limit=limit)
    b0 = sb[AT]
    ops = []
    for G in range(2):
        e = [S[0] + 8 * kt + 4 * G + r for kt in range(2) for r in range(4)]
        m = MX + G
        ops += [("V", "v_max3_f32 v%d, v%d, v%d, v%d" % (m, e[0], e[1], e[2])), ("V", "v_max3_f32 v%d, v%d, v%d, v%d" % (m, m, e[3], e[4])),
                ("V", "v_max3_f32 v%d, v%d, v%d, v%d" % (m, m, e[5], e[6])), ("V", "v_max_f32 v%d, v%d, v%d" % (m, m, e[7]))]
        ops += xlane("v_max_f32", m, T0)
        ops += [("V", "v_sub_f32 v%d, v%d, v%d" % (x, x, m)) for x in e]
        ops += [("V", "v_mov_b32 v%d, 0" % (LB[0] + G))]
    g_init = G_.chain(ops, b0 + 4, b0 + 15)
    for n in range(NV):
        bn = sb[AT + n]
        if n == 0: place_softmax(0, g_init + 1, 0.75, pvs[0] - 1, dense=True)
        elif n == NV - 1: place_softmax(n, pvs[n - 1] + 7, 1.55, pvs[n] - 1, dense=True)
        else: place_softmax(n, estart[n], estep, bn + 31)
    def fix_ops(kt): return [("V", "v_sub_f32 v%d, v%d, v%d" % (S[1] + 8 * kt + 4 * G + r, S[1] + 8 * kt + 4 * G + r, MX + G)) for G in range(2) for r in range(4)]
    G_.chain(fix_ops(0), b0 + 30, estart[1] - 1)
    G_.chain(fix_ops(1) + [("V", "v_sub_f32 v%d, 0, v%d" % (NEGM + 4 * G + r, MX + G)) for G in range(2) for r in range(4)], estart[1], min(estart[1] + 8 * estep + 6, b0 + 62))
    def place_dma(groups, g, dstep, tag):
        for pre, d, post in groups:
            g0 = g
            for x in pre: g0 = G_.put(g0 - 1, "S", ("ins", x), limit=g0 + 1) + 1
            g0 = G_.put(max(g, g0), "M", ("vm", d, tag), limit=max(g, g0) + 2)
            for x in post: G_.put(g0 + 1, "S", ("ins", x), limit=g0 + 2)
            g = max(g + dstep, g0 + 3)
        return g, g0
    place_dma(dma_ops(2), 3, 4, ("T", 2))
    dmaend = {}
    lead_pf = lambda d, v: ([], "buffer_load_dword v%d, v%d, %s, s%d offen" % (d, v, srd("PF"), sPFO), ["s_add_u32 s%d, s%d, 0x40010000" % (sPFO, sPFO)])
    for tau in range(NT - 3):
        nn = tau - AT
        groups = dma_ops(tau + 3)
        pre_g = []
        if nn in (3, 7): pre_g = f2_dma_ops([0, 1, 2, 3])
        if nn == -4: groups = groups + f2_dma_ops([0, 1, 2, 3])
        extra = []
        if tau in (3, 7, 11): extra = [lead_pf(44, 43)]
        if nn in (1, 5, 9, 13) or (nn >= TL and nn < NV - 7 and (nn - TL) % 4 == 0): extra = [lead_pf(PFD, PFV)]
        if tau == 8: extra = [([], "buffer_load_dword v44, v42, %s, s%d offen" % (srd("W2"), sW2), [])]
        if tau == 9: extra = [([], "buffer_store_dword v46, v47, %s, s%d offen sc1" % (srd("WS"), sFLW), []), ([], "buffer_store_dword v46, v47, %s, s93 offen offset:64 sc1" % srd("WS"), [])]
        if nn in (10, 14): extra = [([], "buffer_atomic_add v3, v4, %s, s%d offen offset:4" % (srd("DBG"), sAT), ["s_sub_u32 s%d, s%d, 4096" % (sAT, sAT)])]
        if nn in (NV - 10, NV - 9): extra = [(["s_add_u32 s17, s%d, %d" % (sWO, (nn - NV + 10) * 896 * 128)], "buffer_load_dword v%d, v%d, %s, s17 offen" % (PFD, PFW, srd("WO")), [])]
        g = barpos[tau] + 3; hi = barpos[tau + 1] - 1
        dstep = min(dma_step if nn < TL else 5, (hi - g) // (len(groups) + len(extra) + len(pre_g)))
        if pre_g: g, g0 = place_dma(pre_g, g, dstep, ("T", tau + 2))
        g, g0 = place_dma(groups, g, dstep, ("T", tau + 3))
        if extra: g, g0 = place_dma(extra, g, dstep, ("T", tau + 4))
        assert g0 <= barpos[tau + 1] + 1, (tau, g0, barpos[tau + 1])
        dmaend[tau] = g0
    for s in range(1, 14):
        G_.chain(center_ops(s), mark[("F1", s - 1)] + 1, mark[("F1", s)] - 1)
    q0 = sb[7]; q1 = sb[14]
    ops = []
    for G in range(2):
        a = CI + G; t = TMP + G; g = ST + 8 + 4 * G
        ops += [("V", "v_cndmask_b32 v%d, 0, v%d, s[%d:%d]" % (a, g, sDG, sDG + 1))]
        ops += [("V", "v_cndmask_b32 v%d, v%d, v%d, s[%d:%d]" % (a, a, g + r, sDG + 2 * r, sDG + 2 * r + 1)) for r in range(1, 4)]
        ops += xlane("v_add_f32", a, t)
        ops += [("V", "v_mul_f32 v%d, v%d, v%d" % (t, DM + G, DM + G)), ("V", "v_mul_f32 v%d, 0x%x, v%d" % (a, f2u(1.0 / 448), a)), ("V", "v_sub_f32 v%d, v%d, v%d" % (a, a, t)),
                ("V", "v_max_f32 v%d, 0, v%d" % (a, a)),
                ("V", "v_cvt_pk_bf16_f32 v%d, v%d, v%d" % (a, a, a)), ("V", "v_lshlrev_b32 v%d, 16, v%d" % (a, a)),
                ("V", "v_add_f32 v%d, 0x%x, v%d" % (a, f2u(1e-5), a)), ("V", "v_cvt_pk_bf16_f32 v%d, v%d, v%d" % (a, a, a)), ("V", "v_lshlrev_b32 v%d, 16, v%d" % (a, a)),
                ("T", "v_sqrt_f32 v%d, v%d" % (a, a)), ("V", "v_cvt_pk_bf16_f32 v%d, v%d, v%d" % (a, a, a)), ("V", "v_lshlrev_b32 v%d, 16, v%d" % (a, a)),
                ("T", "v_rcp_f32 v%d, v%d" % (t, a)), ("V", "v_mul_f32 v%d, v%d, v%d" % (a, a, a)),
                ("V", "v_mul_f32 v%d, 0x%x, v%d" % (RSQ + G, f2u(LOG2E / 16), t)), ("V", "v_mul_f32 v%d, 0x%x, v%d" % (RSN + G, f2u(-LOG2E), t))]
    gv = G_.chain(ops, mark[("F1", 13)] + 24, q0 + 32)
    els = [(t, G, r) for t in range(7) for G in range(2) for r in range(4)]
    def stage(i, st):
        t, G, r = els[i]
        b = WA + 3 * (i % 4); hv = WA + 12 + (i % 2)
        ga = GU + ((0 * 7 + t) * 2 + G) * 4 + r; ua = GU + ((7 + t) * 2 + G) * 4 + r
        if st == 0: return [("V", "v_accvgpr_read_b32 v%d, a%d" % (b, ga)), ("V", "v_accvgpr_read_b32 v%d, a%d" % (b + 1, ua)), ("V", "v_mul_f32 v%d, v%d, v%d" % (b + 2, b, RSN + G)), ("T", "v_exp_f32 v%d, v%d" % (b + 2, b + 2))]
        if st == 1: return [("V", "v_mul_f32 v%d, v%d, v%d" % (b, b, b + 1)), ("V", "v_fma_f32 v%d, v%d, v%d, v%d" % (b + 2, b + 2, CI + G, CI + G)), ("T", "v_rcp_f32 v%d, v%d" % (b + 2, b + 2))]
        o = [("V", "v_mul_f32 v%d, v%d, v%d" % (hv, b, b + 2))]
        if r % 2 == 1: o.append(("V", "v_cvt_pk_bf16_f32 v%d, v%d, v%d" % (H(t // 2, G) + 2 * (t & 1) + r // 2, WA + 12, WA + 13)))
        return o
    ops = []
    for i in range(len(els) + 2):
        if i < len(els): ops += stage(i, 0)
        if 0 <= i - 1 < len(els): ops += stage(i - 1, 1)
        if 0 <= i - 2 < len(els): ops += stage(i - 2, 2)
    for G in range(2): ops += [("V", "v_mov_b32 v%d, 0" % (H(3, G) + 2)), ("V", "v_mov_b32 v%d, 0" % (H(3, G) + 3))]
    gsw = G_.chain(ops, max(gv + 1, q0 + 34), sb[13] + 10, window=1)
    gprev = gsw + 1
    for k in range(8):
        ops = []
        for G in range(2):
            q = QF(G, k)
            dst = (16 + 4 * k) if q < 128 + 16 else q
            for half in range(2):
                a = O + 8 * (2 * k + half) + 4 * G
                tb = WA + 4 * ((2 * (2 * k + G) + half) % 3)
                ops += [("V", "v_accvgpr_read_b32 v%d, a%d" % (tb + r, a + r)) for r in range(4)]
                ops += [("V", "v_mul_f32 v%d, v%d, v%d" % (tb + r, tb + r, RSQ + G)) for r in range(4)]
                ops += [("V", "v_cvt_pk_bf16_f32 v%d, v%d, v%d" % (dst + 2 * half + p, tb + 2 * p, tb + 2 * p + 1)) for p in range(2)]
            ops += [("T", "v_permlane32_swap_b32 v%d, v%d" % (dst + p, dst + 2 + p)) for p in range(2)]
            ops += [("T", "v_permlane16_swap_b32 v%d, v%d" % (dst + p, dst + 2 + p)) for p in range(2)]
        st = max(gprev, sb[13] + 8 * k + 8 + 4)
        en = max(st, min(mark[("QK0", k)] - 1, (sb[13] + 12 + 13 * (k + 1)) if k < 4 else 10 ** 9, q1 - 1 if k < 4 else 10 ** 9))
        gprev = G_.chain(ops, st, en, window=1)
    for i in range(16): G_.put(q1, "V", ("ins", "v_mov_b32 v%d, v%d" % (128 + i, 16 + i)), force=True)
    for t in range(4): G_.put(q1 + 1 + t, "V", ("ins", "v_add_u32 v%d, 0x20000, v%d" % (UA + t, TA + t)), force=True)
    G_.put(q1 + 6, "V", ("ins", "v_mov_b32 v%d, v43" % PFV), force=True); G_.put(q1 + 7, "V", ("ins", "v_mov_b32 v%d, v42" % PFW), force=True)
    G_.put(q1 + 8, "V", ("ins", "v_mov_b32 v4, v45"), force=True); G_.put(q1 + 9, "V", ("ins", "v_mov_b32 v%d, v47" % AVP), force=True)
    G_.put(b0 + 1, "V", ("ins", "v_mov_b32 v3, 1"), force=True)
    G_.put(b0 + 2, "V", ("ins", "v_lshrrev_b32 v2, 24, v4"), force=True); G_.put(b0 + 3, "V", ("ins", "v_and_b32 v2, 0x40, v2"), force=True)
    ta = AT + TL
    G_.chain([("V", "v_mov_b32 v6, 0"), ("V", "v_mov_b32 v5, 0x23000"), ("V", "v_add_u32 v7, v2, v5"),
              ("M", ("vm", "buffer_load_dword v6, v4, %s, s%d offen offset:4 sc1" % (srd("DBG"), sCW), "fpoll"))], sb[ta] + 1, sb[ta] + 10)
    G_.chain([("S", ("waitvm", "fpoll")), ("D", ("ds", "ds_write_b32 v7, v6", "fw"))], barpos[ta + 1] - 8, barpos[ta + 1] - 4)
    G_.put(barpos[ta + 1] - 1, "S", ("waitlg", "fw"), force=True)
    ops = [("D", ("ds", "ds_read_b32 v6, v5", "fr")), ("S", "s_mul_i32 s77, s%d, 112" % sQB), ("S", "s_mul_i32 s%d, s%d, 7" % (sT1, sH)),
           ("S", "s_add_u32 s77, s77, s%d" % sT1), ("S", "s_add_u32 s77, s77, s%d" % sW), ("S", "s_lshl_b32 s18, s77, 14"), ("S", "s_add_u32 s18, s18, 0x%x" % WS_F),
           ("S", "s_lshl_b32 s90, s77, 10"), ("S", "s_add_u32 s90, s90, 0x%x" % WS_G),
           ("S", ("waitlg", "fr")), ("V", "v_readfirstlane_b32 s%d, v6" % sFC)]
    if test_nof: ops += [("S", "s_bitcmp1_b32 %d, s%d\n    s_cselect_b32 s%d, 0, s%d" % (test_nof, sH, sFC, sFC))]
    ops += [("S", "s_cmp_eq_u32 s%d, 16\n    s_cselect_b32 s18, s18, 0x%x\n    s_cselect_b32 s90, s90, 0x%x\n    s_cselect_b32 s92, s%d, 0x%x" % (sFC, BIG, BIG, sFLW, BIG)),
           ("S", "s_add_u32 s19, s18, 0x10000"), ("S", "s_add_u32 s91, s90, 0x1000"), ("S", "s_cmp_eq_u32 s%d, 3\n    s_cselect_b32 s19, 0x%x, s19\n    s_cselect_b32 s91, 0x%x, s91" % (sW, BIG, BIG))]
    g = G_.chain(ops, barpos[ta + 1] + 1, barpos[ta + 1] + 20)
    j = 0; tau = ta + 1
    while j < 32:
        gq = max(g + 1, dmaend[tau] + 2)
        for _ in range(3):
            if j >= 32: break
            u = j & 1; hh = j >> 1
            if j >= 16 and gq <= fsum_at[j - 16] + 2: break
            gq = G_.put(gq, "M", ("vm", "buffer_load_dwordx4 %s, v%d, %s, s%d offen offset:%d sc1" % (r4(128 + 4 * (j % 16), "a"), VL16, srd("WS"), 18 + u, 1024 * (hh & 3)), ("fl", j)), limit=gq + 2)
            assert gq < fsum_at[j] - 100 and gq <= barpos[tau + 1] + 2, (j, gq, fsum_at[j], barpos[tau + 1])
            if hh & 3 == 3: G_.put(gq + 1, "S", ("ins", "s_add_u32 s%d, s%d, 4096" % (18 + u, 18 + u)), limit=gq + 2)
            gq += 3; j += 1
        tau += 1
    ops = ["v_lshrrev_b32 v9, 4, v%d" % VL16, "v_and_b32 v10, 15, v9", "v_lshrrev_b32 v11, 4, v9", "v_lshrrev_b32 v12, 2, v10", "v_cmp_eq_u32 s[4:5], v12, v11", "v_and_b32 v13, 1, v10", "v_lshlrev_b32 v13, 4, v13",
           "v_mov_b32 v14, 0x3f80", "v_lshlrev_b32 v14, v13, v14", "v_cndmask_b32 v14, 0, v14, s[4:5]", "v_and_b32 v13, 2, v10", "v_cmp_eq_u32 s[4:5], 0, v13"]
    ops += ["v_mov_b32 v%d, 0" % (SELT + r) for r in (0, 1, 4, 5)] + ["v_cndmask_b32 v%d, 0, v14, s[4:5]" % (SELT + 2), "v_cndmask_b32 v%d, v14, 0, s[4:5]" % (SELT + 3)]
    G_.chain([("V", x) for x in ops], sb[ta] + 24, sb[ta + 2] + 20)
    bl = pvs[NV - 1]
    ops = []
    for u in range(2):
        ops += [("V", "v_cvt_pk_bf16_f32 v%d, v%d, v%d" % (16 + 4 * u + p, FST + 8 * u + 2 * p, FST + 8 * u + 2 * p + 1)) for p in range(4)]
        ops += [("M", ("vm", "buffer_store_dwordx4 %s, v%d, %s, s%d offen sc1" % (r4(16 + 4 * u), VL16, srd("WS"), 90 + u), ("st", -1)))]
    ops += [("V", "v_mov_b32 v%d, v%d" % (48 + r, SELT + r)) for r in range(6)] + [("V", "v_mov_b32 v%d, v%d" % (AVW, AVP))]
    G_.chain(ops, bl + 6, sb[OT] - 1)
    lf = LB[NV % 2]
    ops = []
    for G in range(2):
        ops += xlane("v_add_f32", lf + G, T0) + [("T", "v_rcp_f32 v%d, v%d" % (RL + G, lf + G))]
    gprev = G_.chain(ops, bl + 1, bl + 10)
    for k in range(8):
        ops = []
        for G in range(2):
            for half in range(2):
                a = O + 8 * (2 * k + half) + 4 * G
                tb = PT + 4 * ((2 * G + half) % 4)
                ops += [("V", "v_accvgpr_read_b32 v%d, a%d" % (tb + r, a + r)) for r in range(4)]
                ops += [("V", "v_cvt_pk_bf16_f32 v%d, v%d, v%d" % (OF(k, G) + 2 * half + p, tb + 2 * p, tb + 2 * p + 1)) for p in range(2)]
        st = max(gprev, bl + 4 * k + 4 + 5)
        en = max(st, min(mark[("O", k)] - 1, bl + 10 + 10 * (k + 1)))
        gprev = G_.chain(ops, st, en, window=1)
    gout = 0; lastst = {}
    for idx, (kind, g, acc, ch) in enumerate(outs):
        tb = TMP + 4 * (idx % 2)
        ops = []
        if kind == "S":
            ops += [("V", "v_mul_f32 v%d, v%d, v%d" % (acc + 4 * G + r, acc + 4 * G + r, RL + G)) for G in range(2) for r in range(4)]
        ops += [("V", "v_cvt_pk_bf16_f32 v%d, v%d, v%d" % (tb + 2 * G + p, acc + 4 * G + 2 * p, acc + 4 * G + 2 * p + 1)) for G in range(2) for p in range(2)]
        so = sFO if kind == "F" else sSOe
        ops += [("M", ("vm", "buffer_store_dwordx4 %s, v%d, %s, s%d offen sc1" % (r4(tb), VL16, srd("WS"), so), ("st", ch))), ("S", "s_add_u32 s%d, s%d, 16384" % (so, so))]
        st = max(g + 5, gout + 1)
        gout = G_.chain(ops, st, min(st + (7 if kind == "F" else 13), END))
        lastst[ch] = gout
    pub = {OT + 0: 0}
    for c in range(6):
        g = max(lastst[c] + pub_lag, barpos[OT + 0] + 2)
        if g > N + 10: continue
        g = G_.put(g - 1, "V", ("ins", "v_mov_b32 v3, %d" % (c + 1)), limit=g + 2)
        g = G_.put(g + 1, "S", ("waitvm", ("st", c)), limit=g + 3)
        G_.put(g, "M", ("vm", "buffer_store_dword v3, v%d, %s, s92 offen sc1" % (AVW, srd("WS")), "flg"), force=True)
    NR = 28 // NU
    XR = 96; XV = 22; PV = 24; THR = 25; V4K = 26; TK = 2; U7 = 55
    sR, sBS, sXO = 77, 80, 9
    o5 = sb[OT + 5]; o6 = sb[OT + 6]
    ops = [("V", "v_mov_b32 v%d, 1" % TK), ("S", "s_cmp_eq_u32 s%d, 16\n    s_cselect_b32 s10, s93, 0x%x" % (sFC, BIG)),
           ("M", ("vm", "buffer_atomic_add v%d, v%d, %s, s10 offen offset:64 sc0" % (TK, AVW, srd("WS")), "rank")),
           ("V", "v_lshrrev_b32 v6, 4, v%d" % VL16), ("V", "v_and_b32 v%d, 15, v6" % PV), ("V", "v_lshrrev_b32 v6, 4, v6"),
           ("V", "v_mul_u32_u24 v%d, 896, v%d" % (XV, PV)), ("V", "v_lshl_add_u32 v%d, v6, 3, v%d" % (XV, XV)), ("V", "v_add_u32 v%d, 14336, v%d" % (XV + 1, XV)),
           ("V", "v_lshlrev_b32 v%d, 2, v%d" % (PV, PV)), ("V", "v_and_b32 v6, %d, v6" % (NU - 1)), ("V", "v_mul_u32_u24 v%d, %d, v6" % (U7, NR))]
    ops += [("V", "v_add_u32 v%d, %d, v%d" % (V4K + j, 4096 * j, VL16)) for j in range(4)]
    G_.chain(ops, o5 + rank_at, o5 + rank_at + 40)
    loops = [(sb[AT + 1], sb[AT + 5], sb[AT + 9], "A", range(5, 9)), (sb[AT + 9], sb[AT + 13], sb[AT + 17], "B", range(13, 17))]
    rare_sites = []
    def stamp(k):
        I("s_memtime s[94:95]"); I("s_waitcnt lgkmcnt(0)")
        I("s_sub_u32 s94, s94, s98"); I("v_writelane_b32 v0, s94, %d" % k)
    def rstamp(k):
        I("s_memrealtime s[94:95]"); I("s_waitcnt lgkmcnt(0)"); I("v_writelane_b32 v0, s94, %d" % k)
    mk_ = {}
    for i in range(END + 1):
        for (ls, le, ce, nm, drop) in loops:
            if i == le: mk_[nm + "1"] = len(P.lines)
            if i == ce:
                m0_, m1_ = mk_[nm + "0"], mk_[nm + "1"]
                A = P.lines[m0_:m1_]; B = P.lines[m1_:]
                norm = lambda L_: [re.sub(r"L_(rare|back)_\d+", "L_x", x) for x in L_]
                assert len(A) == len(B), (nm, len(A), len(B), [(a, b) for a, b in zip(norm(A), norm(B)) if a != b][:6])
                for k_, (a_, b_) in enumerate(zip(norm(A), norm(B))):
                    if a_ != b_:
                        ma = re.fullmatch(r"\s*s_waitcnt vmcnt\((\d+)\)", a_); mb = re.fullmatch(r"\s*s_waitcnt vmcnt\((\d+)\)", b_)
                        assert ma and mb, (nm, a_, b_)
                        if int(mb.group(1)) < int(ma.group(1)): P.lines[m0_ + k_] = b_
                del P.lines[m1_:]
                rare_sites = [x for x in rare_sites if x not in drop]
                I("s_add_u32 s%d, s%d, 1" % (sLOOP, sLOOP)); I("s_cmp_lt_u32 s%d, %d" % (sLOOP, 7 if nm == "A" else NB)); I("s_cbranch_scc1 L_loop%s" % nm)
        if timing and i in sb:
            t_ = sb.index(i)
            if t_ <= AT + 1: stamp(t_)
            elif t_ == AT + 9: stamp(17)
            elif t_ == AT + 17: stamp(18)
            elif t_ >= AT + NV - 6: stamp(t_ - (AT + NV - 6) + 19)
            if t_ == AT + 17: rstamp(41)
            if i == N: rstamp(42)
        for (ls, le, ce, nm, drop) in loops:
            if i == ls:
                I("s_mov_b32 s%d, 0" % sLOOP)
                P.label("L_loop%s" % nm); mk_[nm + "0"] = len(P.lines)
        for it in G_.items(i):
            if it[0] == "ds": P.ds(it[1], it[2])
            elif it[0] == "bar":
                tau = it[1]
                if tau + 1 < NT or tau in pub:
                    P.wait(vm=[("T", tau + 1)] + [("st", c) for c in range(-1, pub.get(tau, -1))]); I("s_barrier")
            elif it[0] == "vm": P.vmem(it[1], it[2])
            elif it[0] == "waitslot":
                if i > 0: P.wait(lg=[("f", it[1])], maxq=12)
            elif it[0] == "chk":
                if it[1] > 0:
                    I("s_cbranch_vccnz L_rare_%d" % it[1]); P.label("L_back_%d" % it[1]); rare_sites.append(it[1])
            elif it[0] == "nil": pass
            elif it[0] == "waitvm": P.wait(vm=[it[1]])
            elif it[0] == "waitlg": P.wait(lg=[it[1]])
            else:
                for x in it[1].split("\n"): I(x.strip())
        if i < N:
            f = fr[i // 2]; d, b, c, ao = f["mf"][i % 2]
            if i % 2 == 0: P.wait(lg=[("f", i // 2)], vm=[f["vmwait"]] if "vmwait" in f else [])
            I("%s %s, %s, %s, %s" % (MF, d, ao or f["fr"], b, c))
    SEL = 48; FS = 64; SS = 32; GR = 112; TT = 56
    sRD, sSP, sALL, sGS = 78, 79, 83, 19
    sPE = 4; sNU = 6; sMK = 12
    assert NU <= 2
    bank = lambda u, k: r4(64 * u + 4 * k, "a")
    I("v_mov_b32 v5, 0"); I("v_mov_b32 v3, 7"); I("v_mov_b32 v7, 1")
    I("s_mov_b32 s%d, 0" % sALL); I("s_mov_b32 s%d, 0" % sRD); I("s_mov_b32 s11, 1")
    P.wait(vm=["rank"])
    I("v_readfirstlane_b32 s%d, v%d" % (sR, TK)); I("s_cmp_eq_u32 s%d, 16" % sFC); I("s_cselect_b32 s%d, s%d, 99" % (sR, sR))
    P.vm = []
    P.label("L_unit")
    I("s_cmp_ge_u32 s%d, %d" % (sR, NR)); I("s_cbranch_scc1 L_pub")
    I("s_mov_b32 s%d, %d" % (sSP, spin))
    I("v_add_u32 v%d, s%d, v%d" % (THR, sR, U7)); I("v_lshrrev_b32 v%d, 2, v%d" % (THR, THR))
    I("buffer_load_dword v6, v%d, %s, s93 offen sc1" % (PV, srd("WS")))
    I("s_lshl_b32 s84, s%d, 2" % sQB); I("s_add_u32 s84, s84, s%d" % sW)
    I("s_mul_i32 s16, s84, 28"); I("s_add_u32 s16, s16, s%d" % sR)
    I("s_lshl_b32 s%d, s16, 14" % sBS); I("s_lshl_b32 s18, s16, 10"); I("s_add_u32 s18, s18, 0x%x" % WS_G)
    I("s_mul_i32 s16, s84, %d" % (32 * 896)); I("s_lshl_b32 s17, s%d, 5" % sR); I("s_add_u32 s%d, s16, s17" % sXO)
    for u in range(NU):
        for G in range(2): I("buffer_load_dwordx2 v[%d:%d], v%d, %s, s%d offen offset:%d" % (XR + 4 * u + 2 * G, XR + 4 * u + 2 * G + 1, XV + G, srd("X"), sXO, 32 * NR * u))
    for r in range(8 * NU): I("v_mov_b32 v%d, 0" % (SS + r))
    I("s_mov_b64 s[%d:%d], -1" % (sPE, sPE + 1)); I("s_mov_b32 s%d, 1" % sGS); I("s_mov_b32 s14, %d" % ((1 << NU) - 1))
    for u in range(NU): I("s_mov_b32 s%d, 0" % (sNU + u))
    P.label("L_pub")
    I("s_cmp_eq_u32 s11, 0"); I("s_cbranch_scc1 L_pubd")
    I("s_mov_b32 s11, 0")
    I("s_waitcnt vmcnt(0)")
    I("buffer_store_dword v3, v%d, %s, s92 offen sc1" % (AVW, srd("WS")))
    I("s_barrier")
    if timing: stamp(33)
    I("s_cmp_eq_u32 s%d, 16" % sFC); I("s_cbranch_scc1 L_arr"); I("v_mov_b32 v7, 0x101"); P.label("L_arr")
    I("buffer_atomic_add v7, v4, %s, s%d offen sc0" % (srd("DBG"), sCW))
    I("s_cmp_ge_u32 s%d, %d" % (sR, NR)); I("s_cbranch_scc1 L_done")
    if not test_fail: I("s_branch L_round1")
    P.label("L_pubd")
    I("s_cmp_ge_u32 s%d, %d" % (sR, NR)); I("s_cbranch_scc1 L_done")
    if test_fail: I("s_cmp_eq_u32 s%d, 1" % sALL); I("s_cbranch_scc1 L_tf"); I("s_cmp_eq_u32 s%d, %d" % (sR, test_fail)); I("s_cbranch_scc1 L_giveup"); P.label("L_tf")
    I("s_cmp_eq_u32 s%d, 0" % sALL); I("s_cbranch_scc1 L_round")
    for u in range(NU):
        I("s_add_u32 s84, s%d, 0x%x" % (sBS, WS_F + NR * 16384 * u))
        for hh in range(16): I("buffer_load_dwordx4 %s, v%d, %s, s84 offen offset:%d sc1" % (r4(4 * hh, "a"), V4K + (hh >> 2), srd("WS"), 1024 * (hh & 3)))
        I("s_waitcnt vmcnt(0)")
        for hh in range(16):
            for hi in range(2):
                d = r4(FS + 4 * hi); I("%s %s, %s, %s, %s" % (MF, d, r4(SEL + (0 if hi else 2)), r4(4 * hh, "a"), "0" if hh == 0 else d))
        I("s_nop 7")
        for p in range(4): I("v_cvt_pk_bf16_f32 v%d, v%d, v%d" % (GR + 4 * u + p, FS + 2 * p, FS + 2 * p + 1))
    I("s_mov_b32 s%d, 2" % sGS); I("v_mov_b32 v6, 7")
    P.label("L_round")
    I("s_waitcnt vmcnt(0)")
    P.label("L_round1")
    I("v_cmp_lt_u32 vcc, v%d, v6" % THR); I("v_cmp_lt_u32 s[16:17], 0, v6")
    for u in range(NU):
        for k in range(16):
            I("s_cmp_le_u32 s%d, %d" % (sNU + u, k)); I("s_cbranch_scc1 L_mm%d" % u)
            for hi in range(2):
                d = r4(SS + 8 * u + 4 * hi); I("%s %s, %s, %s, %s" % (MF, d, r4(SEL + (0 if hi else 2)), bank(u, k), d))
        P.label("L_mm%d" % u)
    I("s_mov_b64 s[90:91], s[%d:%d]" % (sPE, sPE + 1))
    I("s_and_b64 s[%d:%d], vcc, s[%d:%d]" % (sMK, sMK + 1, sPE, sPE + 1))
    I("s_andn2_b64 s[%d:%d], s[%d:%d], s[%d:%d]" % (sPE, sPE + 1, sPE, sPE + 1, sMK, sMK + 1))
    I("s_mov_b32 s15, s%d" % sGS)
    for u in range(NU):
        I("s_bfe_u32 s82, s%d, 0x%x" % (sMK + (u >> 1), 0x100000 + 16 * (u & 1))); I("s_mov_b32 s%d, 0" % (sNU + u)); I("s_add_u32 s85, s%d, 0x%x" % (sBS, WS_S + NR * 16384 * u))
        for k in range(16):
            I("s_cmp_eq_u32 s82, 0"); I("s_cbranch_scc1 L_ld%d" % u)
            I("s_ff1_i32_b32 s84, s82"); I("s_bitset0_b32 s82, s84"); I("s_lshl_b32 s84, s84, 10"); I("s_add_u32 s84, s84, s85"); I("s_add_u32 s%d, s%d, 1" % (sNU + u, sNU + u))
            I("buffer_load_dwordx4 %s, v%d, %s, s84 offen sc1" % (bank(u, k), VL16, srd("WS")))
        P.label("L_ld%d" % u)
    I("s_cmp_lg_u32 s%d, 1" % sGS); I("s_cbranch_scc1 L_nog"); I("s_cmp_lg_u32 s16, -1"); I("s_cbranch_scc1 L_nog")
    for u in range(NU):
        I("s_add_u32 s84, s18, %d" % (NR * 1024 * u)); I("buffer_load_dwordx4 %s, v%d, %s, s84 offen sc1" % (r4(GR + 4 * u), VL16, srd("WS")))
    I("s_mov_b32 s%d, 2" % sGS)
    P.label("L_nog")
    I("s_cmp_eq_u32 s%d, 1" % sALL); I("s_cbranch_scc1 L_nopoll")
    I("buffer_load_dword v6, v%d, %s, s93 offen sc1" % (PV, srd("WS")))
    P.label("L_nopoll")
    def rnd2(a_):
        I("v_cvt_pk_bf16_f32 v%d, v%d, v%d" % (TT, a_, a_ + 1)); I("v_lshlrev_b32 v%d, 16, v%d" % (a_, TT)); I("v_and_b32 v%d, s%d, v%d" % (a_ + 1, sMASK, TT))
    I("s_cmp_lg_u32 s15, 2"); I("s_cbranch_scc1 L_nosilu")
    I("s_mov_b32 s%d, 0" % sGS); I("s_mov_b32 s15, 0")
    for j in range(4 * NU):
        f_ = FS + 2 * j
        I("v_lshlrev_b32 v%d, 16, v%d" % (f_, GR + j)); I("v_and_b32 v%d, s%d, v%d" % (f_ + 1, sMASK, GR + j))
        for e in range(2): I("v_mul_f32 v%d, 0x%x, v%d" % (TT + 1 + e, f2u(-LOG2E), f_ + e))
        for e in range(2): I("v_exp_f32 v%d, v%d" % (TT + 1 + e, TT + 1 + e))
        for e in range(2): I("v_add_f32 v%d, 1.0, v%d" % (TT + 1 + e, TT + 1 + e))
        for e in range(2): I("v_rcp_f32 v%d, v%d" % (TT + 1 + e, TT + 1 + e))
        for e in range(2): I("v_mul_f32 v%d, v%d, v%d" % (f_ + e, f_ + e, TT + 1 + e))
        rnd2(f_)
    P.label("L_nosilu")
    I("s_cmp_lg_u32 s15, 0"); I("s_cbranch_scc1 L_more")
    for u in range(NU):
        I("s_bfe_u32 s82, s%d, 0x%x" % (90 + (u >> 1), 0x100000 + 16 * (u & 1))); I("s_cmp_lg_u32 s82, 0"); I("s_cbranch_scc1 L_fo%d" % u)
        I("s_bitcmp0_b32 s14, %d" % u); I("s_cbranch_scc1 L_fo%d" % u); I("s_bitset0_b32 s14, %d" % u)
        for j in range(4):
            f_ = FS + 8 * u + 2 * j; s_ = SS + 8 * u + 2 * j; x_ = XR + 4 * u + j
            rnd2(s_)
            for e in range(2): I("v_mul_f32 v%d, v%d, v%d" % (s_ + e, s_ + e, f_ + e))
            rnd2(s_)
            I("v_lshlrev_b32 v%d, 16, v%d" % (TT + 1, x_)); I("v_and_b32 v%d, s%d, v%d" % (TT + 2, sMASK, x_))
            for e in range(2): I("v_add_f32 v%d, v%d, v%d" % (s_ + e, s_ + e, TT + 1 + e))
            I("v_cvt_pk_bf16_f32 v%d, v%d, v%d" % (x_, s_, s_ + 1))
            if j % 2 == 1: I("buffer_store_dwordx2 v[%d:%d], v%d, %s, s%d offen offset:%d" % (x_ - 1, x_, XV + (j >> 1), srd("OUT"), sXO, 32 * NR * u))
        P.label("L_fo%d" % u)
    I("s_cmp_eq_u32 s14, 0"); I("s_cbranch_scc1 L_udone")
    P.label("L_more")
    I("s_sub_u32 s%d, s%d, 1" % (sSP, sSP)); I("s_cmp_lg_u32 s%d, 0" % sSP); I("s_cbranch_scc1 L_round")
    P.label("L_giveup")
    I("s_waitcnt vmcnt(0)")
    I("v_mov_b32 v6, 0x100"); I("buffer_atomic_add v6, v%d, %s, s%d offen sc0" % (AVW, srd("DBG"), sCW)); I("s_waitcnt vmcnt(0)")
    I("v_readfirstlane_b32 s82, v6"); I("s_nop 0"); I("s_and_b32 s82, s82, 31"); I("s_cmp_lg_u32 s82, 16"); I("s_cbranch_scc1 L_done")
    I("s_mov_b32 s%d, 1" % sALL); I("s_branch L_unit")
    P.label("L_udone")
    I("s_cmp_eq_u32 s%d, 0" % sRD); I("s_cbranch_scc1 L_done")
    I("s_add_u32 s%d, s%d, 1" % (sR, sR)); I("s_waitcnt vmcnt(0)"); I("s_branch L_unit")
    P.label("L_done")
    I("s_cmp_lg_u32 s%d, 0" % sRD); I("s_cbranch_scc1 L_fin")
    I("s_cmp_lg_u32 s%d, 0" % sW); I("s_cbranch_scc1 L_meet")
    I("s_waitcnt vmcnt(0)"); I("v_readfirstlane_b32 s82, v7"); I("s_nop 1"); I("v_mov_b32 v6, s82"); I("ds_write_b32 v5, v6"); I("s_waitcnt lgkmcnt(0)")
    P.label("L_meet")
    I("s_barrier")
    I("ds_read_b32 v7, v5"); I("s_waitcnt lgkmcnt(0)"); I("v_readfirstlane_b32 s82, v7"); I("s_nop 0")
    I("s_and_b32 s84, s82, 31"); I("s_cmp_lg_u32 s84, 15"); I("s_cbranch_scc1 L_fin")
    I("s_lshr_b32 s82, s82, 8"); I("s_cmp_lg_u32 s%d, 16" % sFC); I("s_cselect_b32 s84, 1, 0"); I("s_or_b32 s82, s82, s84")
    I("s_cmp_eq_u32 s82, 0"); I("s_cbranch_scc1 L_fin")
    I("s_waitcnt vmcnt(0)")
    I("s_mov_b32 s%d, 1" % sRD); I("s_mov_b32 s%d, 1" % sALL); I("s_mov_b32 s%d, 0" % sR); I("s_branch L_unit")
    P.label("L_fin")
    if timing:
        I("s_waitcnt vmcnt(0)"); P.vm = []
        stamp(34); rstamp(43); I("v_writelane_b32 v0, s100, 40")
        I("s_lshl_b32 s94, s2, 2"); I("s_add_u32 s94, s94, s%d" % sW); I("s_lshl_b32 s94, s94, 10"); I("s_add_u32 s94, s94, 0x%x" % WS_T)
        I("buffer_store_dword v0, v%d, %s, s94 offen" % (VL16, srd("WS")))
    P.label("L_end"); I("s_endpgm")
    P.label("L_code_end")
    for n in rare_sites:
        P.label("L_rare_%d" % n); I("s_mov_b32 s%d, %d" % (sRET, n)); I("s_branch L_rp_%d" % (n % 2))
    for par in range(2):
        P.label("L_rp_%d" % par)
        I("s_nop 15")
        s = S[par]; s2 = S[1 - par]; lo = LB[par]; ln = LB[1 - par]; pk = PK[par]
        for G in range(2):
            e = [s + 8 * kt + 4 * G + r for kt in range(2) for r in range(4)]
            e2 = [s2 + 8 * kt + 4 * G + r for kt in range(2) for r in range(4)]
            m = MX + G
            I("v_log_f32 v%d, v%d" % (m, lo + G))
            I("v_max3_f32 v%d, v%d, v%d, v%d" % (T0, e[0], e[1], e[2])); I("v_max3_f32 v%d, v%d, v%d, v%d" % (T0, T0, e[3], e[4]))
            I("v_max3_f32 v%d, v%d, v%d, v%d" % (T0, T0, e[5], e[6])); I("v_max3_f32 v%d, v%d, v%d, v%d" % (m, m, T0, e[7]))
            for k, t in xlane("v_max_f32", m, T0): I(t)
            I("v_max_f32 v%d, 0, v%d" % (m, m))
            I("v_exp_f32 v%d, -v%d" % (TC, m))
            for x in e + e2 + [NEGM + 4 * G + r for r in range(4)]: I("v_sub_f32 v%d, v%d, v%d" % (x, x, m))
            I("v_mul_f32 v%d, v%d, v%d" % (lo + G, lo + G, TC))
            for t in range(16):
                for r in range(4): I("v_accvgpr_read_b32 v%d, a%d" % (PT + r, O + 8 * t + 4 * G + r))
                for r in range(4): I("v_mul_f32 v%d, v%d, v%d" % (PT + r, PT + r, TC))
                for r in range(4): I("v_accvgpr_write_b32 a%d, v%d" % (O + 8 * t + 4 * G + r, PT + r))
            for j, x in enumerate(e): I("v_exp_f32 v%d, v%d" % (PT + j, x))
            I("v_add_f32 v%d, v%d, v%d" % (ln + G, lo + G, PT))
            for j in range(1, 8): I("v_add_f32 v%d, v%d, v%d" % (ln + G, ln + G, PT + j))
            for j in range(4): I("v_cvt_pk_bf16_f32 v%d, v%d, v%d" % (pk + 4 * G + j, PT + 2 * j, PT + 2 * j + 1))
        I("s_nop 3")
        mine = [n for n in rare_sites if n % 2 == par]
        for n in mine[:-1]:
            I("s_cmp_eq_u32 s%d, %d" % (sRET, n)); I("s_cbranch_scc1 L_back_%d" % n)
        I("s_branch L_back_%d" % mine[-1])
    rep = []
    P.lines = fix_hazards(P.lines, rep)
    if verbose:
        print("K1: MFMAs(virtual) %d, nops inserted %d (total ws %d) pub %s" % (N, len(rep), sum(r[1] for r in rep), pub))
        print("penalty per step:", [G_.total_pen(sb[t], sb[t + 1]) for t in range(len(sb) - 1)])
    for p in check_text(P.text()): print(p)
    return P.text(), rep, G_, sb

def head():
    import os
    p = "cdna_kernels/%s.s.ref" % NAME
    return open(p).read().split("; Override launch")[0] if os.path.exists(p) else ""
def build(**kw):
    k1, rep, G_, sb = gen_k1(**kw)
    s = head()
    s += "; @launch grid=(256,1,1) block=(256,1,1) lds=147456\n"
    s += '.amdgcn_target "amdgcn-amd-amdhsa--gfx950"\n.text\n'
    s += ".globl %s\n.p2align 8\n.type %s,@function\n%s:\n%s" % (K1, K1, K1, k1)
    s += '''.section .rodata,"a"
.p2align 6
.amdhsa_kernel %s
  .amdhsa_next_free_vgpr 512
  .amdhsa_next_free_sgpr 102
  .amdhsa_accum_offset 256
  .amdhsa_group_segment_fixed_size 0
  .amdhsa_kernarg_size 96
  .amdhsa_user_sgpr_count 2
  .amdhsa_user_sgpr_kernarg_segment_ptr 1
  .amdhsa_system_sgpr_workgroup_id_x 1
.end_amdhsa_kernel
''' % K1
    return s, rep, G_, sb

if __name__ == "__main__":
    import json
    if len(sys.argv) > 1:
        for name, kw in json.loads(sys.argv[1]).items():
            open(name, "w").write(build(verbose=False, **kw)[0])
    else:
        open("k12_a.s", "w").write(build()[0])
        open("k12_fail.s", "w").write(build(test_fail=5, verbose=False)[0])
        open("k12_nof.s", "w").write(build(test_nof=0x0410, spin=40, verbose=False)[0])
        open("k12_at.s", "w").write(build(timing=True, verbose=False)[0])
```

```python
import sys, struct
from gen import *
NAME = "recurrent_scan__mha_block_cached__glu_gated_swiglu__prompt"
K1 = NAME + "_kernel"
LOG2E = 1.4426950408889634
def f2u(x): return struct.unpack("<I", struct.pack("<f", x))[0]
def r4(x, p="v"): return "%s[%d:%d]" % (p, x, x + 3)
WS_S = 0x0; WS_F = 0x2000000; WS_FL = 0x4000000; WS_G = 0x4100000; WS_T = 0xa000000
BIG = 0x40000000
MF = "v_mfma_f32_16x16x32_bf16"

def gen_k1(L=10, LW=9, estep=3, e0=8, timing=False, verbose=True, bar_off=25, dma_step=6, spin=3000, test_fail=0, test_nof=0, pub_lag=50):
    P = Prog(); I = P.ins
    O = 0; GU = 128; FRA = 192; FRF = 128
    S = [16, 32]; NEGM = 48; LB = [56, 58]; MX = 60; TC = 62; T0 = 63
    WA = 48; FRV = 64; PT = 64; PK = [80, 88]
    KA = 96; VA = 100; KD = 108; VD = 112; TA = 116; TD = 124
    XC = lambda s, G: 128 + 8 * (13 - s) + 4 * G
    QF = lambda G, k: 128 + 32 * G + 4 * k
    H = lambda k, G: XC(k, G)
    OF = lambda k, G: 128 + 8 * k + 4 * G
    VAL = 240; WD = 248; QD = 252
    UA = 240; PFV = 244; PFD = 245; PFW = 246; SELT = 248; FST = 208
    FA = [192, 200]; AVP = 247; AVW = 54
    ST = 16
    VL16 = 1; MB = 2; RSQ = 2; DM = 4; RSN = 4; CI = 6; RL = 60
    TMP = 8
    SRD = dict(X=28, K=32, V=36, WQ=40, WO=44, W1=48, W3=52, W2=56, WS=60, DBG=20, OUT=24, PF=12)
    def srd(n): return "s[%d:%d]" % (SRD[n], SRD[n] + 3)
    sH, sQB, sW, sM0, sSO, sLOOP, sTH, sRET, sCW, sFO, sSOe, sFC = 64, 65, 66, 67, 68, 70, 71, 72, 73, 74, 75, 76
    sW13, sWQ, sW2, sWO, sK, sV, sT0, sT1, sMASK, sAT, sFLW = 78, 79, 80, 81, 82, 83, 84, 85, 86, 87, 3
    sDG = 4; sPFO = 16
    I("s_cmp_ge_u32 s2, 256"); I("s_cbranch_scc1 L_end")
    I("s_load_dwordx16 s[4:19], s[0:1], 0"); I("s_load_dwordx8 s[20:27], s[0:1], 64")
    if timing: I("s_memtime s[98:99]"); I("s_memrealtime s[100:101]")
    I("s_and_b32 s%d, s2, 7" % sH); I("s_lshr_b32 s%d, s2, 3" % sQB)
    I("s_lshr_b32 s%d, s%d, 4" % (sT0, sQB)); I("s_lshl_b32 s%d, s%d, 1" % (sH, sH)); I("s_add_u32 s%d, s%d, s%d" % (sH, sH, sT0))
    I("s_and_b32 s%d, s%d, 15" % (sQB, sQB))
    I("v_lshrrev_b32 v8, 6, v0"); I("s_nop 0"); I("v_readfirstlane_b32 s%d, v8" % sW)
    I("v_and_b32 v9, 63, v0"); I("v_and_b32 v10, 15, v0"); I("v_bfe_u32 v11, v0, 4, 2")
    I("v_lshlrev_b32 v%d, 4, v9" % VL16)
    I("s_lshl_b32 s%d, s%d, 2" % (sT0, sQB)); I("s_add_u32 s%d, s%d, s%d" % (sT0, sT0, sW))
    I("s_getpc_b64 s[88:89]"); P.label("L_pc")
    I("s_and_b32 s%d, s%d, 15" % (sT1, sT0)); I("s_lshl_b32 s%d, s%d, 13" % (sT1, sT1))
    I("v_lshlrev_b32 v14, 7, v9"); I("v_add_u32 v14, s%d, v14" % sT1); I("v_min_u32 v14, L_code_end-L_pc-4, v14")
    P.vmem("global_load_dword v44, v14, s[88:89]", "cpf")
    I("s_mul_i32 s%d, s%d, %d" % (sSO, sQB, 128 * 896))
    I("s_lshl_b32 s%d, s%d, 5" % (sT1, sW)); I("s_lshl_b32 s%d, s%d, 12" % (sM0, sW))
    I("v_lshrrev_b32 v14, 3, v9"); I("v_add_u32 v14, s%d, v14" % sT1); I("v_mul_u32_u24 v14, 896, v14")
    I("v_bfe_u32 v15, v0, 1, 2"); I("v_xor_b32 v15, v15, v11"); I("v_lshl_add_u32 v14, v15, 5, v14"); I("v_and_b32 v15, 1, v0"); I("v_lshl_add_u32 v14, v15, 4, v14")
    for j in range(4): I("v_add_u32 v%d, %d, v14" % (TD + j, j * (8 * 896 - 1024)))
    Q_ = []; J = Q_.append
    J("s_mul_i32 s%d, s%d, 224" % (sW13, sH))
    J("s_lshr_b32 s%d, s%d, 1" % (sK, sW)); J("s_lshl_b32 s%d, s%d, 5" % (sK, sK)); J("s_and_b32 s%d, s%d, 1" % (sV, sW)); J("s_lshl_b32 s%d, s%d, 2" % (sV, sV))
    J("s_add_u32 s%d, s%d, s%d" % (sK, sK, sV))
    J("v_add_u32 v12, s%d, v11" % sK); J("v_mul_u32_u24 v12, 3584, v12")
    J("v_and_b32 v13, 1, v10"); J("v_lshl_add_u32 v12, v13, 4, v12"); J("v_lshrrev_b32 v13, 1, v10")
    for j in range(4):
        J("v_add_u32 v14, %d, v11" % (4 * (j & 1))); J("v_xor_b32 v14, v14, v13"); J("v_min_u32 v14, 6, v14"); J("v_lshl_add_u32 v14, v14, 5, v12")
        J("v_add_u32 v%d, %d, v14" % (WD + j, j * (8 * 3584 - 1024)))
    NOK = len(Q_)
    def mk(n, lo, size, add=None, f=None):
        f = f or J; d = SRD[n]
        if add is None: f("s_mov_b32 s%d, s%d" % (d, lo)); f("s_mov_b32 s%d, s%d" % (d + 1, lo + 1))
        else: f("s_add_u32 s%d, s%d, s%d\n    s_addc_u32 s%d, s%d, 0" % (d, lo, add, d + 1, lo + 1))
        f("s_mov_b32 s%d, 0x%x" % (d + 2, size)); f("s_mov_b32 s%d, 0x20000" % (d + 3))
    mk("W1", 16, 448 * 3584); mk("W3", 18, 448 * 3584)
    J("s_lshl_b32 s%d, s%d, 20" % (sK, sH))
    mk("K", 6, 0x100000, sK); mk("V", 8, 0x100000, sK)
    mk("WQ", 10, 448 * 8192); mk("WO", 12, 4096 * 896); mk("W2", 20, 1792 * 896); mk("WS", 26, 0x10000000)
    J("s_mov_b32 s20, s24"); J("s_mov_b32 s21, s25"); J("s_mov_b32 s24, s22"); J("s_mov_b32 s25, s23")
    J("s_mov_b32 s22, 256"); J("s_mov_b32 s23, 0x20000"); J("s_mov_b32 s26, %d" % (2048 * 896)); J("s_mov_b32 s27, 0x20000")
    J("s_lshl_b32 s%d, s%d, 4" % (sCW, sQB)); J("s_add_u32 s%d, s%d, 4096" % (sAT, sCW))
    J("s_lshl_b32 s%d, s%d, 5" % (sFLW, sT0)); J("s_add_u32 s%d, s%d, s%d" % (sFLW, sFLW, sH)); J("s_lshl_b32 s%d, s%d, 2" % (sFLW, sFLW)); J("s_add_u32 s%d, s%d, 0x%x" % (sFLW, sFLW, WS_FL))
    J("s_and_b32 s93, s%d, 0xffffff80" % sFLW)
    J("v_mov_b32 v47, 0x7f000000"); J("v_cmp_eq_u32 vcc, 0, v9"); J("s_nop 0"); J("v_cndmask_b32 v47, v47, 0, vcc")
    J("v_mov_b32 v45, 0x7f000000"); J("v_cmp_eq_u32 vcc, 0, v0"); J("v_mov_b32 v46, 0"); J("v_cndmask_b32 v45, v45, 0, vcc")
    J("s_lshl_b32 s%d, s%d, 9" % (sWQ, sH)); J("s_mul_i32 s%d, s%d, %d" % (sW2, sH, 112 * 896)); J("s_mul_i32 s%d, s%d, %d" % (sWO, sH, 256 * 896))
    J("s_mul_i32 s%d, s%d, %d" % (sFO, sT0, 28 * 16)); J("s_add_u32 s%d, s%d, s%d" % (sFO, sFO, sH)); J("s_lshl_b32 s%d, s%d, 10" % (sFO, sFO))
    J("s_add_u32 s%d, s%d, 0x%x" % (sSOe, sFO, WS_S)); J("s_add_u32 s%d, s%d, 0x%x" % (sFO, sFO, WS_F))
    J("s_mov_b32 s%d, 0x53800000" % sTH); J("s_mov_b32 s%d, 0xffff0000" % sMASK)
    for r in range(4):
        m = (1 << r) | (1 << (20 + r)) | (1 << (40 + r)) | (1 << (60 + r))
        J("s_mov_b32 s%d, 0x%x" % (sDG + 2 * r, m & 0xffffffff)); J("s_mov_b32 s%d, 0x%x" % (sDG + 2 * r + 1, m >> 32))
    for r in range(4): J("v_mov_b32 v%d, 0x3f803f80" % (ST + 16 + r))
    J("v_and_b32 v12, 31, v0"); J("v_bfe_u32 v13, v0, 5, 1")
    J("v_lshlrev_b32 v14, 9, v10")
    for s in range(4):
        J("v_add_u32 v15, %d, v11" % (4 * s)); J("v_xor_b32 v15, v15, v10"); J("v_lshl_add_u32 v%d, v15, 4, v14" % (KA + s))
    J("v_bfe_u32 v4, v0, 2, 4"); J("v_and_b32 v5, 3, v0"); J("v_and_b32 v6, 7, v4")
    J("v_lshlrev_b32 v14, 8, v4"); J("v_lshl_add_u32 v14, v5, 3, v14")
    for t in range(7):
        J("v_xor_b32 v15, %d, v6" % t); J("v_lshl_add_u32 v%d, v15, 5, v14" % (WA + t)); J("v_add_u32 v%d, 0x10000, v%d" % (WA + 7 + t, WA + t))
    J("v_lshlrev_b32 v14, 9, v4"); J("v_lshl_add_u32 v14, v5, 3, v14")
    for b in range(8):
        J("v_xor_b32 v15, %d, v6" % b); J("v_lshl_add_u32 v%d, v15, 5, v14" % (VAL + b)); J("v_add_u32 v%d, 0x10000, v%d" % (VA + b, VAL + b))
    J("v_lshlrev_b32 v14, 7, v4"); J("v_lshl_add_u32 v14, v5, 3, v14"); J("v_bfe_u32 v7, v4, 1, 2")
    for t in range(4):
        J("v_xor_b32 v15, %d, v7" % t); J("v_lshl_add_u32 v%d, v15, 5, v14" % (TA + t)); J("v_add_u32 v%d, 0x10000, v%d" % (TA + 4 + t, TA + t))
    J("s_and_b32 s%d, s%d, 1" % (sT1, sW)); J("s_lshl_b32 s%d, s%d, 3" % (sT1, sT1))
    J("v_lshlrev_b32 v14, 9, v13"); J("v_add_u32 v14, s%d, v14" % sM0)
    for j in range(4):
        J("v_add_u32 v15, %d, v13" % (2 * j)); J("v_add_u32 v15, s%d, v15" % sT1); J("v_xor_b32 v15, v15, v12"); J("v_lshl_add_u32 v%d, v15, 4, v14" % (KD + j))
    J("s_lshl_b32 s%d, s%d, 1" % (sT1, sT1)); J("s_lshr_b32 s%d, s%d, 1" % (sK, sW)); J("s_lshl_b32 s%d, s%d, 2" % (sK, sK)); J("s_add_u32 s%d, s%d, s%d" % (sT1, sT1, sK))
    J("v_add_u32 v7, s%d, v13" % sT1); J("v_lshlrev_b32 v7, 13, v7")
    for j in range(4):
        J("v_add_u32 v15, %d, v13" % (2 * j)); J("v_lshlrev_b32 v15, 1, v15"); J("v_xor_b32 v15, v15, v12")
        J("v_lshl_add_u32 v%d, v15, 4, v14" % (VD + j))
        J("v_lshl_add_u32 v15, v15, 4, v7"); J("v_add_u32 v%d, %d, v15" % (QD + j, (8 * (j >> 1) + 2 * (j & 1)) * 8192 - 1024 * j))
    J("s_mov_b32 s%d, 0" % sK); J("s_mov_b32 s%d, 0" % sV)
    J("v_lshrrev_b32 v14, 3, v10"); J("v_lshlrev_b32 v14, 10, v14"); J("v_and_b32 v15, 7, v10"); J("v_lshl_add_u32 v14, v15, 7, v14"); J("v_add_u32 v14, s%d, v14" % sM0)
    J("v_bfe_u32 v15, v10, 1, 2"); J("v_lshlrev_b32 v15, 1, v15"); J("v_xor_b32 v15, v15, v11")
    J("v_lshl_add_u32 v2, v15, 4, v14"); J("v_xor_b32 v3, 64, v2")
    for k in range(2): J("v_add_u32 v%d, 0x10000, v%d" % (4 + k, 2 + k)); J("v_add_u32 v%d, 0x20000, v%d" % (6 + k, 2 + k))
    J("s_mul_i32 s%d, s%d, 14" % (sT1, sT0)); J("v_add_u32 v14, s%d, v9" % sT1); J("v_mov_b32 v13, 0x7f000000"); J("v_cmp_gt_u32 vcc, 14, v9")
    J("v_lshlrev_b32 v42, 7, v14"); J("v_cndmask_b32 v42, v13, v42, vcc")
    J("s_and_b32 s%d, s%d, 1" % (sT1, sW)); J("s_lshl_b32 s%d, s%d, 13" % (sT1, sT1)); J("v_lshlrev_b32 v43, 7, v9"); J("v_add_u32 v43, s%d, v43" % sT1)
    J("s_cmp_lt_u32 s%d, 2\n    s_cselect_b32 s12, s%d, s%d\n    s_cselect_b32 s13, s%d, s%d" % (sW, SRD["K"], SRD["V"], SRD["K"] + 1, SRD["V"] + 1)); J("s_mov_b32 s14, 0x100000"); J("s_mov_b32 s15, 0x20000")
    J("s_and_b32 s16, s%d, 3" % sQB); J("s_lshl_b32 s16, s16, 14"); J("s_lshr_b32 s17, s%d, 2" % sQB)
    J("s_sub_u32 s17, 4, s17"); J("s_lshl_b32 s17, s17, 30"); J("s_add_u32 s16, s16, s17")
    def drain(n):
        for _ in range(min(n, len(Q_))):
            for x in Q_.pop(0).split("\n"): I(x.strip())
    drain(NOK)
    I("s_waitcnt lgkmcnt(0)")
    mk("X", 4, 2048 * 896, f=I)
    XS = [0x4000, 0x8000, 0xc000, 0x14000, 0x18000, 0x1c000, 0x20000]
    per = (len(Q_) + 27) // 28
    for j in range(7):
        I("s_add_u32 m0, s%d, %d" % (sM0, XS[j]))
        if j: I("s_add_u32 s%d, s%d, 128" % (sSO, sSO))
        else: I("s_nop 0")
        for i in range(4):
            P.vmem("buffer_load_dwordx4 v%d, %s, s%d offen offset:%d lds" % (TD + i, srd("X"), sSO, 1024 * i), ("x", j))
            drain(per)
    drain(10 ** 6)
    NV = 24
    TL = 17
    tiles = []
    for t in range(7): tiles.append([("W1", WD, (sW13, t * 64 * 3584)), ("W3", WD, (sW13, t * 64 * 3584))])
    for j in range(7): tiles.append([("WQ", QD, (sWQ, 64 * j * 8192)), ("WQ", QD, (sWQ, (64 * j + 32) * 8192))])
    tiles.append([("K", KD, "inc"), None])
    for n in range(NV): tiles.append([("K", KD, "inc") if n < NV - 1 else None, ("V", VD, "inc")])
    for j in range(7): tiles.append([("WO", TD, (sWO, 128 * j)), ("WO", TD, (sWO, 128 * 896 + 128 * j))])
    NT = len(tiles); AT = 15
    def dma_ops(tau):
        groups = []
        for hf, half in enumerate(tiles[tau]):
            if half is None: continue
            sn, vb, so = half
            m0 = "s_add_u32 m0, s%d, %d" % (sM0, 65536 * hf + 16384 * (tau % 4))
            if so == "inc": sreg = sK if sn == "K" else sV; pre = [m0]; post = ["s_add_u32 s%d, s%d, 16384" % (sreg, sreg)]
            else: sreg = sSO + hf; pre = [m0, "s_add_u32 s%d, s%d, %d" % (sreg, so[0], so[1])]; post = []
            for j in range(4):
                groups.append((pre if j == 0 else [], "buffer_load_dwordx4 v%d, %s, s%d offen offset:%d lds" % (vb + j, srd(sn), sreg, 1024 * j), post if j == 3 else []))
        return groups
    def f2_dma_ops(js):
        return [(["s_add_u32 m0, s%d, 0x20000" % sM0] if j == js[0] else [], "buffer_load_dwordx4 v%d, %s, s%d offen offset:%d lds" % (TD + j, srd("W2"), sW2, 1024 * j),
                 ["s_add_u32 s%d, s%d, 128" % (sW2, sW2)] if j == 3 else []) for j in js]
    def issue_group(g, tag):
        pre, d, post = g
        for x in pre: I(x)
        if pre: I("s_nop 0")
        P.vmem(d, tag)
        for x in post: I(x)
    t0 = dma_ops(0)
    def xread(s):
        j = s >> 1; base = XS[j]
        P.wait(vm=[("x", j)])
        for G in range(2):
            P.ds("ds_read_b128 %s, v%d offset:%d" % (r4(XC(s, G)), 2 + (s & 1) + 2 * (base >> 16), (base & 0xffff) + 2048 * G), ("xf", s))
    for g in t0[:4]: issue_group(g, ("T", 0))
    for s in range(4): xread(s)
    for g in t0[4:]: issue_group(g, ("T", 0))
    for s in range(14):
        if s + 4 < 14: xread(s + 4)
        P.wait(lg=[("xf", s)])
        for G in range(2): I("%s %s, %s, %s, %s" % (MF, r4(ST + 4 * G), r4(ST + 16), r4(XC(s, G)), "0" if s == 0 else r4(ST + 4 * G)))
    def xlane(op, reg, tmp):
        ops = []
        for sw in ("v_permlane32_swap_b32", "v_permlane16_swap_b32"):
            ops += [("V", "v_mov_b32 v%d, v%d" % (tmp, reg)), ("T", "%s v%d, v%d" % (sw, reg, tmp)), ("V", "%s v%d, v%d, v%d" % (op, reg, reg, tmp))]
        return ops
    def center_ops(s):
        ops = []
        regs = [(G, XC(s, G) + r) for G in range(2) for r in range(4)]
        for i, (G, x) in enumerate(regs):
            lo = TMP + 2 * (i % 3); hi = lo + 1
            ops += [("V", "v_lshlrev_b32 v%d, 16, v%d" % (lo, x)), ("V", "v_and_b32 v%d, s%d, v%d" % (hi, sMASK, x)),
                    ("V", "v_sub_f32 v%d, v%d, v%d" % (lo, lo, MB + G)), ("V", "v_sub_f32 v%d, v%d, v%d" % (hi, hi, MB + G)),
                    ("V", "v_cvt_pk_bf16_f32 v%d, v%d, v%d" % (x, lo, hi))]
        return ops
    pre_ops = []
    for G in range(2):
        a = TMP + G
        pre_ops += ["v_mul_f32 v%d, 0x%x, v%d" % (a, f2u(1.0 / 448), ST + 4 * G), "v_cvt_pk_bf16_f32 v%d, v%d, v%d" % (MB + G, a, a), "v_lshlrev_b32 v%d, 16, v%d" % (MB + G, MB + G),
                    "v_sub_f32 v%d, v%d, v%d" % (DM + G, a, MB + G)]
    pre_ops += [t for k, t in center_ops(0)]
    for i, g in enumerate(dma_ops(1)):
        issue_group(g, ("T", 1))
        for x in pre_ops[6 * i:6 * i + 6]: I(x)
    P.wait(vm=[("T", 0)])
    I("s_barrier")

    fr = []; sb = []
    def tr(areg, off, d2): return [("tr0", areg, off), ("tr1", areg, off + d2)]
    def add(reads, mf, ring, **kw): fr.append(dict(reads=reads, mf=mf, ring=ring, **kw))
    mark = {}
    for tau in range(7):
        sb.append(2 * len(fr))
        for ks in range(2):
            s = 2 * tau + ks
            mark[("F1", s)] = 2 * len(fr)
            for t in range(7):
                for kind in range(2):
                    ms = []
                    for G in range(2):
                        a = r4(GU + ((kind * 7 + t) * 2 + G) * 4, "a")
                        ms.append((a, r4(XC(s, G)), "0" if s == 0 else a, None))
                    add(tr(WA + 7 * kind + t, 8192 * ks + 16384 * (tau % 4), 4096), ms, "v")
                if t == 3:
                    add([], [(r4(ST + 8 + 4 * G), r4(XC(s, G)), "0" if s == 0 else r4(ST + 8 + 4 * G), r4(XC(s, G))) for G in range(2)], None)
    for j in range(7):
        tau = 7 + j; sb.append(2 * len(fr))
        order = [(hf, t) for hf in range(2) for t in range(16)] if j < 6 else [(hf, t) for t in range(16) for hf in range(2)]
        for hf, t in order:
            s = 2 * j + hf
            ms = []
            for G in range(2):
                a = r4(O + 8 * t + 4 * G, "a")
                ms.append((a, r4(XC(s, G)), "0" if s == 0 else a, None))
            add(tr((VA if hf else VAL) + (t & 7), 256 * (t >> 3) + 16384 * (tau % 4), 8192), ms, "v")
    outs = []
    def f2_part(tts):
        for tt in tts:
            acc = FA[tt & 1]
            for k in range(4):
                ms = [(r4(acc + 4 * G), r4(H(k, G)), "0" if k == 0 else r4(acc + 4 * G), None) for G in range(2)]
                add(tr(UA + tt, 4096 * k, 2048), ms, "f")
            outs.append(("F", 2 * len(fr), acc, None))
    def qk_block(n, tau):
        order = [(kt, s) for kt in range(2) for s in range(8)] if n > 0 else [(kt, s) for s in range(8) for kt in range(2)]
        for kt, s in order:
            ms = []
            for G in range(2):
                d = r4(S[n % 2] + 8 * kt + 4 * G)
                c = ("0" if n <= 1 else r4(NEGM + 4 * G)) if s == 0 else d
                ms.append((d, r4(QF(G, s)), c, None))
            if n == 0 and kt == 0: mark[("QK0", s)] = 2 * len(fr)
            add([("b128", KA + (s & 3), 256 * (s >> 2) + 8192 * kt + 16384 * (tau % 4))], ms, "a")
    def pv_block(n, tau):
        for t in range(16):
            ms = []
            for G in range(2):
                o = r4(O + 8 * t + 4 * G, "a")
                ms.append((o, r4(PK[n % 2] + 4 * G), "0" if n == 0 else o, None))
            add(tr(VA + (t & 7), 256 * (t >> 3) + 16384 * (tau % 4), 8192), ms, "a")
    sb.append(2 * len(fr)); qk_block(0, 14)
    pvs = {}; fsum_at = {}
    for n in range(NV):
        tau = AT + n; sb.append(2 * len(fr))
        if n < NV - 1: qk_block(n + 1, tau)
        if n in (1, 5): f2_part((0, 1))
        if n in (2, 6): f2_part((2, 3))
        if n >= TL + 3:
            for jj in range(8):
                j = 8 * (n - TL - 3) + jj; u = j & 1; hh = j >> 1
                fsum_at[j] = 2 * len(fr)
                add([], [(r4(FST + 8 * u + 4 * hi), r4(128 + 4 * (j % 16), "a"), "0" if hh == 0 else r4(FST + 8 * u + 4 * hi), r4(SELT + (0 if hi else 2))) for hi in range(2)], None, vmwait=("fl", j))
        pvs[n] = 2 * len(fr)
        pv_block(n, tau)
    OT = AT + NV
    for j in range(7):
        tau = OT + j; sb.append(2 * len(fr))
        order = [(tt, k) for k in range(8) for tt in range(4)] if j == 0 else [(tt, k) for tt in range(4) for k in range(8)]
        for tt, k in order:
            acc = 192 + 32 * (j & 1) + 8 * tt
            ms = [(r4(acc + 4 * G), r4(OF(k, G)), "0" if k == 0 else r4(acc + 4 * G), None) for G in range(2)]
            if j == 0 and tt == 0: mark[("O", k)] = 2 * len(fr)
            add(tr(TA + 4 * (k >> 2) + tt, 4096 * (k & 3) + 16384 * (tau % 4), 2048), ms, "a")
            if k == 7: outs.append(("S", 2 * len(fr), acc, j))
    N = 2 * len(fr); sb.append(N)
    END = N + 40
    G_ = Gaps2(END)
    for i in range(len(fr)): G_.put(2 * i, "S", ("waitslot", i), force=True)
    barpos = {}
    for tau in range(NT):
        g = sb[tau + 1] - bar_off; barpos[tau] = g
        assert g % 2 == 1
        G_.put(g, "S", ("bar", tau), force=True); G_.put(g, "S", ("nil",), force=True)
    holes = set(); estart = {}
    for n in range(1, NV - 1):
        estart[n] = pvs[n - 1] + e0
        for e in range(16): holes.add(estart[n] + estep * e)
    cnt = {"v": 0, "a": 0, "f": 0}
    rl = []
    for i, f in enumerate(fr):
        if not f["reads"]: continue
        if f["ring"] == "v": r = FRV + 4 * (cnt["v"] % 8); p = "v"; lead = LW
        elif f["ring"] == "f": r = FRF + 4 * (cnt["f"] % 16); p = "a"; lead = L
        else: r = FRA + 4 * (cnt["a"] % 16); p = "a"; lead = L
        cnt[f["ring"]] += 1
        f["fr"] = r4(r, p)
        for q, (k, a, off) in enumerate(f["reads"]):
            assert off < 65536
            if k == "b128": txt = "ds_read_b128 %s[%d:%d], v%d offset:%d" % (p, r, r + 3, a, off)
            elif k == "tr0": txt = "ds_read_b64_tr_b16 %s[%d:%d], v%d offset:%d" % (p, r, r + 1, a, off)
            else: txt = "ds_read_b64_tr_b16 %s[%d:%d], v%d offset:%d" % (p, r + 2, r + 3, a, off)
            rl.append([2 * i - lead, txt, i])
    nxt = 10 ** 9
    for x in reversed(rl):
        g = min(x[0], nxt - 1)
        while g in holes: g -= 1
        x[0] = g; nxt = g
    lastuse = {}
    for g, txt, i in rl:
        g = max(g, 0)
        key = fr[i]["fr"]
        if key in lastuse and lastuse[key] != i: assert g > 2 * lastuse[key] + 1, ("ring WAR", i, g, lastuse[key])
        lastuse[key] = i
        tau = max(t for t in range(NT) if sb[t] <= 2 * i)
        if tau > 0: assert g > barpos[tau - 1], ("read before barrier", i, g, tau, barpos[tau - 1])
        G_.put(g, "D", ("ds", txt, ("f", i)), force=True)
    def place_softmax(n, e0_, estep_, limit, dense=False):
        s = S[n % 2]; pk = PK[n % 2]; lo = LB[n % 2]; ln = LB[(n + 1) % 2]
        first = [True, True]; gl = 0; pend = []
        for e, (kt, G, r) in enumerate([(kt, G, r) for kt in range(2) for G in range(2) for r in range(4)]):
            src = s + 8 * kt + 4 * G + r; p = PT + e
            g = G_.put(e0_ + int(estep_ * e), "T", ("ins", "v_exp_f32 v%d, v%d" % (p, src)), force=True)
            pend.append((g + 1, "v_add_f32 v%d, v%d, v%d" % (ln + G, (lo if first[G] else ln) + G, p))); first[G] = False
            if r % 2 == 1: pend.append((g + 1, "v_cvt_pk_bf16_f32 v%d, v%d, v%d" % (pk + 4 * G + 2 * kt + r // 2, p - 1, p)))
        pend.append((0, "v_add_f32 v%d, v%d, v%d" % (TC, ln, ln + 1))); pend.append((0, "v_cmp_nge_f32 vcc, s%d, v%d" % (sTH, TC)))
        for k, (g, t) in enumerate(pend):
            st = max(g, gl)
            gl = G_.put(st, "V", ("ins", t), limit=min(st + (1 if dense else 4), limit - 1))
        G_.put(gl + 1, "S", ("chk", n), limit=limit)
    b0 = sb[AT]
    ops = []
    for G in range(2):
        e = [S[0] + 8 * kt + 4 * G + r for kt in range(2) for r in range(4)]
        m = MX + G
        ops += [("V", "v_max3_f32 v%d, v%d, v%d, v%d" % (m, e[0], e[1], e[2])), ("V", "v_max3_f32 v%d, v%d, v%d, v%d" % (m, m, e[3], e[4])),
                ("V", "v_max3_f32 v%d, v%d, v%d, v%d" % (m, m, e[5], e[6])), ("V", "v_max_f32 v%d, v%d, v%d" % (m, m, e[7]))]
        ops += xlane("v_max_f32", m, T0)
        ops += [("V", "v_sub_f32 v%d, v%d, v%d" % (x, x, m)) for x in e]
        ops += [("V", "v_mov_b32 v%d, 0" % (LB[0] + G))]
    g_init = G_.chain(ops, b0 + 4, b0 + 15)
    for n in range(NV):
        bn = sb[AT + n]
        if n == 0: place_softmax(0, g_init + 1, 0.75, pvs[0] - 1, dense=True)
        elif n == NV - 1: place_softmax(n, pvs[n - 1] + 8, 2.2, pvs[n] - 1, dense=True)
        else: place_softmax(n, estart[n], estep, bn + 31)
    def fix_ops(kt): return [("V", "v_sub_f32 v%d, v%d, v%d" % (S[1] + 8 * kt + 4 * G + r, S[1] + 8 * kt + 4 * G + r, MX + G)) for G in range(2) for r in range(4)]
    G_.chain(fix_ops(0), b0 + 30, estart[1] - 1)
    G_.chain(fix_ops(1) + [("V", "v_sub_f32 v%d, 0, v%d" % (NEGM + 4 * G + r, MX + G)) for G in range(2) for r in range(4)], estart[1], min(estart[1] + 8 * estep + 6, b0 + 62))
    def place_dma(groups, g, dstep, tag):
        for pre, d, post in groups:
            g0 = g
            for x in pre: g0 = G_.put(g0 - 1, "S", ("ins", x), limit=g0 + 1) + 1
            g0 = G_.put(max(g, g0), "M", ("vm", d, tag), limit=max(g, g0) + 2)
            for x in post: G_.put(g0 + 1, "S", ("ins", x), limit=g0 + 2)
            g = max(g + dstep, g0 + 3)
        return g, g0
    place_dma(dma_ops(2), 3, 4, ("T", 2))
    lead_pf = lambda d, v: ([], "buffer_load_dword v%d, v%d, %s, s%d offen" % (d, v, srd("PF"), sPFO), ["s_add_u32 s%d, s%d, 0x40010000" % (sPFO, sPFO)])
    for tau in range(NT - 3):
        nn = tau - AT
        groups = dma_ops(tau + 3)
        pre_g = []
        if nn in (3, 7): pre_g = f2_dma_ops([0, 1, 2, 3])
        if nn == -4: groups = groups + f2_dma_ops([0, 1, 2, 3])
        extra = []
        if tau in (3, 7, 11): extra = [lead_pf(44, 43)]
        if nn in (1, 5, 9, 13): extra = [lead_pf(PFD, PFV)]
        if tau == 8: extra = [([], "buffer_load_dword v44, v42, %s, s%d offen" % (srd("W2"), sW2), [])]
        if tau == 9: extra = [([], "buffer_store_dword v46, v47, %s, s%d offen sc1" % (srd("WS"), sFLW), []), ([], "buffer_store_dword v46, v47, %s, s93 offen offset:64 sc1" % srd("WS"), [])]
        if nn in (10, 14): extra = [([], "buffer_atomic_add v3, v4, %s, s%d offen offset:4" % (srd("DBG"), sAT), ["s_sub_u32 s%d, s%d, 4096" % (sAT, sAT)])]
        if nn in (TL, TL + 1): extra = [(["s_add_u32 s17, s%d, %d" % (sWO, (nn - TL) * 896 * 128)], "buffer_load_dword v%d, v%d, %s, s17 offen" % (PFD, PFW, srd("WO")), [])]
        g = barpos[tau] + 3; hi = barpos[tau + 1] - 1
        dstep = min(dma_step, (hi - g) // (len(groups) + len(extra) + len(pre_g)))
        if pre_g: g, g0 = place_dma(pre_g, g, dstep, ("T", tau + 2))
        g, g0 = place_dma(groups, g, dstep, ("T", tau + 3))
        if extra: g, g0 = place_dma(extra, g, dstep, ("T", tau + 4))
        assert g0 <= barpos[tau + 1] + 1, (tau, g0, barpos[tau + 1])
    for s in range(1, 14):
        G_.chain(center_ops(s), mark[("F1", s - 1)] + 1, mark[("F1", s)] - 1)
    q0 = sb[7]; q1 = sb[14]
    ops = []
    for G in range(2):
        a = CI + G; t = TMP + G; g = ST + 8 + 4 * G
        ops += [("V", "v_cndmask_b32 v%d, 0, v%d, s[%d:%d]" % (a, g, sDG, sDG + 1))]
        ops += [("V", "v_cndmask_b32 v%d, v%d, v%d, s[%d:%d]" % (a, a, g + r, sDG + 2 * r, sDG + 2 * r + 1)) for r in range(1, 4)]
        ops += xlane("v_add_f32", a, t)
        ops += [("V", "v_mul_f32 v%d, v%d, v%d" % (t, DM + G, DM + G)), ("V", "v_mul_f32 v%d, 0x%x, v%d" % (a, f2u(1.0 / 448), a)), ("V", "v_sub_f32 v%d, v%d, v%d" % (a, a, t)),
                ("V", "v_max_f32 v%d, 0, v%d" % (a, a)),
                ("V", "v_cvt_pk_bf16_f32 v%d, v%d, v%d" % (a, a, a)), ("V", "v_lshlrev_b32 v%d, 16, v%d" % (a, a)),
                ("V", "v_add_f32 v%d, 0x%x, v%d" % (a, f2u(1e-5), a)), ("V", "v_cvt_pk_bf16_f32 v%d, v%d, v%d" % (a, a, a)), ("V", "v_lshlrev_b32 v%d, 16, v%d" % (a, a)),
                ("T", "v_sqrt_f32 v%d, v%d" % (a, a)), ("V", "v_cvt_pk_bf16_f32 v%d, v%d, v%d" % (a, a, a)), ("V", "v_lshlrev_b32 v%d, 16, v%d" % (a, a)),
                ("T", "v_rcp_f32 v%d, v%d" % (t, a)), ("V", "v_mul_f32 v%d, v%d, v%d" % (a, a, a)),
                ("V", "v_mul_f32 v%d, 0x%x, v%d" % (RSQ + G, f2u(LOG2E / 16), t)), ("V", "v_mul_f32 v%d, 0x%x, v%d" % (RSN + G, f2u(-LOG2E), t))]
    gv = G_.chain(ops, mark[("F1", 13)] + 24, q0 + 32)
    els = [(t, G, r) for t in range(7) for G in range(2) for r in range(4)]
    def stage(i, st):
        t, G, r = els[i]
        b = WA + 3 * (i % 4); hv = WA + 12 + (i % 2)
        ga = GU + ((0 * 7 + t) * 2 + G) * 4 + r; ua = GU + ((7 + t) * 2 + G) * 4 + r
        if st == 0: return [("V", "v_accvgpr_read_b32 v%d, a%d" % (b, ga)), ("V", "v_accvgpr_read_b32 v%d, a%d" % (b + 1, ua)), ("V", "v_mul_f32 v%d, v%d, v%d" % (b + 2, b, RSN + G)), ("T", "v_exp_f32 v%d, v%d" % (b + 2, b + 2))]
        if st == 1: return [("V", "v_mul_f32 v%d, v%d, v%d" % (b, b, b + 1)), ("V", "v_fma_f32 v%d, v%d, v%d, v%d" % (b + 2, b + 2, CI + G, CI + G)), ("T", "v_rcp_f32 v%d, v%d" % (b + 2, b + 2))]
        o = [("V", "v_mul_f32 v%d, v%d, v%d" % (hv, b, b + 2))]
        if r % 2 == 1: o.append(("V", "v_cvt_pk_bf16_f32 v%d, v%d, v%d" % (H(t // 2, G) + 2 * (t & 1) + r // 2, WA + 12, WA + 13)))
        return o
    ops = []
    for i in range(len(els) + 2):
        if i < len(els): ops += stage(i, 0)
        if 0 <= i - 1 < len(els): ops += stage(i - 1, 1)
        if 0 <= i - 2 < len(els): ops += stage(i - 2, 2)
    for G in range(2): ops += [("V", "v_mov_b32 v%d, 0" % (H(3, G) + 2)), ("V", "v_mov_b32 v%d, 0" % (H(3, G) + 3))]
    gsw = G_.chain(ops, max(gv + 1, q0 + 34), sb[13] + 10, window=1)
    gprev = gsw + 1
    for k in range(8):
        ops = []
        for G in range(2):
            q = QF(G, k)
            dst = (16 + 4 * k) if q < 128 + 16 else q
            for half in range(2):
                a = O + 8 * (2 * k + half) + 4 * G
                tb = WA + 4 * ((2 * (2 * k + G) + half) % 3)
                ops += [("V", "v_accvgpr_read_b32 v%d, a%d" % (tb + r, a + r)) for r in range(4)]
                ops += [("V", "v_mul_f32 v%d, v%d, v%d" % (tb + r, tb + r, RSQ + G)) for r in range(4)]
                ops += [("V", "v_cvt_pk_bf16_f32 v%d, v%d, v%d" % (dst + 2 * half + p, tb + 2 * p, tb + 2 * p + 1)) for p in range(2)]
            ops += [("T", "v_permlane32_swap_b32 v%d, v%d" % (dst + p, dst + 2 + p)) for p in range(2)]
            ops += [("T", "v_permlane16_swap_b32 v%d, v%d" % (dst + p, dst + 2 + p)) for p in range(2)]
        st = max(gprev, sb[13] + 8 * k + 8 + 4)
        en = max(st, min(mark[("QK0", k)] - 1, (sb[13] + 12 + 13 * (k + 1)) if k < 4 else 10 ** 9, q1 - 1 if k < 4 else 10 ** 9))
        gprev = G_.chain(ops, st, en, window=1)
    for i in range(16): G_.put(q1, "V", ("ins", "v_mov_b32 v%d, v%d" % (128 + i, 16 + i)), force=True)
    for t in range(4): G_.put(q1 + 1 + t, "V", ("ins", "v_add_u32 v%d, 0x20000, v%d" % (UA + t, TA + t)), force=True)
    G_.put(q1 + 6, "V", ("ins", "v_mov_b32 v%d, v43" % PFV), force=True); G_.put(q1 + 7, "V", ("ins", "v_mov_b32 v%d, v42" % PFW), force=True)
    G_.put(q1 + 8, "V", ("ins", "v_mov_b32 v4, v45"), force=True); G_.put(q1 + 9, "V", ("ins", "v_mov_b32 v%d, v47" % AVP), force=True)
    G_.put(b0 + 1, "V", ("ins", "v_mov_b32 v3, 1"), force=True)
    G_.put(b0 + 2, "V", ("ins", "v_lshrrev_b32 v2, 24, v4"), force=True); G_.put(b0 + 3, "V", ("ins", "v_and_b32 v2, 0x40, v2"), force=True)
    ta = AT + TL
    G_.chain([("V", "v_mov_b32 v6, 0"), ("V", "v_mov_b32 v5, 0x23000"), ("V", "v_add_u32 v7, v2, v5"),
              ("M", ("vm", "buffer_load_dword v6, v4, %s, s%d offen offset:4 sc1" % (srd("DBG"), sCW), "fpoll"))], sb[ta] + 1, sb[ta] + 10)
    G_.chain([("S", ("waitvm", "fpoll")), ("D", ("ds", "ds_write_b32 v7, v6", "fw"))], barpos[ta + 1] - 8, barpos[ta + 1] - 4)
    G_.put(barpos[ta + 1] - 1, "S", ("waitlg", "fw"), force=True)
    ops = [("D", ("ds", "ds_read_b32 v6, v5", "fr")), ("S", "s_mul_i32 s77, s%d, 112" % sQB), ("S", "s_mul_i32 s%d, s%d, 7" % (sT1, sH)),
           ("S", "s_add_u32 s77, s77, s%d" % sT1), ("S", "s_add_u32 s77, s77, s%d" % sW), ("S", "s_lshl_b32 s18, s77, 14"), ("S", "s_add_u32 s18, s18, 0x%x" % WS_F),
           ("S", "s_lshl_b32 s90, s77, 10"), ("S", "s_add_u32 s90, s90, 0x%x" % WS_G),
           ("S", ("waitlg", "fr")), ("V", "v_readfirstlane_b32 s%d, v6" % sFC)]
    if test_nof: ops += [("S", "s_bitcmp1_b32 %d, s%d\n    s_cselect_b32 s%d, 0, s%d" % (test_nof, sH, sFC, sFC))]
    ops += [("S", "s_cmp_eq_u32 s%d, 16\n    s_cselect_b32 s18, s18, 0x%x\n    s_cselect_b32 s90, s90, 0x%x\n    s_cselect_b32 s92, s%d, 0x%x" % (sFC, BIG, BIG, sFLW, BIG)),
           ("S", "s_add_u32 s19, s18, 0x10000"), ("S", "s_add_u32 s91, s90, 0x1000"), ("S", "s_cmp_eq_u32 s%d, 3\n    s_cselect_b32 s19, 0x%x, s19\n    s_cselect_b32 s91, 0x%x, s91" % (sW, BIG, BIG))]
    g = G_.chain(ops, barpos[ta + 1] + 1, barpos[ta + 1] + 20)
    f0 = g + 1; f1 = fsum_at[31] - 110
    for j in range(32):
        u = j & 1; hh = j >> 1
        gq = max(g + 1, f0 + ((f1 - f0) * j) // 31)
        if j >= 16: gq = max(gq, fsum_at[j - 16] + 2)
        gq = G_.put(gq, "M", ("vm", "buffer_load_dwordx4 %s, v%d, %s, s%d offen offset:%d sc1" % (r4(128 + 4 * (j % 16), "a"), VL16, srd("WS"), 18 + u, 1024 * (hh & 3)), ("fl", j)), limit=gq + 3)
        assert gq < fsum_at[j] - 40, (j, gq, fsum_at[j])
        if hh & 3 == 3: G_.put(gq + 1, "S", ("ins", "s_add_u32 s%d, s%d, 4096" % (18 + u, 18 + u)), limit=gq + 2)
        g = gq + 2
    ops = ["v_lshrrev_b32 v9, 4, v%d" % VL16, "v_and_b32 v10, 15, v9", "v_lshrrev_b32 v11, 4, v9", "v_lshrrev_b32 v12, 2, v10", "v_cmp_eq_u32 s[4:5], v12, v11", "v_and_b32 v13, 1, v10", "v_lshlrev_b32 v13, 4, v13",
           "v_mov_b32 v14, 0x3f80", "v_lshlrev_b32 v14, v13, v14", "v_cndmask_b32 v14, 0, v14, s[4:5]", "v_and_b32 v13, 2, v10", "v_cmp_eq_u32 s[4:5], 0, v13"]
    ops += ["v_mov_b32 v%d, 0" % (SELT + r) for r in (0, 1, 4, 5)] + ["v_cndmask_b32 v%d, 0, v14, s[4:5]" % (SELT + 2), "v_cndmask_b32 v%d, v14, 0, s[4:5]" % (SELT + 3)]
    G_.chain([("V", x) for x in ops], sb[ta] + 24, sb[ta + 2] + 20)
    bl = pvs[NV - 1]
    ops = []
    for u in range(2):
        ops += [("V", "v_cvt_pk_bf16_f32 v%d, v%d, v%d" % (16 + 4 * u + p, FST + 8 * u + 2 * p, FST + 8 * u + 2 * p + 1)) for p in range(4)]
        ops += [("M", ("vm", "buffer_store_dwordx4 %s, v%d, %s, s%d offen sc1" % (r4(16 + 4 * u), VL16, srd("WS"), 90 + u), ("st", -1)))]
    ops += [("V", "v_mov_b32 v%d, v%d" % (48 + r, SELT + r)) for r in range(6)] + [("V", "v_mov_b32 v%d, v%d" % (AVW, AVP))]
    G_.chain(ops, bl + 6, sb[OT] - 1)
    lf = LB[NV % 2]
    ops = []
    for G in range(2):
        ops += xlane("v_add_f32", lf + G, T0) + [("T", "v_rcp_f32 v%d, v%d" % (RL + G, lf + G))]
    gprev = G_.chain(ops, bl + 1, bl + 10)
    for k in range(8):
        ops = []
        for G in range(2):
            for half in range(2):
                a = O + 8 * (2 * k + half) + 4 * G
                tb = PT + 4 * ((2 * G + half) % 4)
                ops += [("V", "v_accvgpr_read_b32 v%d, a%d" % (tb + r, a + r)) for r in range(4)]
                ops += [("V", "v_cvt_pk_bf16_f32 v%d, v%d, v%d" % (OF(k, G) + 2 * half + p, tb + 2 * p, tb + 2 * p + 1)) for p in range(2)]
        st = max(gprev, bl + 4 * k + 4 + 5)
        en = max(st, min(mark[("O", k)] - 1, bl + 10 + 10 * (k + 1)))
        gprev = G_.chain(ops, st, en, window=1)
    gout = 0; lastst = {}
    for idx, (kind, g, acc, ch) in enumerate(outs):
        tb = TMP + 4 * (idx % 2)
        ops = []
        if kind == "S":
            ops += [("V", "v_mul_f32 v%d, v%d, v%d" % (acc + 4 * G + r, acc + 4 * G + r, RL + G)) for G in range(2) for r in range(4)]
        ops += [("V", "v_cvt_pk_bf16_f32 v%d, v%d, v%d" % (tb + 2 * G + p, acc + 4 * G + 2 * p, acc + 4 * G + 2 * p + 1)) for G in range(2) for p in range(2)]
        so = sFO if kind == "F" else sSOe
        ops += [("M", ("vm", "buffer_store_dwordx4 %s, v%d, %s, s%d offen sc1" % (r4(tb), VL16, srd("WS"), so), ("st", ch))), ("S", "s_add_u32 s%d, s%d, 16384" % (so, so))]
        st = max(g + 5, gout + 1)
        gout = G_.chain(ops, st, min(st + (7 if kind == "F" else 13), END))
        lastst[ch] = gout
    pub = {OT + 0: 0}
    for c in range(6):
        g = max(lastst[c] + pub_lag, barpos[OT + 0] + 2)
        if g > N + 10: continue
        g = G_.put(g - 1, "V", ("ins", "v_mov_b32 v3, %d" % (c + 1)), limit=g + 2)
        g = G_.put(g + 1, "S", ("waitvm", ("st", c)), limit=g + 3)
        G_.put(g, "M", ("vm", "buffer_store_dword v3, v%d, %s, s92 offen sc1" % (AVW, srd("WS")), "flg"), force=True)
    loops = [(sb[AT + 1], sb[AT + 5], sb[AT + 9], "A", range(5, 9)), (sb[AT + 9], sb[AT + 13], sb[AT + 17], "B", range(13, 17))]
    rare_sites = []
    def stamp(k):
        I("s_memtime s[94:95]"); I("s_waitcnt lgkmcnt(0)")
        I("s_sub_u32 s94, s94, s98"); I("v_writelane_b32 v0, s94, %d" % k)
    def rstamp(k):
        I("s_memrealtime s[94:95]"); I("s_waitcnt lgkmcnt(0)"); I("v_writelane_b32 v0, s94, %d" % k)
    mk_ = {}
    for i in range(END + 1):
        for (ls, le, ce, nm, drop) in loops:
            if i == le: mk_[nm + "1"] = len(P.lines)
            if i == ce:
                m0_, m1_ = mk_[nm + "0"], mk_[nm + "1"]
                A = P.lines[m0_:m1_]; B = P.lines[m1_:]
                norm = lambda L_: [re.sub(r"L_(rare|back)_\d+", "L_x", x) for x in L_]
                assert len(A) == len(B), (nm, len(A), len(B), [(a, b) for a, b in zip(norm(A), norm(B)) if a != b][:6])
                for k_, (a_, b_) in enumerate(zip(norm(A), norm(B))):
                    if a_ != b_:
                        ma = re.fullmatch(r"\s*s_waitcnt vmcnt\((\d+)\)", a_); mb = re.fullmatch(r"\s*s_waitcnt vmcnt\((\d+)\)", b_)
                        assert ma and mb, (nm, a_, b_)
                        if int(mb.group(1)) < int(ma.group(1)): P.lines[m0_ + k_] = b_
                del P.lines[m1_:]
                rare_sites = [x for x in rare_sites if x not in drop]
                I("s_add_u32 s%d, s%d, 1" % (sLOOP, sLOOP)); I("s_cmp_lt_u32 s%d, 7" % sLOOP); I("s_cbranch_scc1 L_loop%s" % nm)
        if timing and i in sb:
            t_ = sb.index(i)
            if t_ <= AT + 1: stamp(t_)
            elif t_ == AT + 9: stamp(17)
            elif t_ >= AT + 17: stamp(t_ - 14)
            if t_ == AT + 17: rstamp(41)
            if i == N: rstamp(42)
        for (ls, le, ce, nm, drop) in loops:
            if i == ls:
                I("s_mov_b32 s%d, 0" % sLOOP)
                P.label("L_loop%s" % nm); mk_[nm + "0"] = len(P.lines)
        for it in G_.items(i):
            if it[0] == "ds": P.ds(it[1], it[2])
            elif it[0] == "bar":
                tau = it[1]
                if tau + 1 < NT or tau in pub:
                    P.wait(vm=[("T", tau + 1)] + [("st", c) for c in range(-1, pub.get(tau, -1))]); I("s_barrier")
            elif it[0] == "vm": P.vmem(it[1], it[2])
            elif it[0] == "waitslot":
                if i > 0: P.wait(lg=[("f", it[1])], maxq=12)
            elif it[0] == "chk":
                if it[1] > 0:
                    I("s_cbranch_vccnz L_rare_%d" % it[1]); P.label("L_back_%d" % it[1]); rare_sites.append(it[1])
            elif it[0] == "nil": pass
            elif it[0] == "waitvm": P.wait(vm=[it[1]])
            elif it[0] == "waitlg": P.wait(lg=[it[1]])
            else:
                for x in it[1].split("\n"): I(x.strip())
        if i < N:
            f = fr[i // 2]; d, b, c, ao = f["mf"][i % 2]
            if i % 2 == 0: P.wait(lg=[("f", i // 2)], vm=[f["vmwait"]] if "vmwait" in f else [])
            I("%s %s, %s, %s, %s" % (MF, d, ao or f["fr"], b, c))
    SEL = 48; FS = 16; SS = 32; XR = 96; GR = 100; TT = 112; XV = 120; PV = 123; V4K = 104; VS = 124; TK = 126
    sTK, sRD, sPEND, sN, sSP, sBF, sBS, sXO, sBG, sTHR, sALL = 77, 78, 79, 80, 81, 4, 5, 6, 7, 8, 83
    I("v_mov_b32 v5, 0"); I("v_mov_b32 v3, 7"); I("v_mov_b32 v7, 1"); I("v_lshrrev_b32 v9, 4, v%d" % VL16)
    I("s_waitcnt vmcnt(0)"); P.vm = []
    I("buffer_store_dword v3, v%d, %s, s92 offen sc1" % (AVW, srd("WS")))
    I("s_barrier")
    if timing: stamp(33)
    I("s_cmp_eq_u32 s%d, 16" % sFC); I("s_cbranch_scc1 L_arr"); I("v_mov_b32 v7, 0x101"); P.label("L_arr")
    I("buffer_atomic_add v7, v4, %s, s%d offen sc0" % (srd("DBG"), sCW))
    I("s_mov_b32 s%d, 0" % sALL); I("s_mov_b32 s%d, 0" % sRD)
    I("v_and_b32 v10, 15, v9"); I("v_lshrrev_b32 v11, 4, v9")
    I("v_mul_u32_u24 v%d, 896, v10" % XV); I("v_lshl_add_u32 v%d, v11, 3, v%d" % (XV, XV)); I("v_add_u32 v%d, 14336, v%d" % (XV + 1, XV))
    I("v_min_u32 v%d, 16, v9" % PV); I("v_lshlrev_b32 v%d, 2, v%d" % (PV, PV)); I("s_mov_b32 s9, s%d" % sW); I("s_mov_b32 s10, 0")
    for j in range(4): I("v_add_u32 v%d, %d, v%d" % (V4K + j, 4096 * j, VL16))
    I("s_cmp_lg_u32 s%d, 16" % sFC); I("s_cbranch_scc1 L_done")
    P.label("L_ticket")
    I("v_mov_b32 v%d, 1" % TK); I("buffer_atomic_add v%d, v%d, %s, s93 offen offset:64 sc0" % (TK, AVW, srd("WS"))); I("s_waitcnt vmcnt(0)")
    I("v_readfirstlane_b32 s%d, v%d" % (sTK, TK)); I("s_nop 0")
    P.label("L_unit")
    I("s_cmp_ge_u32 s%d, 28" % sTK); I("s_cbranch_scc1 L_done")
    I("s_mov_b32 s%d, %d" % (sSP, spin))
    I("s_lshr_b32 s%d, s%d, 2" % (sTHR, sTK)); I("s_mov_b32 s85, s%d" % sTK)
    I("s_lshl_b32 s84, s%d, 2" % sQB); I("s_add_u32 s84, s84, s%d" % sW)
    I("s_mul_i32 s16, s84, 28"); I("s_add_u32 s16, s16, s85")
    I("s_lshl_b32 s17, s16, 14"); I("s_add_u32 s%d, s17, 0x%x" % (sBF, WS_F)); I("s_add_u32 s%d, s17, 0x%x" % (sBS, WS_S))
    I("s_lshl_b32 s17, s16, 10"); I("s_add_u32 s%d, s17, 0x%x" % (sBG, WS_G))
    I("s_mul_i32 s16, s84, %d" % (32 * 896)); I("s_lshl_b32 s17, s85, 5"); I("s_add_u32 s%d, s16, s17" % sXO)
    for G in range(2): I("buffer_load_dwordx2 v[%d:%d], v%d, %s, s%d offen" % (XR + 2 * G, XR + 2 * G + 1, XV + G, srd("X"), sXO))
    for r in range(8): I("v_mov_b32 v%d, 0" % (SS + r))
    I("s_mov_b32 s%d, 0xffff" % sPEND); I("s_mov_b32 s19, 1")
    if test_fail: I("s_cmp_eq_u32 s%d, 1" % sALL); I("s_cbranch_scc1 L_tf"); I("s_cmp_eq_u32 s%d, %d" % (sTK, test_fail)); I("s_cbranch_scc1 L_giveup"); P.label("L_tf")
    I("s_cmp_eq_u32 s%d, 0" % sALL); I("s_cbranch_scc1 L_round")
    for hh in range(16): I("buffer_load_dwordx4 %s, v%d, %s, s%d offen offset:%d sc1" % (r4(4 * hh, "a"), V4K + (hh >> 2), srd("WS"), sBF, 1024 * (hh & 3)))
    I("s_waitcnt vmcnt(0)")
    for hh in range(16):
        for hi in range(2):
            d = r4(FS + 4 * hi); I("%s %s, %s, %s, %s" % (MF, d, r4(SEL + (0 if hi else 2)), r4(4 * hh, "a"), "0" if hh == 0 else d))
    I("s_nop 7")
    for p in range(4): I("v_cvt_pk_bf16_f32 v%d, v%d, v%d" % (GR + p, FS + 2 * p, FS + 2 * p + 1))
    I("s_mov_b32 s19, 2"); I("s_mov_b32 s82, s%d" % sPEND); I("s_branch L_sel")
    P.label("L_round")
    I("buffer_load_dword v6, v%d, %s, s93 offen sc1" % (PV, srd("WS"))); I("s_waitcnt vmcnt(0)")
    I("v_cmp_lt_u32 vcc, s%d, v6" % sTHR); I("v_cmp_lt_u32 s[16:17], 0, v6"); I("v_readlane_b32 s10, v6, 16"); I("s_and_b32 s82, vcc_lo, s%d" % sPEND)
    I("s_cmp_lg_u32 s19, 1"); I("s_cbranch_scc1 L_nog"); I("s_cmp_lg_u32 s16, -1"); I("s_cbranch_scc1 L_nog")
    I("buffer_load_dwordx4 %s, v%d, %s, s%d offen sc1" % (r4(GR), VL16, srd("WS"), sBG)); I("s_mov_b32 s19, 2"); I("s_branch L_sel")
    P.label("L_nog")
    I("s_cmp_lg_u32 s82, 0"); I("s_cbranch_scc1 L_sel")
    I("s_sleep 1"); I("s_sub_u32 s%d, s%d, 1" % (sSP, sSP)); I("s_cmp_lg_u32 s%d, 0" % sSP); I("s_cbranch_scc1 L_round")
    P.label("L_giveup")
    I("v_mov_b32 v6, 0x100"); I("buffer_atomic_add v6, v%d, %s, s%d offen sc0" % (AVW, srd("DBG"), sCW)); I("s_waitcnt vmcnt(0)")
    I("v_readfirstlane_b32 s82, v6"); I("s_nop 0"); I("s_and_b32 s82, s82, 31"); I("s_cmp_lg_u32 s82, 16"); I("s_cbranch_scc1 L_done")
    I("s_mov_b32 s%d, 1" % sALL); I("s_branch L_unit")
    P.label("L_sel")
    I("s_mov_b32 s%d, 0" % sN)
    for k in range(16):
        I("s_cmp_eq_u32 s82, 0"); I("s_cbranch_scc1 L_ldd")
        I("s_ff1_i32_b32 s84, s82"); I("s_bitset0_b32 s82, s84"); I("s_bitset0_b32 s%d, s84" % sPEND); I("s_lshl_b32 s84, s84, 10"); I("s_add_u32 s84, s84, s%d" % sBS); I("s_add_u32 s%d, s%d, 1" % (sN, sN))
        I("buffer_load_dwordx4 %s, v%d, %s, s84 offen sc1" % (r4(128 + 4 * k), VL16, srd("WS")))
    P.label("L_ldd")
    I("s_waitcnt vmcnt(0)")
    for k in range(16):
        I("s_cmp_le_u32 s%d, %d" % (sN, k)); I("s_cbranch_scc1 L_mmd")
        for hi in range(2):
            d = r4(SS + 4 * hi); I("%s %s, %s, %s, %s" % (MF, d, r4(SEL + (0 if hi else 2)), r4(128 + 4 * k), d))
    P.label("L_mmd")
    def rnd2(a_):
        I("v_cvt_pk_bf16_f32 v%d, v%d, v%d" % (TT, a_, a_ + 1)); I("v_lshlrev_b32 v%d, 16, v%d" % (a_, TT)); I("v_and_b32 v%d, s%d, v%d" % (a_ + 1, sMASK, TT))
    I("s_cmp_lg_u32 s19, 2"); I("s_cbranch_scc1 L_nosilu")
    I("s_mov_b32 s19, 0")
    for j in range(4):
        f_ = FS + 2 * j
        I("v_lshlrev_b32 v%d, 16, v%d" % (f_, GR + j)); I("v_and_b32 v%d, s%d, v%d" % (f_ + 1, sMASK, GR + j))
        for e in range(2): I("v_mul_f32 v%d, 0x%x, v%d" % (TT + 1 + e, f2u(-LOG2E), f_ + e))
        for e in range(2): I("v_exp_f32 v%d, v%d" % (TT + 1 + e, TT + 1 + e))
        for e in range(2): I("v_add_f32 v%d, 1.0, v%d" % (TT + 1 + e, TT + 1 + e))
        for e in range(2): I("v_rcp_f32 v%d, v%d" % (TT + 1 + e, TT + 1 + e))
        for e in range(2): I("v_mul_f32 v%d, v%d, v%d" % (f_ + e, f_ + e, TT + 1 + e))
        rnd2(f_)
    P.label("L_nosilu")
    I("s_or_b32 s82, s%d, s19" % sPEND); I("s_cmp_lg_u32 s82, 0"); I("s_cbranch_scc1 L_round")
    I("s_nop 5")
    for j in range(4):
        f_ = FS + 2 * j; s_ = SS + 2 * j
        rnd2(s_)
        for e in range(2): I("v_mul_f32 v%d, v%d, v%d" % (s_ + e, s_ + e, f_ + e))
        rnd2(s_)
        I("v_lshlrev_b32 v%d, 16, v%d" % (TT + 1, XR + j)); I("v_and_b32 v%d, s%d, v%d" % (TT + 2, sMASK, XR + j))
        for e in range(2): I("v_add_f32 v%d, v%d, v%d" % (s_ + e, s_ + e, TT + 1 + e))
        I("v_cvt_pk_bf16_f32 v%d, v%d, v%d" % (TT + 4 + j, s_, s_ + 1))
        if j % 2 == 1:
            I("buffer_store_dwordx2 v[%d:%d], v%d, %s, s%d offen" % (TT + 3 + j, TT + 4 + j, XV + (j >> 1), srd("OUT"), sXO))
    I("s_cmp_lg_u32 s%d, 0" % sRD); I("s_cbranch_scc1 L_redo")
    I("s_cmp_lt_u32 s10, 28"); I("s_cbranch_scc1 L_ticket"); I("s_branch L_done")
    P.label("L_redo")
    I("s_add_u32 s%d, s%d, 1" % (sTK, sTK)); I("s_waitcnt vmcnt(0)"); I("s_branch L_unit")
    P.label("L_done")
    I("s_cmp_lg_u32 s%d, 0" % sRD); I("s_cbranch_scc1 L_fin")
    I("s_cmp_lg_u32 s%d, 0" % sW); I("s_cbranch_scc1 L_meet")
    I("s_waitcnt vmcnt(0)"); I("v_readfirstlane_b32 s82, v7"); I("s_nop 1"); I("v_mov_b32 v6, s82"); I("ds_write_b32 v5, v6"); I("s_waitcnt lgkmcnt(0)")
    P.label("L_meet")
    I("s_barrier")
    I("ds_read_b32 v6, v5"); I("s_waitcnt lgkmcnt(0)"); I("v_readfirstlane_b32 s82, v6"); I("s_nop 0")
    I("s_and_b32 s84, s82, 31"); I("s_cmp_lg_u32 s84, 15"); I("s_cbranch_scc1 L_fin")
    I("s_lshr_b32 s82, s82, 8"); I("s_cmp_lg_u32 s%d, 16" % sFC); I("s_cselect_b32 s84, 1, 0"); I("s_or_b32 s82, s82, s84")
    I("s_cmp_eq_u32 s82, 0"); I("s_cbranch_scc1 L_fin")
    I("s_mov_b32 s%d, 1" % sRD); I("s_mov_b32 s%d, 1" % sALL); I("s_mov_b32 s%d, 0" % sTK); I("s_branch L_unit")
    P.label("L_fin")
    if timing:
        I("s_waitcnt vmcnt(0)"); P.vm = []
        stamp(34); rstamp(43); I("v_writelane_b32 v0, s100, 40")
        I("s_lshl_b32 s94, s2, 2"); I("s_add_u32 s94, s94, s%d" % sW); I("s_lshl_b32 s94, s94, 10"); I("s_add_u32 s94, s94, 0x%x" % WS_T)
        I("buffer_store_dword v0, v%d, %s, s94 offen" % (VL16, srd("WS")))
    P.label("L_end"); I("s_endpgm")
    P.label("L_code_end")
    for n in rare_sites:
        P.label("L_rare_%d" % n); I("s_mov_b32 s%d, %d" % (sRET, n)); I("s_branch L_rp_%d" % (n % 2))
    for par in range(2):
        P.label("L_rp_%d" % par)
        I("s_nop 15")
        s = S[par]; s2 = S[1 - par]; lo = LB[par]; ln = LB[1 - par]; pk = PK[par]
        for G in range(2):
            e = [s + 8 * kt + 4 * G + r for kt in range(2) for r in range(4)]
            e2 = [s2 + 8 * kt + 4 * G + r for kt in range(2) for r in range(4)]
            m = MX + G
            I("v_log_f32 v%d, v%d" % (m, lo + G))
            I("v_max3_f32 v%d, v%d, v%d, v%d" % (T0, e[0], e[1], e[2])); I("v_max3_f32 v%d, v%d, v%d, v%d" % (T0, T0, e[3], e[4]))
            I("v_max3_f32 v%d, v%d, v%d, v%d" % (T0, T0, e[5], e[6])); I("v_max3_f32 v%d, v%d, v%d, v%d" % (m, m, T0, e[7]))
            for k, t in xlane("v_max_f32", m, T0): I(t)
            I("v_max_f32 v%d, 0, v%d" % (m, m))
            I("v_exp_f32 v%d, -v%d" % (TC, m))
            for x in e + e2 + [NEGM + 4 * G + r for r in range(4)]: I("v_sub_f32 v%d, v%d, v%d" % (x, x, m))
            I("v_mul_f32 v%d, v%d, v%d" % (lo + G, lo + G, TC))
            for t in range(16):
                for r in range(4): I("v_accvgpr_read_b32 v%d, a%d" % (PT + r, O + 8 * t + 4 * G + r))
                for r in range(4): I("v_mul_f32 v%d, v%d, v%d" % (PT + r, PT + r, TC))
                for r in range(4): I("v_accvgpr_write_b32 a%d, v%d" % (O + 8 * t + 4 * G + r, PT + r))
            for j, x in enumerate(e): I("v_exp_f32 v%d, v%d" % (PT + j, x))
            I("v_add_f32 v%d, v%d, v%d" % (ln + G, lo + G, PT))
            for j in range(1, 8): I("v_add_f32 v%d, v%d, v%d" % (ln + G, ln + G, PT + j))
            for j in range(4): I("v_cvt_pk_bf16_f32 v%d, v%d, v%d" % (pk + 4 * G + j, PT + 2 * j, PT + 2 * j + 1))
        I("s_nop 3")
        mine = [n for n in rare_sites if n % 2 == par]
        for n in mine[:-1]:
            I("s_cmp_eq_u32 s%d, %d" % (sRET, n)); I("s_cbranch_scc1 L_back_%d" % n)
        I("s_branch L_back_%d" % mine[-1])
    rep = []
    P.lines = fix_hazards(P.lines, rep)
    if verbose:
        print("K1: MFMAs(virtual) %d, nops inserted %d (total ws %d) pub %s" % (N, len(rep), sum(r[1] for r in rep), pub))
        print("penalty per step:", [G_.total_pen(sb[t], sb[t + 1]) for t in range(len(sb) - 1)])
    for p in check_text(P.text()): print(p)
    return P.text(), rep, G_, sb

def head():
    import os
    p = "cdna_kernels/%s.s.ref" % NAME
    return open(p).read().split("; Override launch")[0] if os.path.exists(p) else ""
def build(**kw):
    k1, rep, G_, sb = gen_k1(**kw)
    s = head()
    s += "; @launch grid=(256,1,1) block=(256,1,1) lds=147456\n"
    s += '.amdgcn_target "amdgcn-amd-amdhsa--gfx950"\n.text\n'
    s += ".globl %s\n.p2align 8\n.type %s,@function\n%s:\n%s" % (K1, K1, K1, k1)
    s += '''.section .rodata,"a"
.p2align 6
.amdhsa_kernel %s
  .amdhsa_next_free_vgpr 512
  .amdhsa_next_free_sgpr 102
  .amdhsa_accum_offset 256
  .amdhsa_group_segment_fixed_size 0
  .amdhsa_kernarg_size 96
  .amdhsa_user_sgpr_count 2
  .amdhsa_user_sgpr_kernarg_segment_ptr 1
  .amdhsa_system_sgpr_workgroup_id_x 1
.end_amdhsa_kernel
''' % K1
    return s, rep, G_, sb

if __name__ == "__main__":
    import json
    if len(sys.argv) > 1:
        for name, kw in json.loads(sys.argv[1]).items():
            open(name, "w").write(build(verbose=False, **kw)[0])
    else:
        open("k9_a.s", "w").write(build()[0])
        open("k9_fail.s", "w").write(build(test_fail=5, verbose=False)[0])
        open("k9_nof.s", "w").write(build(test_nof=0x0410, spin=40, verbose=False)[0])
        open("k9_at.s", "w").write(build(timing=True, verbose=False)[0])
```

```python
import sys, struct
from gen import *
NAME = "recurrent_scan__mha_block_cached__glu_gated_swiglu__prompt"
K1 = NAME + "_kernel"
LOG2E = 1.4426950408889634
def f2u(x): return struct.unpack("<I", struct.pack("<f", x))[0]
def r4(x, p="v"): return "%s[%d:%d]" % (p, x, x + 3)
WS_S = 0x0; WS_F = 0x2000000; WS_FL = 0x4000000; WS_G = 0x4100000; WS_T = 0xa000000
BIG = 0x40000000
MF = "v_mfma_f32_16x16x32_bf16"

def gen_k1(L=10, LW=9, estep=3, e0=8, timing=False, verbose=True, bar_off=25, dma_step=6, spin=3000, test_fail=0, test_nof=0, pub_lag=50, gray=1, r1mask=0x00ffffff, poll2=16, r2delay=12, r1_at=4, sum_ks=8):
    P = Prog(); I = P.ins
    O = 0; GU = 128; FRA = 192; FRF = 128
    S = [16, 32]; NEGM = 48; LB = [56, 58]; MX = 60; TC = 62; T0 = 63
    WA = 48; FRV = 64; PT = 64; PK = [80, 88]
    KA = 96; VA = 100; KD = 108; VD = 112; TA = 116; TD = 124
    XC = lambda s, G: 128 + 8 * (13 - s) + 4 * G
    QF = lambda G, k: 128 + 32 * G + 4 * k
    H = lambda k, G: XC(k, G)
    OF = lambda k, G: 128 + 8 * k + 4 * G
    VAL = 240; WD = 248; QD = 252
    PFV = 244; PFD = 245; PFW = 246; PF2 = 243
    FA = [192, 200]; AVP = 247; AVW = 54
    ST = 16
    VL16 = 1; MB = 2; RSQ = 2; DM = 4; RSN = 4; CI = 6; RL = 60
    TMP = 8
    SRD = dict(X=28, K=32, V=36, WQ=40, WO=44, W1=48, W3=52, W2=56, WS=60, DBG=20, OUT=24, PF=12)
    def srd(n): return "s[%d:%d]" % (SRD[n], SRD[n] + 3)
    sH, sQB, sW, sM0, sSO, sLOOP, sTH, sRET, sCW, sFO, sSOe, sFC = 64, 65, 66, 67, 68, 70, 71, 72, 73, 74, 75, 76
    sW13, sWQ, sW2, sWO, sK, sV, sT0, sT1, sMASK, sAT, sFLW = 78, 79, 80, 81, 82, 83, 84, 85, 86, 87, 3
    sDG = 4; sPFO = 16
    I("s_cmp_ge_u32 s2, 256"); I("s_cbranch_scc1 L_end")
    I("s_load_dwordx16 s[4:19], s[0:1], 0"); I("s_load_dwordx8 s[20:27], s[0:1], 64")
    if timing: I("s_memtime s[98:99]"); I("s_memrealtime s[100:101]")
    I("s_and_b32 s%d, s2, 7" % sH); I("s_lshr_b32 s%d, s2, 3" % sQB)
    I("s_lshr_b32 s%d, s%d, 4" % (sT0, sQB)); I("s_lshl_b32 s%d, s%d, 1" % (sH, sH)); I("s_add_u32 s%d, s%d, s%d" % (sH, sH, sT0))
    I("s_and_b32 s%d, s%d, 15" % (sQB, sQB))
    I("v_lshrrev_b32 v8, 6, v0"); I("s_nop 0"); I("v_readfirstlane_b32 s%d, v8" % sW)
    I("v_and_b32 v9, 63, v0"); I("v_and_b32 v10, 15, v0"); I("v_bfe_u32 v11, v0, 4, 2")
    I("v_lshlrev_b32 v%d, 4, v9" % VL16)
    I("s_lshl_b32 s%d, s%d, 2" % (sT0, sQB)); I("s_add_u32 s%d, s%d, s%d" % (sT0, sT0, sW))
    I("s_getpc_b64 s[88:89]"); P.label("L_pc")
    I("s_and_b32 s%d, s%d, 15" % (sT1, sT0)); I("s_lshl_b32 s%d, s%d, 13" % (sT1, sT1))
    I("v_lshlrev_b32 v14, 7, v9"); I("v_add_u32 v14, s%d, v14" % sT1); I("v_min_u32 v14, L_code_end-L_pc-4, v14")
    P.vmem("global_load_dword v44, v14, s[88:89]", "cpf")
    I("s_mul_i32 s%d, s%d, %d" % (sSO, sQB, 128 * 896))
    I("s_lshl_b32 s%d, s%d, 5" % (sT1, sW)); I("s_lshl_b32 s%d, s%d, 12" % (sM0, sW))
    I("v_lshrrev_b32 v14, 3, v9"); I("v_add_u32 v14, s%d, v14" % sT1); I("v_mul_u32_u24 v14, 896, v14")
    I("v_bfe_u32 v15, v0, 1, 2"); I("v_xor_b32 v15, v15, v11"); I("v_lshl_add_u32 v14, v15, 5, v14"); I("v_and_b32 v15, 1, v0"); I("v_lshl_add_u32 v14, v15, 4, v14")
    for j in range(4): I("v_add_u32 v%d, %d, v14" % (TD + j, j * (8 * 896 - 1024)))
    Q_ = []; J = Q_.append
    J("s_mul_i32 s%d, s%d, 224" % (sW13, sH))
    J("s_lshr_b32 s%d, s%d, 1" % (sK, sW)); J("s_lshl_b32 s%d, s%d, 5" % (sK, sK)); J("s_and_b32 s%d, s%d, 1" % (sV, sW)); J("s_lshl_b32 s%d, s%d, 2" % (sV, sV))
    J("s_add_u32 s%d, s%d, s%d" % (sK, sK, sV))
    J("v_add_u32 v12, s%d, v11" % sK); J("v_mul_u32_u24 v12, 3584, v12")
    J("v_and_b32 v13, 1, v10"); J("v_lshl_add_u32 v12, v13, 4, v12"); J("v_lshrrev_b32 v13, 1, v10")
    for j in range(4):
        J("v_add_u32 v14, %d, v11" % (4 * (j & 1))); J("v_xor_b32 v14, v14, v13"); J("v_min_u32 v14, 6, v14"); J("v_lshl_add_u32 v14, v14, 5, v12")
        J("v_add_u32 v%d, %d, v14" % (WD + j, j * (8 * 3584 - 1024)))
    NOK = len(Q_)
    def mk(n, lo, size, add=None, f=None):
        f = f or J; d = SRD[n]
        if add is None: f("s_mov_b32 s%d, s%d" % (d, lo)); f("s_mov_b32 s%d, s%d" % (d + 1, lo + 1))
        else: f("s_add_u32 s%d, s%d, s%d\n    s_addc_u32 s%d, s%d, 0" % (d, lo, add, d + 1, lo + 1))
        f("s_mov_b32 s%d, 0x%x" % (d + 2, size)); f("s_mov_b32 s%d, 0x20000" % (d + 3))
    mk("W1", 16, 448 * 3584); mk("W3", 18, 448 * 3584)
    J("s_lshl_b32 s%d, s%d, 20" % (sK, sH))
    mk("K", 6, 0x100000, sK); mk("V", 8, 0x100000, sK)
    mk("WQ", 10, 448 * 8192); mk("WO", 12, 4096 * 896); mk("W2", 20, 1792 * 896); mk("WS", 26, 0x10000000)
    J("s_mov_b32 s20, s24"); J("s_mov_b32 s21, s25"); J("s_mov_b32 s24, s22"); J("s_mov_b32 s25, s23")
    J("s_mov_b32 s22, 256"); J("s_mov_b32 s23, 0x20000"); J("s_mov_b32 s26, %d" % (2048 * 896)); J("s_mov_b32 s27, 0x20000")
    J("s_lshl_b32 s%d, s%d, 4" % (sCW, sQB)); J("s_add_u32 s%d, s%d, 4096" % (sAT, sCW))
    J("s_lshl_b32 s%d, s%d, 5" % (sFLW, sT0)); J("s_add_u32 s%d, s%d, s%d" % (sFLW, sFLW, sH)); J("s_lshl_b32 s%d, s%d, 2" % (sFLW, sFLW)); J("s_add_u32 s%d, s%d, 0x%x" % (sFLW, sFLW, WS_FL))
    J("s_and_b32 s93, s%d, 0xffffff80" % sFLW)
    J("v_mov_b32 v47, 0x7f000000"); J("v_cmp_eq_u32 vcc, 0, v9"); J("s_nop 0"); J("v_cndmask_b32 v47, v47, 0, vcc")
    J("v_mov_b32 v45, 0x7f000000"); J("v_cmp_eq_u32 vcc, 0, v0"); J("v_mov_b32 v46, 0"); J("v_cndmask_b32 v45, v45, 0, vcc")
    J("s_lshl_b32 s%d, s%d, 9" % (sWQ, sH)); J("s_mul_i32 s%d, s%d, %d" % (sWO, sH, 256 * 896))
    J("s_mul_i32 s%d, s%d, %d" % (sFO, sT0, 28 * 16)); J("s_add_u32 s%d, s%d, s%d" % (sFO, sFO, sH)); J("s_lshl_b32 s%d, s%d, 10" % (sFO, sFO))
    J("s_add_u32 s%d, s%d, 0x%x" % (sSOe, sFO, WS_S))
    J("s_lshl_b32 s%d, s%d, 4" % (sFO, sT0)); J("s_add_u32 s%d, s%d, s%d" % (sFO, sFO, sH)); J("s_lshl_b32 s%d, s%d, 13" % (sFO, sFO)); J("s_add_u32 s%d, s%d, 0x%x" % (sFO, sFO, WS_F))
    J("s_add_u32 s91, s%d, 0x%x" % (sWO, 13 * 0x400000)); J("s_and_b32 s90, s%d, 3" % sH); J("s_lshl_b32 s90, s90, 8"); J("s_add_u32 s90, s90, 0x%x" % (12 * 0x400000))
    J("s_mov_b32 s%d, 0x53800000" % sTH); J("s_mov_b32 s%d, 0xffff0000" % sMASK)
    for r in range(4):
        m = (1 << r) | (1 << (20 + r)) | (1 << (40 + r)) | (1 << (60 + r))
        J("s_mov_b32 s%d, 0x%x" % (sDG + 2 * r, m & 0xffffffff)); J("s_mov_b32 s%d, 0x%x" % (sDG + 2 * r + 1, m >> 32))
    for r in range(4): J("v_mov_b32 v%d, 0x3f803f80" % (ST + 16 + r))
    J("v_and_b32 v12, 31, v0"); J("v_bfe_u32 v13, v0, 5, 1")
    J("v_lshlrev_b32 v14, 9, v10")
    for s in range(4):
        J("v_add_u32 v15, %d, v11" % (4 * s)); J("v_xor_b32 v15, v15, v10"); J("v_lshl_add_u32 v%d, v15, 4, v14" % (KA + s))
    J("v_bfe_u32 v4, v0, 2, 4"); J("v_and_b32 v5, 3, v0"); J("v_and_b32 v6, 7, v4")
    J("v_lshlrev_b32 v14, 8, v4"); J("v_lshl_add_u32 v14, v5, 3, v14")
    for t in range(7):
        J("v_xor_b32 v15, %d, v6" % t); J("v_lshl_add_u32 v%d, v15, 5, v14" % (WA + t)); J("v_add_u32 v%d, 0x10000, v%d" % (WA + 7 + t, WA + t))
    J("v_lshlrev_b32 v14, 9, v4"); J("v_lshl_add_u32 v14, v5, 3, v14")
    for b in range(8):
        J("v_xor_b32 v15, %d, v6" % b); J("v_lshl_add_u32 v%d, v15, 5, v14" % (VAL + b)); J("v_add_u32 v%d, 0x10000, v%d" % (VA + b, VAL + b))
    J("v_lshlrev_b32 v14, 7, v4"); J("v_lshl_add_u32 v14, v5, 3, v14"); J("v_bfe_u32 v7, v4, 1, 2")
    for t in range(4):
        J("v_xor_b32 v15, %d, v7" % t); J("v_lshl_add_u32 v%d, v15, 5, v14" % (TA + t)); J("v_add_u32 v%d, 0x10000, v%d" % (TA + 4 + t, TA + t))
    J("s_and_b32 s%d, s%d, 1" % (sT1, sW)); J("s_lshl_b32 s%d, s%d, 3" % (sT1, sT1))
    J("v_lshlrev_b32 v14, 9, v13"); J("v_add_u32 v14, s%d, v14" % sM0)
    for j in range(4):
        J("v_add_u32 v15, %d, v13" % (2 * j)); J("v_add_u32 v15, s%d, v15" % sT1); J("v_xor_b32 v15, v15, v12"); J("v_lshl_add_u32 v%d, v15, 4, v14" % (KD + j))
    J("s_lshl_b32 s%d, s%d, 1" % (sT1, sT1)); J("s_lshr_b32 s%d, s%d, 1" % (sK, sW)); J("s_lshl_b32 s%d, s%d, 2" % (sK, sK)); J("s_add_u32 s%d, s%d, s%d" % (sT1, sT1, sK))
    J("v_add_u32 v7, s%d, v13" % sT1); J("v_lshlrev_b32 v7, 13, v7")
    for j in range(4):
        J("v_add_u32 v15, %d, v13" % (2 * j)); J("v_lshlrev_b32 v15, 1, v15"); J("v_xor_b32 v15, v15, v12")
        J("v_lshl_add_u32 v%d, v15, 4, v14" % (VD + j))
        J("v_lshl_add_u32 v15, v15, 4, v7"); J("v_add_u32 v%d, %d, v15" % (QD + j, (8 * (j >> 1) + 2 * (j & 1)) * 8192 - 1024 * j))
    J("s_mov_b32 s%d, 0" % sK); J("s_mov_b32 s%d, 0" % sV)
    J("v_lshrrev_b32 v14, 3, v10"); J("v_lshlrev_b32 v14, 10, v14"); J("v_and_b32 v15, 7, v10"); J("v_lshl_add_u32 v14, v15, 7, v14"); J("v_add_u32 v14, s%d, v14" % sM0)
    J("v_bfe_u32 v15, v10, 1, 2"); J("v_lshlrev_b32 v15, 1, v15"); J("v_xor_b32 v15, v15, v11")
    J("v_lshl_add_u32 v2, v15, 4, v14"); J("v_xor_b32 v3, 64, v2")
    for k in range(2): J("v_add_u32 v%d, 0x10000, v%d" % (4 + k, 2 + k)); J("v_add_u32 v%d, 0x20000, v%d" % (6 + k, 2 + k))
    J("s_mul_i32 s%d, s%d, 28" % (sT1, sT0)); J("v_add_u32 v14, s%d, v9" % sT1); J("v_mov_b32 v13, 0x7f000000"); J("v_cmp_gt_u32 vcc, 28, v9")
    J("v_lshlrev_b32 v42, 7, v14"); J("v_cndmask_b32 v42, v13, v42, vcc")
    J("v_lshrrev_b32 v14, 1, v9"); J("v_add_u32 v14, s%d, v14" % sT1); J("v_mul_u32_u24 v14, 896, v14"); J("v_and_b32 v15, 1, v9"); J("v_lshl_add_u32 v14, v15, 7, v14"); J("v_cmp_gt_u32 vcc, 56, v9"); J("s_nop 0"); J("v_cndmask_b32 v41, v13, v14, vcc")
    J("s_and_b32 s%d, s%d, 1" % (sT1, sW)); J("s_lshl_b32 s%d, s%d, 13" % (sT1, sT1)); J("v_lshlrev_b32 v43, 7, v9"); J("v_add_u32 v43, s%d, v43" % sT1)
    J("s_cmp_lt_u32 s%d, 2\n    s_cselect_b32 s12, s%d, s%d\n    s_cselect_b32 s13, s%d, s%d" % (sW, SRD["K"], SRD["V"], SRD["K"] + 1, SRD["V"] + 1)); J("s_mov_b32 s14, 0x100000"); J("s_mov_b32 s15, 0x20000")
    J("s_and_b32 s16, s%d, 3" % sQB); J("s_lshl_b32 s16, s16, 14"); J("s_lshr_b32 s17, s%d, 2" % sQB)
    J("s_sub_u32 s17, 4, s17"); J("s_lshl_b32 s17, s17, 30"); J("s_add_u32 s16, s16, s17")
    def sst(k):
        if timing: I("s_memtime s[94:95]"); I("s_waitcnt lgkmcnt(0)"); I("s_sub_u32 s94, s94, s98"); I("v_mov_b32 v%d, s94" % (36 + k))
    def drain(n):
        for _ in range(min(n, len(Q_))):
            for x in Q_.pop(0).split("\n"): I(x.strip())
    drain(NOK)
    I("s_waitcnt lgkmcnt(0)")
    sst(0)
    mk("X", 4, 2048 * 896, f=I)
    XS = [0x4000, 0x8000, 0xc000, 0x14000, 0x18000, 0x1c000, 0x20000]
    per = (len(Q_) + 27) // 28
    for j in range(7):
        I("s_add_u32 m0, s%d, %d" % (sM0, XS[j]))
        if j: I("s_add_u32 s%d, s%d, 128" % (sSO, sSO))
        else: I("s_nop 0")
        for i in range(4):
            P.vmem("buffer_load_dwordx4 v%d, %s, s%d offen offset:%d lds" % (TD + i, srd("X"), sSO, 1024 * i), ("x", j))
            drain(per)
    drain(10 ** 6)
    NV = 12
    TL = 9
    tiles = []
    for t in range(7): tiles.append([("W1", WD, (sW13, t * 64 * 3584)), ("W3", WD, (sW13, t * 64 * 3584))])
    for j in range(7): tiles.append([("WQ", QD, (sWQ, 64 * j * 8192)), ("WQ", QD, (sWQ, (64 * j + 32) * 8192))])
    tiles.append([("K", KD, "inc"), None])
    for n in range(NV): tiles.append([("K", KD, "inc"), ("V", VD, "inc")])
    for j in range(7): tiles.append([("WO", TD, (sWO, 128 * j)), ("WO", TD, (sWO, 128 * 896 + 128 * j))])
    NT = len(tiles); AT = 15
    def dma_ops(tau):
        groups = []
        for hf, half in enumerate(tiles[tau]):
            if half is None: continue
            sn, vb, so = half
            m0 = "s_add_u32 m0, s%d, %d" % (sM0, 65536 * hf + 16384 * (tau % 4))
            if so == "inc": sreg = sK if sn == "K" else sV; pre = [m0]; post = ["s_add_u32 s%d, s%d, 16384" % (sreg, sreg)]
            else: sreg = sSO + hf; pre = [m0, "s_add_u32 s%d, s%d, %d" % (sreg, so[0], so[1])]; post = []
            for j in range(4):
                groups.append((pre if j == 0 else [], "buffer_load_dwordx4 v%d, %s, s%d offen offset:%d lds" % (vb + j, srd(sn), sreg, 1024 * j), post if j == 3 else []))
        return groups
    def issue_group(g, tag):
        pre, d, post = g
        for x in pre: I(x)
        if pre: I("s_nop 0")
        P.vmem(d, tag)
        for x in post: I(x)
    t0 = dma_ops(0)
    def xread(s):
        j = s >> 1; base = XS[j]
        P.wait(vm=[("x", j)])
        for G in range(2):
            P.ds("ds_read_b128 %s, v%d offset:%d" % (r4(XC(s, G)), 2 + (s & 1) + 2 * (base >> 16), (base & 0xffff) + 2048 * G), ("xf", s))
    sst(1)
    for g in t0[:4]: issue_group(g, ("T", 0))
    for s in range(4): xread(s)
    for g in t0[4:]: issue_group(g, ("T", 0))
    sst(2)
    for s in range(14):
        if s + 4 < 14: xread(s + 4)
        P.wait(lg=[("xf", s)])
        for G in range(2): I("%s %s, %s, %s, %s" % (MF, r4(ST + 4 * G), r4(ST + 16), r4(XC(s, G)), "0" if s == 0 else r4(ST + 4 * G)))
    sst(3)
    def xlane(op, reg, tmp):
        ops = []
        for sw in ("v_permlane32_swap_b32", "v_permlane16_swap_b32"):
            ops += [("V", "v_mov_b32 v%d, v%d" % (tmp, reg)), ("T", "%s v%d, v%d" % (sw, reg, tmp)), ("V", "%s v%d, v%d, v%d" % (op, reg, reg, tmp))]
        return ops
    def center_ops(s):
        ops = []
        regs = [(G, XC(s, G) + r) for G in range(2) for r in range(4)]
        for i, (G, x) in enumerate(regs):
            lo = TMP + 2 * (i % 3); hi = lo + 1
            ops += [("V", "v_lshlrev_b32 v%d, 16, v%d" % (lo, x)), ("V", "v_and_b32 v%d, s%d, v%d" % (hi, sMASK, x)),
                    ("V", "v_sub_f32 v%d, v%d, v%d" % (lo, lo, MB + G)), ("V", "v_sub_f32 v%d, v%d, v%d" % (hi, hi, MB + G)),
                    ("V", "v_cvt_pk_bf16_f32 v%d, v%d, v%d" % (x, lo, hi))]
        return ops
    pre_ops = []
    for G in range(2):
        a = TMP + G
        pre_ops += ["v_mul_f32 v%d, 0x%x, v%d" % (a, f2u(1.0 / 448), ST + 4 * G), "v_cvt_pk_bf16_f32 v%d, v%d, v%d" % (MB + G, a, a), "v_lshlrev_b32 v%d, 16, v%d" % (MB + G, MB + G),
                    "v_sub_f32 v%d, v%d, v%d" % (DM + G, a, MB + G)]
    pre_ops += [t for k, t in center_ops(0)]
    for i, g in enumerate(dma_ops(1)):
        issue_group(g, ("T", 1))
        for x in pre_ops[6 * i:6 * i + 6]: I(x)
    P.wait(vm=[("T", 0)])
    I("s_barrier")
    if timing:
        for k in range(4): I("v_readfirstlane_b32 s94, v%d" % (36 + k)); I("s_nop 3"); I("v_writelane_b32 v0, s94, %d" % (50 + k))

    fr = []; sb = []
    def tr(areg, off, d2): return [("tr0", areg, off), ("tr1", areg, off + d2)]
    def add(reads, mf, ring, **kw): fr.append(dict(reads=reads, mf=mf, ring=ring, **kw))
    mark = {}
    for tau in range(7):
        sb.append(2 * len(fr))
        for ks in range(2):
            s = 2 * tau + ks
            mark[("F1", s)] = 2 * len(fr)
            for t in range(7):
                for kind in range(2):
                    ms = []
                    for G in range(2):
                        a = r4(GU + ((kind * 7 + t) * 2 + G) * 4, "a")
                        ms.append((a, r4(XC(s, G)), "0" if s == 0 else a, None))
                    add(tr(WA + 7 * kind + t, 8192 * ks + 16384 * (tau % 4), 4096), ms, "v")
                if t == 3:
                    add([], [(r4(ST + 8 + 4 * G), r4(XC(s, G)), "0" if s == 0 else r4(ST + 8 + 4 * G), r4(XC(s, G))) for G in range(2)], None)
    for j in range(7):
        tau = 7 + j; sb.append(2 * len(fr))
        order = [(hf, t) for hf in range(2) for t in range(16)] if j < 6 else [(hf, t) for t in range(16) for hf in range(2)]
        for hf, t in order:
            s = 2 * j + hf
            ms = []
            for G in range(2):
                a = r4(O + 8 * t + 4 * G, "a")
                ms.append((a, r4(XC(s, G)), "0" if s == 0 else a, None))
            add(tr((VA if hf else VAL) + (t & 7), 256 * (t >> 3) + 16384 * (tau % 4), 8192), ms, "v")
    outs = []
    def qk_block(n, tau):
        order = [(kt, s) for kt in range(2) for s in range(8)] if (n > 0 and gray < 2) else [(kt, s) for s in range(8) for kt in range(2)]
        for kt, s in order:
            ms = []
            for G in range(2):
                d = r4(S[n % 2] + 8 * kt + 4 * G)
                c = ("0" if n <= 1 else r4(NEGM + 4 * G)) if s == 0 else d
                ms.append((d, r4(QF(G, s)), c, None))
            if n == 0 and kt == 0: mark[("QK0", s)] = 2 * len(fr)
            add([("b128", KA + (s & 3), 256 * (s >> 2) + 8192 * kt + 16384 * (tau % 4))], ms, "a")
    def pv_block(n, tau):
        for t in range(16):
            ms = []
            for G in range(2):
                o = r4(O + 8 * t + 4 * G, "a")
                ms.append((o, r4(PK[n % 2] + 4 * G), "0" if n == 0 else o, None))
            add(tr(VA + (t & 7), 256 * (t >> 3) + 16384 * (tau % 4), 8192), ms, "a")
    sb.append(2 * len(fr)); qk_block(0, 14)
    pvs = {}; fsum_at = {}
    for n in range(NV):
        tau = AT + n; sb.append(2 * len(fr))
        if n < NV - 1: qk_block(n + 1, tau)
        pvs[n] = 2 * len(fr)
        pv_block(n, tau)
    OT = AT + NV
    for j in range(7):
        tau = OT + j; sb.append(2 * len(fr))
        order = [(tt, k) for k in range(8) for tt in range(4)] if j == 0 else [(tt, k) for tt in range(4) for k in range(8)]
        for tt, k in order:
            acc = 192 + 32 * (j & 1) + 8 * tt
            ms = [(r4(acc + 4 * G), r4(OF(k, G)), "0" if k == 0 else r4(acc + 4 * G), None) for G in range(2)]
            if j == 0 and tt == 0: mark[("O", k)] = 2 * len(fr)
            add(tr(TA + 4 * (k >> 2) + tt, 4096 * (k & 3) + 16384 * (tau % 4), 2048), ms, "a")
            if k == 7: outs.append(("S", 2 * len(fr), acc, j))
    N = 2 * len(fr); sb.append(N)
    END = N + 40
    G_ = Gaps2(END)
    for i in range(len(fr)): G_.put(2 * i, "S", ("waitslot", i), force=True)
    barpos = {}
    for tau in range(NT):
        g = sb[tau + 1] - bar_off; barpos[tau] = g
        assert g % 2 == 1
        G_.put(g, "S", ("bar", tau), force=True); G_.put(g, "S", ("nil",), force=True)
    holes = set(); estart = {}
    for n in range(1, NV - 1):
        estart[n] = pvs[n - 1] + e0
        for e in range(16): holes.add(estart[n] + estep * e)
    cnt = {"v": 0, "a": 0, "f": 0}
    rl = []
    for i, f in enumerate(fr):
        if not f["reads"]: continue
        if f["ring"] == "v": r = FRV + 4 * (cnt["v"] % 8); p = "v"; lead = LW
        elif f["ring"] == "f": r = FRF + 4 * (cnt["f"] % 16); p = "a"; lead = L
        else: r = FRA + 4 * (cnt["a"] % 16); p = "a"; lead = L
        cnt[f["ring"]] += 1
        f["fr"] = r4(r, p)
        for q, (k, a, off) in enumerate(f["reads"]):
            assert off < 65536
            if k == "b128": txt = "ds_read_b128 %s[%d:%d], v%d offset:%d" % (p, r, r + 3, a, off)
            elif k == "tr0": txt = "ds_read_b64_tr_b16 %s[%d:%d], v%d offset:%d" % (p, r, r + 1, a, off)
            else: txt = "ds_read_b64_tr_b16 %s[%d:%d], v%d offset:%d" % (p, r + 2, r + 3, a, off)
            rl.append([2 * i - lead, txt, i])
    nxt = 10 ** 9
    for x in reversed(rl):
        g = min(x[0], nxt - 1)
        while g in holes: g -= 1
        x[0] = g; nxt = g
    lastuse = {}
    for g, txt, i in rl:
        g = max(g, 0)
        key = fr[i]["fr"]
        if key in lastuse and lastuse[key] != i: assert g > 2 * lastuse[key] + 1, ("ring WAR", i, g, lastuse[key])
        lastuse[key] = i
        tau = max(t for t in range(NT) if sb[t] <= 2 * i)
        if tau > 0: assert g > barpos[tau - 1], ("read before barrier", i, g, tau, barpos[tau - 1])
        G_.put(g, "D", ("ds", txt, ("f", i)), force=True)
    def place_softmax(n, e0_, estep_, limit, dense=False):
        s = S[n % 2]; pk = PK[n % 2]; lo = LB[n % 2]; ln = LB[(n + 1) % 2]
        first = [True, True]; gl = 0; pend = []
        for e, (kt, G, r) in enumerate([(kt, G, r) for kt in range(2) for G in range(2) for r in range(4)]):
            src = s + 8 * kt + 4 * G + r; p = PT + e
            g = G_.put(e0_ + int(estep_ * e), "T", ("ins", "v_exp_f32 v%d, v%d" % (p, src)), force=True)
            pend.append((g + 1, "v_add_f32 v%d, v%d, v%d" % (ln + G, (lo if first[G] else ln) + G, p))); first[G] = False
            if r % 2 == 1: pend.append((g + 1, "v_cvt_pk_bf16_f32 v%d, v%d, v%d" % (pk + 4 * G + 2 * kt + r // 2, p - 1, p)))
        pend.append((0, "v_add_f32 v%d, v%d, v%d" % (TC, ln, ln + 1))); pend.append((0, "v_cmp_nge_f32 vcc, s%d, v%d" % (sTH, TC)))
        for k, (g, t) in enumerate(pend):
            st = max(g, gl)
            gl = G_.put(st, "V", ("ins", t), limit=min(st + (1 if dense else 4), limit - 1))
        G_.put(gl + 1, "S", ("chk", n), limit=limit)
    b0 = sb[AT]
    ops = []
    for G in range(2):
        e = [S[0] + 8 * kt + 4 * G + r for kt in range(2) for r in range(4)]
        m = MX + G
        ops += [("V", "v_max3_f32 v%d, v%d, v%d, v%d" % (m, e[0], e[1], e[2])), ("V", "v_max3_f32 v%d, v%d, v%d, v%d" % (m, m, e[3], e[4])),
                ("V", "v_max3_f32 v%d, v%d, v%d, v%d" % (m, m, e[5], e[6])), ("V", "v_max_f32 v%d, v%d, v%d" % (m, m, e[7]))]
        ops += xlane("v_max_f32", m, T0)
        ops += [("V", "v_sub_f32 v%d, v%d, v%d" % (x, x, m)) for x in e]
        ops += [("V", "v_mov_b32 v%d, 0" % (LB[0] + G))]
    g_init = G_.chain(ops, b0 + 4, b0 + 15)
    for n in range(NV):
        bn = sb[AT + n]
        if n == 0: place_softmax(0, g_init + 1, 0.75, pvs[0] - 1, dense=True)
        elif n == NV - 1: place_softmax(n, pvs[n - 1] + 6, 1.4, pvs[n], dense=True)
        else: place_softmax(n, estart[n], estep, bn + 31)
    def fix_ops(kt): return [("V", "v_sub_f32 v%d, v%d, v%d" % (S[1] + 8 * kt + 4 * G + r, S[1] + 8 * kt + 4 * G + r, MX + G)) for G in range(2) for r in range(4)]
    G_.chain(fix_ops(0), b0 + (30 if gray < 2 else 36), estart[1] - 1)
    G_.chain(fix_ops(1) + [("V", "v_sub_f32 v%d, 0, v%d" % (NEGM + 4 * G + r, MX + G)) for G in range(2) for r in range(4)], estart[1], min(estart[1] + 8 * estep + 6, b0 + 62))
    def place_dma(groups, g, dstep, tag):
        for pre, d, post in groups:
            g0 = g
            for x in pre: g0 = G_.put(g0 - 1, "S", ("ins", x), limit=g0 + 1) + 1
            g0 = G_.put(max(g, g0), "M", ("vm", d, tag), limit=max(g, g0) + 2)
            for x in post: G_.put(g0 + 1, "S", ("ins", x), limit=g0 + 2)
            g = max(g + dstep, g0 + 3)
        return g, g0
    place_dma(dma_ops(2), 3, 4, ("T", 2))
    dmaend = {}
    lead_pf = lambda d, v: ([], "buffer_load_dword v%d, v%d, %s, s%d offen" % (d, v, srd("PF"), sPFO), ["s_add_u32 s%d, s%d, 0x40010000" % (sPFO, sPFO)])
    for tau in range(NT - 3):
        nn = tau - AT
        groups = dma_ops(tau + 3)
        pre_g = []
        extra = []
        if tau in (3, 7, 11): extra = [lead_pf(44, 43)]
        if nn in (1, 5): extra = [lead_pf(PFD, PFV)]
        if tau == 9: extra = [([], "buffer_store_dword v46, v47, %s, s%d offen sc1" % (srd("WS"), sFLW), [])]
        if nn in (2, 6): extra = [([], "buffer_atomic_add v3, v4, %s, s%d offen offset:4" % (srd("DBG"), sAT), ["s_sub_u32 s%d, s%d, 4096" % (sAT, sAT)])]
        if nn in (3, 7): extra = [([], "buffer_load_dword v%d, v%d, %s, s91 offen" % (PFD, PFW, srd("WO")), ["s_sub_u32 s91, s91, 0x400000"])]
        if nn in (0, 4, 8): extra = [([], "buffer_load_dword v%d, v%d, %s, s90 offen" % (PFD, PF2, srd("W2")), ["s_sub_u32 s90, s90, 0x400000"])]
        g = barpos[tau] + 3; hi = barpos[tau + 1] - 1
        dstep = min(dma_step, (hi - g) // (len(groups) + len(extra) + len(pre_g)))
        if pre_g: g, g0 = place_dma(pre_g, g, dstep, ("T", tau + 2))
        g, g0 = place_dma(groups, g, dstep, ("T", tau + 3))
        if extra: g, g0 = place_dma(extra, g, dstep, ("T", tau + 4))
        assert g0 <= barpos[tau + 1] + 1, (tau, g0, barpos[tau + 1])
        dmaend[tau] = g0
    for s in range(1, 14):
        G_.chain(center_ops(s), mark[("F1", s - 1)] + 1, mark[("F1", s)] - 1)
    q0 = sb[7]; q1 = sb[14]
    ops = []
    for G in range(2):
        a = CI + G; t = TMP + G; g = ST + 8 + 4 * G
        ops += [("V", "v_cndmask_b32 v%d, 0, v%d, s[%d:%d]" % (a, g, sDG, sDG + 1))]
        ops += [("V", "v_cndmask_b32 v%d, v%d, v%d, s[%d:%d]" % (a, a, g + r, sDG + 2 * r, sDG + 2 * r + 1)) for r in range(1, 4)]
        ops += xlane("v_add_f32", a, t)
        ops += [("V", "v_mul_f32 v%d, v%d, v%d" % (t, DM + G, DM + G)), ("V", "v_mul_f32 v%d, 0x%x, v%d" % (a, f2u(1.0 / 448), a)), ("V", "v_sub_f32 v%d, v%d, v%d" % (a, a, t)),
                ("V", "v_max_f32 v%d, 0, v%d" % (a, a)),
                ("V", "v_cvt_pk_bf16_f32 v%d, v%d, v%d" % (a, a, a)), ("V", "v_lshlrev_b32 v%d, 16, v%d" % (a, a)),
                ("V", "v_add_f32 v%d, 0x%x, v%d" % (a, f2u(1e-5), a)), ("V", "v_cvt_pk_bf16_f32 v%d, v%d, v%d" % (a, a, a)), ("V", "v_lshlrev_b32 v%d, 16, v%d" % (a, a)),
                ("T", "v_sqrt_f32 v%d, v%d" % (a, a)), ("V", "v_cvt_pk_bf16_f32 v%d, v%d, v%d" % (a, a, a)), ("V", "v_lshlrev_b32 v%d, 16, v%d" % (a, a)),
                ("T", "v_rcp_f32 v%d, v%d" % (t, a)), ("V", "v_mul_f32 v%d, v%d, v%d" % (a, a, a)),
                ("V", "v_mul_f32 v%d, 0x%x, v%d" % (RSQ + G, f2u(LOG2E / 16), t)), ("V", "v_mul_f32 v%d, 0x%x, v%d" % (RSN + G, f2u(-LOG2E), t))]
    gv = G_.chain(ops, mark[("F1", 13)] + 24, q0 + 32)
    els = [(t, G, r) for t in range(7) for G in range(2) for r in range(4)]
    def stage(i, st):
        t, G, r = els[i]
        b = WA + 3 * (i % 4); hv = WA + 12 + (i % 2)
        ga = GU + ((0 * 7 + t) * 2 + G) * 4 + r; ua = GU + ((7 + t) * 2 + G) * 4 + r
        if st == 0: return [("V", "v_accvgpr_read_b32 v%d, a%d" % (b, ga)), ("V", "v_accvgpr_read_b32 v%d, a%d" % (b + 1, ua)), ("V", "v_mul_f32 v%d, v%d, v%d" % (b + 2, b, RSN + G)), ("T", "v_exp_f32 v%d, v%d" % (b + 2, b + 2))]
        if st == 1: return [("V", "v_mul_f32 v%d, v%d, v%d" % (b, b, b + 1)), ("V", "v_fma_f32 v%d, v%d, v%d, v%d" % (b + 2, b + 2, CI + G, CI + G)), ("T", "v_rcp_f32 v%d, v%d" % (b + 2, b + 2))]
        o = [("V", "v_mul_f32 v%d, v%d, v%d" % (hv, b, b + 2))]
        if r % 2 == 1: o.append(("V", "v_cvt_pk_bf16_f32 v%d, v%d, v%d" % (H(t // 2, G) + 2 * (t & 1) + r // 2, WA + 12, WA + 13)))
        return o
    ops = []
    for i in range(len(els) + 2):
        if i < len(els): ops += stage(i, 0)
        if 0 <= i - 1 < len(els): ops += stage(i - 1, 1)
        if 0 <= i - 2 < len(els): ops += stage(i - 2, 2)
    for G in range(2): ops += [("V", "v_mov_b32 v%d, 0" % (H(3, G) + 2)), ("V", "v_mov_b32 v%d, 0" % (H(3, G) + 3))]
    gsw = G_.chain(ops, max(gv + 1, q0 + 34), sb[13] + 10, window=1)
    gprev = gsw + 1
    for k in range(8):
        ops = []
        for G in range(2):
            q = QF(G, k)
            dst = (16 + 4 * k) if q < 128 + 16 else q
            for half in range(2):
                a = O + 8 * (2 * k + half) + 4 * G
                tb = WA + 4 * ((2 * (2 * k + G) + half) % 3)
                ops += [("V", "v_accvgpr_read_b32 v%d, a%d" % (tb + r, a + r)) for r in range(4)]
                ops += [("V", "v_mul_f32 v%d, v%d, v%d" % (tb + r, tb + r, RSQ + G)) for r in range(4)]
                ops += [("V", "v_cvt_pk_bf16_f32 v%d, v%d, v%d" % (dst + 2 * half + p, tb + 2 * p, tb + 2 * p + 1)) for p in range(2)]
            ops += [("T", "v_permlane32_swap_b32 v%d, v%d" % (dst + p, dst + 2 + p)) for p in range(2)]
            ops += [("T", "v_permlane16_swap_b32 v%d, v%d" % (dst + p, dst + 2 + p)) for p in range(2)]
        st = max(gprev, sb[13] + 8 * k + 8 + 4)
        en = max(st, min(mark[("QK0", k)] - 1, (sb[13] + 12 + 13 * (k + 1)) if k < 4 else 10 ** 9, q1 - 1 if k < 4 else 10 ** 9))
        gprev = G_.chain(ops, st, en, window=1)
    for i in range(16): G_.put(q1, "V", ("ins", "v_mov_b32 v%d, v%d" % (128 + i, 16 + i)), force=True)
    G_.put(q1 + 5, "V", ("ins", "v_mov_b32 v%d, v41" % PF2), force=True)
    ops = []
    for k in range(4):
        for G in range(2):
            ops.append(("M", ("vm", "buffer_store_dwordx4 %s, v%d, %s, s%d offen offset:%d sc1" % (r4(H(k, G)), VL16, srd("WS"), sFO, 1024 * ((2 * k + G) & 3)), "hst")))
            if (k, G) == (1, 1): ops.append(("S", "s_add_u32 s%d, s%d, 4096" % (sFO, sFO)))
    G_.chain(ops, pvs[0] + 1, pvs[0] + 30, window=2)
    G_.put(q1 + 6, "V", ("ins", "v_mov_b32 v%d, v43" % PFV), force=True); G_.put(q1 + 7, "V", ("ins", "v_mov_b32 v%d, v42" % PFW), force=True)
    G_.put(q1 + 8, "V", ("ins", "v_mov_b32 v4, v45"), force=True); G_.put(q1 + 9, "V", ("ins", "v_mov_b32 v%d, v47" % AVP), force=True)
    G_.put(b0 + 1, "V", ("ins", "v_mov_b32 v3, 1"), force=True)
    G_.put(b0 + 2, "V", ("ins", "v_lshrrev_b32 v2, 24, v4"), force=True); G_.put(b0 + 3, "V", ("ins", "v_and_b32 v2, 0x40, v2"), force=True)
    ta = AT + TL
    G_.chain([("V", "v_mov_b32 v6, 0"), ("V", "v_mov_b32 v5, 0x24000"), ("V", "v_add_u32 v7, v2, v5"),
              ("M", ("vm", "buffer_load_dword v6, v4, %s, s%d offen offset:4 sc1" % (srd("DBG"), sCW), "fpoll"))], sb[ta] + 1, sb[ta] + 10)
    G_.chain([("S", ("waitvm", "fpoll")), ("D", ("ds", "ds_write_b32 v7, v6", "fw"))], barpos[ta + 1] - 8, barpos[ta + 1] - 4)
    G_.put(barpos[ta + 1] - 1, "S", ("waitlg", "fw"), force=True)
    sSH = 77; WV = 96
    def share_s():
        return ["s_lshr_b32 s16, s%d, 2" % sSH, "s_lshl_b32 s17, s%d, 2" % sQB, "s_add_u32 s16, s16, s17",
                "s_lshl_b32 s18, s16, 4", "s_lshl_b32 s17, s%d, 2" % sW, "s_add_u32 s18, s18, s17", "s_lshl_b32 s18, s18, 13", "s_add_u32 s18, s18, 0x%x" % WS_F,
                "s_and_b32 s19, s%d, 3" % sSH, "s_mul_i32 s%d, s%d, %d" % (sW2, sW, 448 * 896), "s_lshl_b32 s17, s19, 8", "s_add_u32 s%d, s%d, s17" % (sW2, sW2),
                "s_lshl_b32 s15, s16, 7", "s_add_u32 s15, s15, 0x%x" % WS_FL,
                "s_cmp_eq_u32 s19, 3\n    s_cselect_b32 s17, 3, 7"]
    def share_v():
        o = ["v_lshrrev_b32 v100, 8, v%d" % VL16, "v_bfe_u32 v101, v%d, 5, 3" % VL16, "v_mul_u32_u24 v102, 896, v100", "v_and_b32 v103, 16, v%d" % VL16, "v_add_u32 v102, v102, v103"]
        for j in range(4):
            o += ["v_add_u32 v103, %d, v100" % (4 * (j & 1)), "v_xor_b32 v103, v103, v101", "v_and_b32 v103, s17, v103", "v_lshl_add_u32 v103, v103, 5, v102", "v_add_u32 v%d, %d, v103" % (WV + j, j * (4 * 896 - 1024))]
        return o
    BF = lambda j: r4((128 + 4 * j) if j < 16 else 4 * (j - 16), "a")
    def bload(j): return "buffer_load_dwordx4 %s, v%d, %s, s18 offen offset:%d sc1" % (BF(j), VL16, srd("WS"), 1024 * (j & 3))
    RING = [0x20000, 0x24000] + [0x10000 * hf + 16384 * ((OT + j) % 4) for j in (3, 4, 5, 6) for hf in range(2)]
    def w2dma(i):
        return [(["s_add_u32 m0, s%d, %d" % (sM0, RING[i % 10])] if j == 0 else [], "buffer_load_dwordx4 v%d, %s, s%d offen offset:%d lds" % (WV + j, srd("W2"), sW2, 1024 * j),
                 ["s_add_u32 s%d, s%d, 14336" % (sW2, sW2)] if j == 3 else []) for j in range(4)]
    ops = [("D", ("ds", "ds_read_b32 v6, v5", "fr")), ("S", "s_mov_b32 s%d, s%d" % (sSH, sH))] + [("S", x) for x in share_s()]
    ops += [("S", ("waitlg", "fr")), ("V", "v_readfirstlane_b32 s%d, v6" % sFC)]
    if test_nof: ops += [("S", "s_bitcmp1_b32 %d, s%d\n    s_cselect_b32 s%d, 0, s%d" % (test_nof, sH, sFC, sFC))]
    ops += [("S", "s_cmp_eq_u32 s%d, 16\n    s_cselect_b32 s18, s18, 0x%x" % (sFC, BIG))]
    g = G_.chain(ops, barpos[ta + 1] + 1, barpos[ta + 1] + 24)
    bl = pvs[NV - 1]
    G_.put(bl + 8, "V", ("ins", "v_mov_b32 v%d, v%d" % (AVW, AVP)), force=True)
    G_.chain([("V", x) for x in share_v()], sb[OT + 1] + 2, sb[OT + 2] + 20)
    lo_ = g + 2; mid = sb[OT + 2] + 20; hi_ = sb[OT + 6] + 10
    for j in range(32):
        gq = lo_ + ((mid - lo_) * j) // 16 if j < 16 else mid + ((hi_ - mid) * (j - 16)) // 16
        gq = G_.put(max(gq, g + 1), "M", ("vm", bload(j), ("bl", j)), limit=max(gq, g + 1) + 3)
        if j & 3 == 3: G_.put(gq + 1, "S", ("ins", "s_add_u32 s18, s18, 4096"), limit=gq + 2)
        g = gq + 2
    G_.chain([("V", "v_bfe_u32 v104, v%d, 4, 4" % VL16), ("V", "v_lshlrev_b32 v104, 2, v104"), ("M", ("vm", "buffer_load_dword v6, v104, %s, s15 offen sc1" % srd("WS"), "poll"))], N - 6, N + 2)
    for i in range(2):
        g, g0 = place_dma(w2dma(i), dmaend[OT + 2 + i] + 3, 3, ("W", i))
        assert g0 + 2 < barpos[OT + 3 + i] + 2, (g0, barpos[OT + 3 + i])
    for j in (4, 5, 6):
        i = 2 * (j - 4) + 2
        g, g0 = place_dma(w2dma(i), barpos[OT + j] + 3, 5 if j < 6 else 3, ("W", i))
        g, g0 = place_dma(w2dma(i + 1), g, 5 if j < 6 else 3, ("W", i + 1))
        assert g0 + 2 < (barpos[OT + j + 1] + 2 if j < 6 else END), (j, g0)
    lf = LB[NV % 2]
    ops = []
    for G in range(2):
        ops += xlane("v_add_f32", lf + G, T0) + [("T", "v_rcp_f32 v%d, v%d" % (RL + G, lf + G))]
    gprev = G_.chain(ops, bl + 1, bl + 10)
    for k in range(8):
        ops = []
        for G in range(2):
            for half in range(2):
                a = O + 8 * (2 * k + half) + 4 * G
                tb = PT + 4 * ((2 * G + half) % 4)
                ops += [("V", "v_accvgpr_read_b32 v%d, a%d" % (tb + r, a + r)) for r in range(4)]
                ops += [("V", "v_cvt_pk_bf16_f32 v%d, v%d, v%d" % (OF(k, G) + 2 * half + p, tb + 2 * p, tb + 2 * p + 1)) for p in range(2)]
        st = max(gprev, bl + 4 * k + 4 + 5)
        en = max(st, min(mark[("O", k)] - 1, bl + 10 + 10 * (k + 1)))
        gprev = G_.chain(ops, st, en, window=1)
    gout = 0; lastst = {}
    for idx, (kind, g, acc, ch) in enumerate(outs):
        tb = TMP + 4 * (idx % 2)
        ops = []
        if kind == "S":
            ops += [("V", "v_mul_f32 v%d, v%d, v%d" % (acc + 4 * G + r, acc + 4 * G + r, RL + G)) for G in range(2) for r in range(4)]
        ops += [("V", "v_cvt_pk_bf16_f32 v%d, v%d, v%d" % (tb + 2 * G + p, acc + 4 * G + 2 * p, acc + 4 * G + 2 * p + 1)) for G in range(2) for p in range(2)]
        so = sSOe
        ops += [("M", ("vm", "buffer_store_dwordx4 %s, v%d, %s, s%d offen sc1" % (r4(tb), VL16, srd("WS"), so), ("st", ch))), ("S", "s_add_u32 s%d, s%d, 16384" % (so, so))]
        st = max(g + 5, gout + 1)
        gout = G_.chain(ops, st, min(st + (7 if kind == "F" else 13), END))
        lastst[ch] = gout
    pub = {NT - 1: -1}
    for c in range(6):
        g = max(lastst[c] + pub_lag, barpos[OT + 0] + 2)
        if g > N + 10: continue
        g = G_.put(g - 1, "V", ("ins", "v_mov_b32 v3, %d" % (c + 1)), limit=g + 2)
        g = G_.put(g + 1, "S", ("waitvm", ("st", c)), limit=g + 3)
        G_.put(g, "M", ("vm", "buffer_store_dword v3, v%d, %s, s%d offen sc1" % (AVW, srd("WS"), sFLW), "flg"), force=True)
    loops = [(sb[AT + 1], sb[AT + 5], sb[AT + 9], "A", range(5, 9))]
    rare_sites = []
    def stamp(k):
        I("s_memtime s[94:95]"); I("s_waitcnt lgkmcnt(0)")
        I("s_sub_u32 s94, s94, s98"); I("v_writelane_b32 v0, s94, %d" % k); I("s_mov_b32 s96, s94")
    def rstamp(k):
        I("s_memrealtime s[94:95]"); I("s_waitcnt lgkmcnt(0)"); I("v_writelane_b32 v0, s94, %d" % k)
    mk_ = {}
    for i in range(END + 1):
        for (ls, le, ce, nm, drop) in loops:
            if i == le: mk_[nm + "1"] = len(P.lines)
            if i == ce:
                m0_, m1_ = mk_[nm + "0"], mk_[nm + "1"]
                A = P.lines[m0_:m1_]; B = P.lines[m1_:]
                norm = lambda L_: [re.sub(r"L_(rare|back)_\d+", "L_x", x) for x in L_]
                assert len(A) == len(B), (nm, len(A), len(B), [(a, b) for a, b in zip(norm(A), norm(B)) if a != b][:6])
                for k_, (a_, b_) in enumerate(zip(norm(A), norm(B))):
                    if a_ != b_:
                        ma = re.fullmatch(r"\s*s_waitcnt vmcnt\((\d+)\)", a_); mb = re.fullmatch(r"\s*s_waitcnt vmcnt\((\d+)\)", b_)
                        assert ma and mb, (nm, a_, b_)
                        if int(mb.group(1)) < int(ma.group(1)): P.lines[m0_ + k_] = b_
                del P.lines[m1_:]
                rare_sites = [x for x in rare_sites if x not in drop]
                I("s_add_u32 s%d, s%d, 1" % (sLOOP, sLOOP)); I("s_cmp_lt_u32 s%d, %d" % (sLOOP, 15)); I("s_cbranch_scc1 L_loop%s" % nm)
        if timing and i in sb:
            t_ = sb.index(i)
            if t_ <= AT + 1: stamp(t_)
            elif t_ >= AT + 9: stamp(t_ - (AT + 9) + 22)
            if t_ == AT + 9:
                rstamp(41)
                for k_ in range(17, 22): I("v_writelane_b32 v0, s96, %d" % k_)
            if i == N: rstamp(42)
        for (ls, le, ce, nm, drop) in loops:
            if i == ls:
                I("s_mov_b32 s%d, 0" % sLOOP)
                P.label("L_loop%s" % nm); mk_[nm + "0"] = len(P.lines)
        for it in G_.items(i):
            if it[0] == "ds": P.ds(it[1], it[2])
            elif it[0] == "bar":
                tau = it[1]
                if tau + 1 < NT or tau in pub:
                    P.wait(vm=[("T", tau + 1)] + [("st", c) for c in range(-1, pub.get(tau, -1))]); I("s_barrier")
            elif it[0] == "vm": P.vmem(it[1], it[2])
            elif it[0] == "waitslot":
                if i > 0: P.wait(lg=[("f", it[1])], maxq=12)
            elif it[0] == "chk":
                if it[1] > 0:
                    I("s_cbranch_vccnz L_rare_%d" % it[1]); P.label("L_back_%d" % it[1]); rare_sites.append(it[1])
            elif it[0] == "nil": pass
            elif it[0] == "waitvm": P.wait(vm=[it[1]])
            elif it[0] == "waitlg": P.wait(lg=[it[1]])
            else:
                for x in it[1].split("\n"): I(x.strip())
        if i < N:
            f = fr[i // 2]; d, b, c, ao = f["mf"][(i % 2) ^ (1 if (gray and (i // 2) % 2 == 1 and f["reads"]) else 0)]
            if i % 2 == 0: P.wait(lg=[("f", i // 2)], vm=[f["vmwait"]] if "vmwait" in f else [])
            I("%s %s, %s, %s, %s" % (MF, d, ao or f["fr"], b, c))
    SEL = 48; AC = 192; RA = 64; TT = 56; XV = 88; PV = 104; THR = 90; V4 = 92; XR = 16; LA = 105; TQ = 106; SS = 24; GV = 128
    sRD, sSP, sALL, sPE, sM1, sM2, sB, sX = 78, 79, 83, 4, 5, 6, 8, 10
    slot = lambda b: r4(64 + 4 * b, "a") if b < 16 else r4(128 + 4 * (b - 16))
    def consts():
        I("v_lshrrev_b32 v107, 4, v%d" % VL16); I("v_and_b32 v108, 15, v107"); I("v_lshrrev_b32 v109, 4, v107")
        I("v_bfe_u32 v110, v107, 2, 4"); I("v_and_b32 v111, 3, v107"); I("v_and_b32 v112, 7, v110"); I("v_lshlrev_b32 v113, 8, v110"); I("v_lshl_add_u32 v113, v111, 3, v113"); I("v_add_u32 v113, s%d, v113" % sM0)
        for t in range(8):
            I("v_xor_b32 v111, %d, v112" % t); I("v_lshl_add_u32 v%d, v111, 5, v113" % (RA + t)); I("v_add_u32 v%d, 0x10000, v%d" % (RA + 8 + t, RA + t)); I("v_add_u32 v%d, 0x20000, v%d" % (RA + 16 + t, RA + t))
        I("v_lshrrev_b32 v110, 2, v108"); I("v_cmp_eq_u32 vcc, v110, v109"); I("v_and_b32 v111, 1, v108"); I("v_lshlrev_b32 v111, 4, v111"); I("v_mov_b32 v112, 0x3f80"); I("v_lshlrev_b32 v112, v111, v112")
        I("v_cndmask_b32 v112, 0, v112, vcc"); I("v_and_b32 v111, 2, v108"); I("v_cmp_eq_u32 vcc, 0, v111")
        for r in (0, 1, 4, 5): I("v_mov_b32 v%d, 0" % (SEL + r))
        I("v_cndmask_b32 v%d, 0, v112, vcc" % (SEL + 2)); I("v_cndmask_b32 v%d, v112, 0, vcc" % (SEL + 3))
        I("v_and_b32 v55, 1, v109")
        I("v_mul_u32_u24 v%d, 896, v108" % XV); I("v_lshl_add_u32 v%d, v109, 3, v%d" % (XV, XV)); I("v_add_u32 v%d, 14336, v%d" % (XV + 1, XV))
        for q in range(4): I("v_add_u32 v%d, %d, v%d" % (V4 + q, 4096 * q, VL16))
        I("v_add_u32 v%d, s%d, v%d" % (LA, sM0, VL16))
        I("s_lshr_b32 s84, s%d, 1" % sW); I("s_lshl_b32 s84, s84, 14"); I("s_and_b32 s82, s%d, 1" % sW); I("s_lshl_b32 s82, s82, 11"); I("s_add_u32 s82, s82, s84"); I("v_add_u32 v%d, s82, v%d" % (TQ, VL16))
    def call(lbl): I("s_call_b64 s[88:89], %s" % lbl)
    I("v_mov_b32 v3, 7"); I("v_mov_b32 v7, 1"); I("v_mov_b32 v5, 0x10000")
    I("s_mov_b32 s%d, 0" % sALL); I("s_mov_b32 s%d, 0" % sRD)
    consts()
    P.wait(vm=[("st", 6)])
    P.vmem("buffer_store_dword v3, v%d, %s, s%d offen sc1" % (AVW, srd("WS"), sFLW), "flg")
    I("s_barrier")
    if timing: stamp(33)
    I("s_cmp_eq_u32 s%d, 16" % sFC); I("s_cbranch_scc1 L_arr"); I("v_mov_b32 v7, 0x101"); P.label("L_arr")
    P.vmem("buffer_atomic_add v7, v4, %s, s%d offen sc0" % (srd("DBG"), sCW), "arr")
    I("s_cmp_lg_u32 s%d, 16" % sFC); I("s_cbranch_scc1 L_done")
    P.label("L_roles")
    for i in (8, 9):
        for g_ in w2dma(i): issue_group(g_, ("W", i))
    I("s_mul_i32 s84, s16, %d" % (32 * 896)); I("s_lshl_b32 s85, s19, 8"); I("s_add_u32 s84, s84, s85"); I("s_lshl_b32 s85, s%d, 5" % sW); I("s_add_u32 s%d, s84, s85" % sX); I("s_add_u32 s%d, s%d, 128" % (sX + 1, sX))
    I("s_mul_i32 s82, s16, 28"); I("s_lshl_b32 s84, s19, 3"); I("s_add_u32 s82, s82, s84"); I("s_add_u32 s82, s82, s%d" % sW); I("s_lshl_b32 s%d, s82, 14" % sB); I("s_add_u32 s%d, s%d, 0x10000" % (sB + 1, sB))
    I("s_cmp_eq_u32 s19, 3"); I("s_cselect_b32 s%d, 0xffff, -1" % sPE); I("s_cselect_b32 s%d, 0x%x, s%d" % (sX + 1, BIG, sX + 1))
    I("s_mov_b32 s%d, %d" % (sSP, spin))
    I("s_lshl_b32 s82, s19, 1"); I("v_add_u32 v%d, s82, v55" % THR)
    for r in range(16): I("v_mov_b32 v%d, 0" % (SS + r))
    def ready(dst, lim=None):
        I("v_cmp_lt_u32 vcc, v%d, v6" % THR); I("s_cmp_eq_u32 s%d, 1" % sALL); I("s_cselect_b32 s14, -1, vcc_lo"); I("s_and_b32 s14, s14, s%d" % sPE)
        if lim: I("s_and_b32 s14, s14, 0x%x" % lim)
        I("s_andn2_b32 s%d, s%d, s14" % (sPE, sPE))
    P.wait(vm=["poll"])
    if timing: stamp(54)
    fl = []
    for hd in range(4):
        for k in range(4):
            a_ = 7 * hd + 2 * k; b_ = a_ + 1 if k < 3 else a_
            for tt in range(8): fl.append((hd, k, tt, a_, b_))
    LD = 6
    pend = []
    def rd(fi, half):
        hd, k, tt, a_, b_ = fl[fi]
        ht = b_ if half else a_; base = RING[ht % 10]; r = FRA + 4 * (fi % 16) + 2 * half
        P.wait(vm=[("W", ht)])
        P.ds("ds_read_b64_tr_b16 a[%d:%d], v%d offset:%d" % (r, r + 1, RA + 8 * (base >> 16) + tt, base & 0xffff), ("g", fi))
    for fi in range(LD): rd(fi, 0); rd(fi, 1)
    for fi, (hd, k, tt, a_, b_) in enumerate(fl):
        if timing and k == 0 and tt == 0 and hd > 0: stamp(54 + hd)
        P.wait(lg=[("g", fi)], vm=[("bl", 8 * hd + 2 * k), ("bl", 8 * hd + 2 * k + 1)])
        if tt == 7:
            for ht in sorted({a_, b_}):
                if ht + 10 < 28: pend += [(g_, ("W", ht + 10)) for g_ in w2dma(ht + 10)]
                if ht + 10 == poll2 + 10: pend += ["poll"]
                if ht + 10 == 27: pend += ["skip"] * r2delay + ["round2"]
        for G in range(2):
            d = r4(AC + 8 * tt + 4 * G)
            I("%s %s, %s, %s, %s" % (MF, d, r4(FRA + 4 * (fi % 16), "a"), BF(8 * hd + 2 * k + G), "0" if (hd, k) == (0, 0) else d))
            if fi + LD < len(fl): rd(fi + LD, G)
        if fi == r1_at: ready(None, r1mask); call("L_loadpass")
        if tt == 0 and 4 * hd + k == sum_ks:
            P.wait(vm=[("W", 12)]); call("L_sumpass")
        if pend:
            p_ = pend.pop(0)
            if p_ == "poll": P.vmem("buffer_load_dword v6, v%d, %s, s15 offen sc1" % (PV, srd("WS")), "poll")
            elif p_ == "round2":
                P.wait(vm="all"); ready(sM2); call("L_loadpass")
                for q in range(2):
                    for G in range(2): I("buffer_load_dwordx2 v[%d:%d], v%d, %s, s%d offen" % (XR + 4 * q + 2 * G, XR + 4 * q + 2 * G + 1, XV + G, srd("X"), sX + q))
                I("buffer_load_dword v6, v%d, %s, s15 offen sc1" % (PV, srd("WS")))
            elif p_ == "skip": pass
            else: issue_group(*p_)
    assert not pend
    if timing: stamp(58)
    P.vm = []; P.lgkm = []
    def lofs(tt, G): return 16384 * (tt >> 1) + 2048 * (tt & 1) + 1024 * G
    for tt in range(8):
        for G in range(2): I("ds_write_b128 v%d, %s offset:%d" % (LA, r4(AC + 8 * tt + 4 * G), lofs(tt, G)))
    I("s_waitcnt lgkmcnt(0)"); I("s_barrier")
    if timing: stamp(59)
    def rnd2(a_):
        I("v_cvt_pk_bf16_f32 v%d, v%d, v%d" % (TT, a_, a_ + 1)); I("v_lshlrev_b32 v%d, 16, v%d" % (a_, TT)); I("v_and_b32 v%d, s%d, v%d" % (a_ + 1, sMASK, TT))
    for q in range(2):
        for wv in range(4):
            for G in range(2): I("ds_read_b128 %s, v%d offset:%d" % (r4(AC + 32 * q + 8 * wv + 4 * G), TQ, 32768 * q + 4096 * wv + 1024 * G))
        if q == 0: I("s_waitcnt lgkmcnt(0)")
    for q in range(2):
        if q == 1: I("s_waitcnt lgkmcnt(0)")
        b_ = AC + 32 * q
        for wv in range(1, 4):
            for e in range(8): I("v_add_f32 v%d, v%d, v%d" % (b_ + e, b_ + e, b_ + 8 * wv + e))
        for j in range(4):
            f_ = b_ + 2 * j
            rnd2(f_)
            for e in range(2): I("v_mul_f32 v%d, 0x%x, v%d" % (TT + 1 + e, f2u(-LOG2E), f_ + e))
            for e in range(2): I("v_exp_f32 v%d, v%d" % (TT + 1 + e, TT + 1 + e))
            for e in range(2): I("v_add_f32 v%d, 1.0, v%d" % (TT + 1 + e, TT + 1 + e))
            for e in range(2): I("v_rcp_f32 v%d, v%d" % (TT + 1 + e, TT + 1 + e))
            for e in range(2): I("v_mul_f32 v%d, v%d, v%d" % (f_ + e, f_ + e, TT + 1 + e))
            rnd2(f_)
    if timing: stamp(35)
    if test_fail: I("s_cmp_eq_u32 s%d, 1" % sALL); I("s_cbranch_scc1 L_round"); I("s_cmp_eq_u32 s%d, %d" % (sSH, test_fail)); I("s_cbranch_scc1 L_giveup")
    P.label("L_round")
    I("s_waitcnt vmcnt(0)")
    call("L_sumpass")
    I("s_cmp_eq_u32 s%d, 0" % sPE); I("s_cbranch_scc1 L_last")
    ready(None); call("L_loadpass")
    I("buffer_load_dword v6, v%d, %s, s15 offen sc1" % (PV, srd("WS")))
    I("s_sub_u32 s%d, s%d, 1" % (sSP, sSP)); I("s_cmp_lg_u32 s%d, 0" % sSP); I("s_cbranch_scc1 L_round")
    P.label("L_giveup")
    I("v_mov_b32 v%d, 0x100" % TT); I("buffer_atomic_add v%d, v%d, %s, s%d offen sc0" % (TT, AVW, srd("DBG"), sCW)); I("s_waitcnt vmcnt(0)")
    I("v_readfirstlane_b32 s82, v%d" % TT); I("s_nop 0"); I("s_and_b32 s82, s82, 31"); I("s_cmp_lg_u32 s82, 16"); I("s_cbranch_scc1 L_sdone")
    I("s_mov_b32 s%d, 1" % sALL); I("s_mov_b32 s%d, 100" % sSP); I("s_branch L_round")
    P.label("L_last")
    I("s_nop 5")
    for q in range(2):
        for j in range(4):
            f_ = AC + 32 * q + 2 * j; s_ = SS + 8 * q + 2 * j; x_ = XR + 4 * q + j
            rnd2(s_)
            for e in range(2): I("v_mul_f32 v%d, v%d, v%d" % (s_ + e, s_ + e, f_ + e))
            rnd2(s_)
            I("v_lshlrev_b32 v%d, 16, v%d" % (TT + 1, x_)); I("v_and_b32 v%d, s%d, v%d" % (TT + 2, sMASK, x_))
            for e in range(2): I("v_add_f32 v%d, v%d, v%d" % (s_ + e, s_ + e, TT + 1 + e))
            I("v_cvt_pk_bf16_f32 v%d, v%d, v%d" % (x_, s_, s_ + 1))
            if j % 2 == 1: I("buffer_store_dwordx2 v[%d:%d], v%d, %s, s%d offen" % (x_ - 1, x_, XV + (j >> 1), srd("OUT"), sX + q))
    P.label("L_sdone")
    I("s_cmp_eq_u32 s%d, 0" % sRD); I("s_cbranch_scc1 L_done")
    I("s_add_u32 s%d, s%d, 1" % (sSH, sSH)); I("s_cmp_lt_u32 s%d, 16" % sSH); I("s_cbranch_scc1 L_cold"); I("s_branch L_fin")
    P.label("L_loadpass")
    for u in range(2):
        I("s_bfe_u32 s82, s14, 0x%x" % (0x100000 + 16 * u)); I("s_bcnt1_i32_b32 s%d, s82" % (sM1 + u))
        for k in range(16):
            I("s_cbranch_scc0 L_lp%d" % u)
            I("s_ff1_i32_b32 s84, s82"); I("s_lshl_b32 s85, s84, 10"); I("s_add_u32 s85, s85, s%d" % (sB + u)); I("s_bitset0_b32 s82, s84")
            I("buffer_load_dwordx4 %s, v%d, %s, s85 offen sc1" % (slot(16 * u + k), VL16, srd("WS")))
            I("s_cmp_lg_u32 s82, 0")
        P.label("L_lp%d" % u)
    I("s_setpc_b64 s[88:89]")
    P.label("L_sumpass")
    for u in range(2):
        for k in range(16):
            I("s_cmp_le_u32 s%d, %d" % (sM1 + u, k)); I("s_cbranch_scc1 L_sp%d" % u)
            for hi in range(2):
                d = r4(SS + 8 * u + 4 * hi); I("%s %s, %s, %s, %s" % (MF, d, r4(SEL + (0 if hi else 2)), slot(16 * u + k), d))
        P.label("L_sp%d" % u)
        I("s_mov_b32 s%d, 0" % (sM1 + u))
    I("s_setpc_b64 s[88:89]")
    P.label("L_done")
    I("s_cmp_lg_u32 s%d, 0" % sW); I("s_cbranch_scc1 L_meet")
    I("s_waitcnt vmcnt(0)"); I("v_readfirstlane_b32 s82, v7"); I("s_nop 1"); I("v_mov_b32 v6, s82"); I("ds_write_b32 v5, v6 offset:128"); I("s_waitcnt lgkmcnt(0)")
    P.label("L_meet")
    I("s_barrier")
    I("ds_read_b32 v7, v5 offset:128"); I("s_waitcnt lgkmcnt(0)"); I("v_readfirstlane_b32 s82, v7"); I("s_nop 0")
    I("s_and_b32 s84, s82, 31"); I("s_cmp_lg_u32 s84, 15"); I("s_cbranch_scc1 L_fin")
    I("s_lshr_b32 s82, s82, 8"); I("s_cmp_lg_u32 s%d, 16" % sFC); I("s_cselect_b32 s84, 1, 0"); I("s_or_b32 s82, s82, s84")
    I("s_cmp_eq_u32 s82, 0"); I("s_cbranch_scc1 L_fin")
    I("s_mov_b32 s%d, 1" % sRD); I("s_mov_b32 s%d, 1" % sALL); I("s_mov_b32 s%d, 0" % sSH)
    P.label("L_cold")
    I("s_waitcnt vmcnt(0) lgkmcnt(0)"); I("s_barrier")
    for x in share_s() + share_v():
        for y in x.split("\n"): I(y.strip())
    for j in range(32):
        I(bload(j))
        if j & 3 == 3: I("s_add_u32 s18, s18, 4096")
    I("s_waitcnt vmcnt(0)")
    P.vm = []
    for i in range(8):
        for g_ in w2dma(i): issue_group(g_, "x")
    I("s_waitcnt vmcnt(0) lgkmcnt(0)"); P.vm = []
    I("s_barrier"); I("s_branch L_roles")
    P.label("L_fin")
    if timing:
        I("s_waitcnt vmcnt(0)"); P.vm = []
        stamp(34); rstamp(43); I("v_writelane_b32 v0, s100, 40")
        I("s_lshl_b32 s94, s2, 2"); I("s_add_u32 s94, s94, s%d" % sW); I("s_lshl_b32 s94, s94, 10"); I("s_add_u32 s94, s94, 0x%x" % WS_T)
        I("buffer_store_dword v0, v%d, %s, s94 offen" % (VL16, srd("WS")))
    P.label("L_end"); I("s_endpgm")
    P.label("L_code_end")
    for n in rare_sites:
        P.label("L_rare_%d" % n); I("s_mov_b32 s%d, %d" % (sRET, n)); I("s_branch L_rp_%d" % (n % 2))
    for par in range(2):
        P.label("L_rp_%d" % par)
        I("s_nop 15")
        s = S[par]; s2 = S[1 - par]; lo = LB[par]; ln = LB[1 - par]; pk = PK[par]
        for G in range(2):
            e = [s + 8 * kt + 4 * G + r for kt in range(2) for r in range(4)]
            e2 = [s2 + 8 * kt + 4 * G + r for kt in range(2) for r in range(4)]
            m = MX + G
            I("v_log_f32 v%d, v%d" % (m, lo + G))
            I("v_max3_f32 v%d, v%d, v%d, v%d" % (T0, e[0], e[1], e[2])); I("v_max3_f32 v%d, v%d, v%d, v%d" % (T0, T0, e[3], e[4]))
            I("v_max3_f32 v%d, v%d, v%d, v%d" % (T0, T0, e[5], e[6])); I("v_max3_f32 v%d, v%d, v%d, v%d" % (m, m, T0, e[7]))
            for k, t in xlane("v_max_f32", m, T0): I(t)
            I("v_max_f32 v%d, 0, v%d" % (m, m))
            I("v_exp_f32 v%d, -v%d" % (TC, m))
            for x in e + e2 + [NEGM + 4 * G + r for r in range(4)]: I("v_sub_f32 v%d, v%d, v%d" % (x, x, m))
            I("v_mul_f32 v%d, v%d, v%d" % (lo + G, lo + G, TC))
            for t in range(16):
                for r in range(4): I("v_accvgpr_read_b32 v%d, a%d" % (PT + r, O + 8 * t + 4 * G + r))
                for r in range(4): I("v_mul_f32 v%d, v%d, v%d" % (PT + r, PT + r, TC))
                for r in range(4): I("v_accvgpr_write_b32 a%d, v%d" % (O + 8 * t + 4 * G + r, PT + r))
            for j, x in enumerate(e): I("v_exp_f32 v%d, v%d" % (PT + j, x))
            I("v_add_f32 v%d, v%d, v%d" % (ln + G, lo + G, PT))
            for j in range(1, 8): I("v_add_f32 v%d, v%d, v%d" % (ln + G, ln + G, PT + j))
            for j in range(4): I("v_cvt_pk_bf16_f32 v%d, v%d, v%d" % (pk + 4 * G + j, PT + 2 * j, PT + 2 * j + 1))
        I("s_nop 3")
        mine = [n for n in rare_sites if n % 2 == par]
        for n in mine[:-1]:
            I("s_cmp_eq_u32 s%d, %d" % (sRET, n)); I("s_cbranch_scc1 L_back_%d" % n)
        I("s_branch L_back_%d" % mine[-1])
    rep = []
    P.lines = fix_hazards(P.lines, rep)
    if verbose:
        print("K1: MFMAs(virtual) %d, nops inserted %d (total ws %d) pub %s" % (N, len(rep), sum(r[1] for r in rep), pub))
        print("penalty per step:", [G_.total_pen(sb[t], sb[t + 1]) for t in range(len(sb) - 1)])
    for p in check_text(P.text()): print(p)
    return P.text(), rep, G_, sb

def head():
    import os
    p = "cdna_kernels/%s.s.ref" % NAME
    return open(p).read().split("; Override launch")[0] if os.path.exists(p) else ""
def build(**kw):
    k1, rep, G_, sb = gen_k1(**kw)
    s = head()
    s += "; @launch grid=(256,1,1) block=(256,1,1) lds=163840\n"
    s += '.amdgcn_target "amdgcn-amd-amdhsa--gfx950"\n.text\n'
    s += ".globl %s\n.p2align 8\n.type %s,@function\n%s:\n%s" % (K1, K1, K1, k1)
    s += '''.section .rodata,"a"
.p2align 6
.amdhsa_kernel %s
  .amdhsa_next_free_vgpr 512
  .amdhsa_next_free_sgpr 102
  .amdhsa_accum_offset 256
  .amdhsa_group_segment_fixed_size 0
  .amdhsa_kernarg_size 96
  .amdhsa_user_sgpr_count 2
  .amdhsa_user_sgpr_kernarg_segment_ptr 1
  .amdhsa_system_sgpr_workgroup_id_x 1
.end_amdhsa_kernel
''' % K1
    return s, rep, G_, sb

if __name__ == "__main__":
    import json
    if len(sys.argv) > 1:
        for name, kw in json.loads(sys.argv[1]).items():
            open(name, "w").write(build(verbose=False, **kw)[0])
    else:
        open("k19_a.s", "w").write(build()[0])
        open("k19_fail.s", "w").write(build(test_fail=5, verbose=False)[0])
        open("k19_nof.s", "w").write(build(test_nof=0x0410, spin=40, verbose=False)[0])
        open("k19_at.s", "w").write(build(timing=True, verbose=False)[0])
```

```python
import sys, struct
from gen import *
NAME = "recurrent_scan__mha_block_cached__glu_gated_swiglu__prompt"
K1 = NAME + "_kernel"
LOG2E = 1.4426950408889634
def f2u(x): return struct.unpack("<I", struct.pack("<f", x))[0]
def r4(x, p="v"): return "%s[%d:%d]" % (p, x, x + 3)
WS_S = 0x0; WS_F = 0x2000000; WS_FL = 0x4000000; WS_G = 0x4100000; WS_T = 0xa000000
BIG = 0x40000000
MF = "v_mfma_f32_16x16x32_bf16"

def gen_k1(L=10, LW=9, estep=3, e0=8, timing=False, verbose=True, bar_off=25, dma_step=6, spin=3000, test_fail=0, test_nof=0, pub_lag=50, gray=1, r1mask=0x00ffffff, poll2=16, r2delay=12, r1_at=4, sum_ks=8, lpf=3, chain=7, flag_at=10):
    P = Prog(); I = P.ins
    O = 0; GU = 128; FRA = 192; FRF = 128
    S = [16, 32]; NEGM = 48; LB = [56, 58]; MX = 60; TC = 62; T0 = 63
    WA = 48; FRV = 64; PT = 64; PK = [80, 88]
    KA = 96; VA = 100; KD = 108; VD = 112; TA = 116; TD = 124
    XC = lambda s, G: 128 + 8 * (13 - s) + 4 * G
    QF = lambda G, k: 128 + 32 * G + 4 * k
    H = lambda k, G: XC(k, G)
    OF = lambda k, G: 128 + 8 * k + 4 * G
    VAL = 240; WD = 248; QD = 252
    PFV = 9; PFD = 10; PFW = 11; PF2 = 12
    FA = [192, 200]; AVP = 13; AVW = 54
    ST = 16
    VL16 = 1; MB = 2; RSQ = 2; DM = 4; RSN = 4; CI = 6; RL = 60
    TMP = 8
    SRD = dict(X=28, K=32, V=36, WQ=40, WO=44, W1=48, W3=52, W2=56, WS=60, DBG=20, OUT=24, PF=12)
    def srd(n): return "s[%d:%d]" % (SRD[n], SRD[n] + 3)
    sH, sQB, sW, sM0, sSO, sLOOP, sTH, sRET, sCW, sFO, sSOe, sFC = 64, 65, 66, 67, 68, 70, 71, 72, 73, 74, 75, 76
    sW13, sWQ, sW2, sWO, sK, sV, sT0, sT1, sMASK, sAT, sFLW = 78, 79, 80, 81, 82, 83, 84, 85, 86, 87, 3
    sDG = 4; sPFO = 16
    I("s_cmp_ge_u32 s2, 256"); I("s_cbranch_scc1 L_end")
    I("s_load_dwordx16 s[4:19], s[0:1], 0"); I("s_load_dwordx8 s[20:27], s[0:1], 64")
    if timing: I("s_memtime s[98:99]"); I("s_memrealtime s[100:101]")
    I("s_and_b32 s%d, s2, 7" % sH); I("s_lshr_b32 s%d, s2, 3" % sQB)
    I("s_lshr_b32 s%d, s%d, 4" % (sT0, sQB)); I("s_lshl_b32 s%d, s%d, 1" % (sH, sH)); I("s_add_u32 s%d, s%d, s%d" % (sH, sH, sT0))
    I("s_and_b32 s%d, s%d, 15" % (sQB, sQB))
    I("v_lshrrev_b32 v8, 6, v0"); I("s_nop 0"); I("v_readfirstlane_b32 s%d, v8" % sW)
    I("v_and_b32 v9, 63, v0"); I("v_and_b32 v10, 15, v0"); I("v_bfe_u32 v11, v0, 4, 2")
    I("v_lshlrev_b32 v%d, 4, v9" % VL16)
    I("s_lshl_b32 s%d, s%d, 2" % (sT0, sQB)); I("s_add_u32 s%d, s%d, s%d" % (sT0, sT0, sW))
    I("s_getpc_b64 s[88:89]"); P.label("L_pc")
    I("s_and_b32 s%d, s%d, 15" % (sT1, sT0)); I("s_lshl_b32 s%d, s%d, 13" % (sT1, sT1))
    I("v_lshlrev_b32 v14, 7, v9"); I("v_add_u32 v14, s%d, v14" % sT1); I("v_min_u32 v14, L_code_end-L_pc-4, v14")
    P.vmem("global_load_dword v44, v14, s[88:89]", "cpf")
    I("s_mul_i32 s%d, s%d, %d" % (sSO, sQB, 128 * 896))
    I("s_lshl_b32 s%d, s%d, 5" % (sT1, sW)); I("s_lshl_b32 s%d, s%d, 12" % (sM0, sW))
    I("v_lshrrev_b32 v14, 3, v9"); I("v_add_u32 v14, s%d, v14" % sT1); I("v_mul_u32_u24 v14, 896, v14")
    I("v_bfe_u32 v15, v0, 1, 2"); I("v_xor_b32 v15, v15, v11"); I("v_lshl_add_u32 v14, v15, 5, v14"); I("v_and_b32 v15, 1, v0"); I("v_lshl_add_u32 v14, v15, 4, v14")
    for j in range(4): I("v_add_u32 v%d, %d, v14" % (TD + j, j * (8 * 896 - 1024)))
    Q_ = []; J = Q_.append
    J("s_mul_i32 s%d, s%d, 224" % (sW13, sH))
    J("s_lshr_b32 s%d, s%d, 1" % (sK, sW)); J("s_lshl_b32 s%d, s%d, 5" % (sK, sK)); J("s_and_b32 s%d, s%d, 1" % (sV, sW)); J("s_lshl_b32 s%d, s%d, 2" % (sV, sV))
    J("s_add_u32 s%d, s%d, s%d" % (sK, sK, sV))
    J("v_add_u32 v12, s%d, v11" % sK); J("v_mul_u32_u24 v12, 3584, v12")
    J("v_and_b32 v13, 1, v10"); J("v_lshl_add_u32 v12, v13, 4, v12"); J("v_lshrrev_b32 v13, 1, v10")
    for j in range(4):
        J("v_add_u32 v14, %d, v11" % (4 * (j & 1))); J("v_xor_b32 v14, v14, v13"); J("v_min_u32 v14, 6, v14"); J("v_lshl_add_u32 v14, v14, 5, v12")
        J("v_add_u32 v%d, %d, v14" % (WD + j, j * (8 * 3584 - 1024)))
    NOK = len(Q_)
    def mk(n, lo, size, add=None, f=None):
        f = f or J; d = SRD[n]
        if add is None: f("s_mov_b32 s%d, s%d" % (d, lo)); f("s_mov_b32 s%d, s%d" % (d + 1, lo + 1))
        else: f("s_add_u32 s%d, s%d, s%d\n    s_addc_u32 s%d, s%d, 0" % (d, lo, add, d + 1, lo + 1))
        f("s_mov_b32 s%d, 0x%x" % (d + 2, size)); f("s_mov_b32 s%d, 0x20000" % (d + 3))
    mk("W1", 16, 448 * 3584); mk("W3", 18, 448 * 3584)
    J("s_lshl_b32 s%d, s%d, 20" % (sK, sH))
    mk("K", 6, 0x100000, sK); mk("V", 8, 0x100000, sK)
    mk("WQ", 10, 448 * 8192); mk("WO", 12, 4096 * 896); mk("W2", 20, 1792 * 896); mk("WS", 26, 0x10000000)
    J("s_mov_b32 s20, s24"); J("s_mov_b32 s21, s25"); J("s_mov_b32 s24, s22"); J("s_mov_b32 s25, s23")
    J("s_mov_b32 s22, 256"); J("s_mov_b32 s23, 0x20000"); J("s_mov_b32 s26, %d" % (2048 * 896)); J("s_mov_b32 s27, 0x20000")
    J("s_lshl_b32 s%d, s%d, 4" % (sCW, sQB)); J("s_add_u32 s%d, s%d, 4096" % (sAT, sCW))
    J("s_lshl_b32 s%d, s%d, 5" % (sFLW, sT0)); J("s_add_u32 s%d, s%d, s%d" % (sFLW, sFLW, sH)); J("s_lshl_b32 s%d, s%d, 2" % (sFLW, sFLW)); J("s_add_u32 s%d, s%d, 0x%x" % (sFLW, sFLW, WS_FL))
    J("s_and_b32 s93, s%d, 0xffffff80" % sFLW)
    J("v_mov_b32 v47, 0x7f000000"); J("v_cmp_eq_u32 vcc, 0, v9"); J("s_nop 0"); J("v_cndmask_b32 v47, v47, 0, vcc")
    J("v_mov_b32 v45, 0x7f000000"); J("v_cmp_eq_u32 vcc, 0, v0"); J("v_mov_b32 v46, 0"); J("v_cndmask_b32 v45, v45, 0, vcc")
    J("s_lshl_b32 s%d, s%d, 9" % (sWQ, sH)); J("s_mul_i32 s%d, s%d, %d" % (sWO, sH, 256 * 896))
    J("s_mul_i32 s%d, s%d, %d" % (sFO, sT0, 28 * 16)); J("s_add_u32 s%d, s%d, s%d" % (sFO, sFO, sH)); J("s_lshl_b32 s%d, s%d, 10" % (sFO, sFO))
    J("s_add_u32 s%d, s%d, 0x%x" % (sSOe, sFO, WS_S))
    J("s_lshl_b32 s%d, s%d, 4" % (sFO, sT0)); J("s_add_u32 s%d, s%d, s%d" % (sFO, sFO, sH)); J("s_lshl_b32 s%d, s%d, 13" % (sFO, sFO)); J("s_add_u32 s%d, s%d, 0x%x" % (sFO, sFO, WS_F))
    J("s_add_u32 s91, s%d, 0x%x" % (sWO, 13 * 0x400000)); J("s_and_b32 s90, s%d, 3" % sH); J("s_lshl_b32 s90, s90, 8"); J("s_add_u32 s90, s90, 0x%x" % (12 * 0x400000))
    J("s_mov_b32 s%d, 0x53800000" % sTH); J("s_mov_b32 s%d, 0xffff0000" % sMASK)
    for r in range(4):
        m = (1 << r) | (1 << (20 + r)) | (1 << (40 + r)) | (1 << (60 + r))
        J("s_mov_b32 s%d, 0x%x" % (sDG + 2 * r, m & 0xffffffff)); J("s_mov_b32 s%d, 0x%x" % (sDG + 2 * r + 1, m >> 32))
    for r in range(4): J("v_mov_b32 v%d, 0x3f803f80" % (ST + 16 + r))
    J("v_and_b32 v12, 31, v0"); J("v_bfe_u32 v13, v0, 5, 1")
    J("v_lshlrev_b32 v14, 9, v10")
    for s in range(4):
        J("v_add_u32 v15, %d, v11" % (4 * s)); J("v_xor_b32 v15, v15, v10"); J("v_lshl_add_u32 v%d, v15, 4, v14" % (KA + s))
    J("v_bfe_u32 v4, v0, 2, 4"); J("v_and_b32 v5, 3, v0"); J("v_and_b32 v6, 7, v4")
    J("v_lshlrev_b32 v14, 8, v4"); J("v_lshl_add_u32 v14, v5, 3, v14")
    for t in range(7):
        J("v_xor_b32 v15, %d, v6" % t); J("v_lshl_add_u32 v%d, v15, 5, v14" % (WA + t)); J("v_add_u32 v%d, 0x10000, v%d" % (WA + 7 + t, WA + t))
    J("v_lshlrev_b32 v14, 9, v4"); J("v_lshl_add_u32 v14, v5, 3, v14")
    for b in range(8):
        J("v_xor_b32 v15, %d, v6" % b); J("v_lshl_add_u32 v%d, v15, 5, v14" % (VAL + b)); J("v_add_u32 v%d, 0x10000, v%d" % (VA + b, VAL + b))
    J("v_lshlrev_b32 v14, 7, v4"); J("v_lshl_add_u32 v14, v5, 3, v14"); J("v_bfe_u32 v7, v4, 1, 2")
    for t in range(4):
        J("v_xor_b32 v15, %d, v7" % t); J("v_lshl_add_u32 v%d, v15, 5, v14" % (TA + t)); J("v_add_u32 v%d, 0x10000, v%d" % (TA + 4 + t, TA + t))
    J("s_and_b32 s%d, s%d, 1" % (sT1, sW)); J("s_lshl_b32 s%d, s%d, 3" % (sT1, sT1))
    J("v_lshlrev_b32 v14, 9, v13"); J("v_add_u32 v14, s%d, v14" % sM0)
    for j in range(4):
        J("v_add_u32 v15, %d, v13" % (2 * j)); J("v_add_u32 v15, s%d, v15" % sT1); J("v_xor_b32 v15, v15, v12"); J("v_lshl_add_u32 v%d, v15, 4, v14" % (KD + j))
    J("s_lshl_b32 s%d, s%d, 1" % (sT1, sT1)); J("s_lshr_b32 s%d, s%d, 1" % (sK, sW)); J("s_lshl_b32 s%d, s%d, 2" % (sK, sK)); J("s_add_u32 s%d, s%d, s%d" % (sT1, sT1, sK))
    J("v_add_u32 v7, s%d, v13" % sT1); J("v_lshlrev_b32 v7, 13, v7")
    for j in range(4):
        J("v_add_u32 v15, %d, v13" % (2 * j)); J("v_lshlrev_b32 v15, 1, v15"); J("v_xor_b32 v15, v15, v12")
        J("v_lshl_add_u32 v%d, v15, 4, v14" % (VD + j))
        J("v_lshl_add_u32 v15, v15, 4, v7"); J("v_add_u32 v%d, %d, v15" % (QD + j, (8 * (j >> 1) + 2 * (j & 1)) * 8192 - 1024 * j))
    J("s_mov_b32 s%d, 0" % sK); J("s_mov_b32 s%d, 0" % sV)
    J("v_lshrrev_b32 v14, 3, v10"); J("v_lshlrev_b32 v14, 10, v14"); J("v_and_b32 v15, 7, v10"); J("v_lshl_add_u32 v14, v15, 7, v14"); J("v_add_u32 v14, s%d, v14" % sM0)
    J("v_bfe_u32 v15, v10, 1, 2"); J("v_lshlrev_b32 v15, 1, v15"); J("v_xor_b32 v15, v15, v11")
    J("v_lshl_add_u32 v2, v15, 4, v14"); J("v_xor_b32 v3, 64, v2")
    for k in range(2): J("v_add_u32 v%d, 0x10000, v%d" % (4 + k, 2 + k)); J("v_add_u32 v%d, 0x20000, v%d" % (6 + k, 2 + k))
    J("s_mul_i32 s%d, s%d, 28" % (sT1, sT0)); J("v_add_u32 v14, s%d, v9" % sT1); J("v_mov_b32 v13, 0x7f000000"); J("v_cmp_gt_u32 vcc, 28, v9")
    J("v_lshlrev_b32 v42, 7, v14"); J("v_cndmask_b32 v42, v13, v42, vcc")
    J("v_lshrrev_b32 v14, 1, v9"); J("v_add_u32 v14, s%d, v14" % sT1); J("v_mul_u32_u24 v14, 896, v14"); J("v_and_b32 v15, 1, v9"); J("v_lshl_add_u32 v14, v15, 7, v14"); J("v_cmp_gt_u32 vcc, 56, v9"); J("s_nop 0"); J("v_cndmask_b32 v41, v13, v14, vcc")
    J("s_and_b32 s%d, s%d, 1" % (sT1, sW)); J("s_lshl_b32 s%d, s%d, 13" % (sT1, sT1)); J("v_lshlrev_b32 v43, 7, v9"); J("v_add_u32 v43, s%d, v43" % sT1)
    J("s_cmp_lt_u32 s%d, 2\n    s_cselect_b32 s12, s%d, s%d\n    s_cselect_b32 s13, s%d, s%d" % (sW, SRD["K"], SRD["V"], SRD["K"] + 1, SRD["V"] + 1)); J("s_mov_b32 s14, 0x100000"); J("s_mov_b32 s15, 0x20000")
    J("s_and_b32 s16, s%d, 3" % sQB); J("s_lshl_b32 s16, s16, 14"); J("s_lshr_b32 s17, s%d, 2" % sQB)
    J("s_sub_u32 s17, 4, s17"); J("s_lshl_b32 s17, s17, 30"); J("s_add_u32 s16, s16, s17")
    def sst(k):
        if timing: I("s_memtime s[94:95]"); I("s_waitcnt lgkmcnt(0)"); I("s_sub_u32 s94, s94, s98"); I("v_mov_b32 v%d, s94" % (36 + k))
    def drain(n):
        for _ in range(min(n, len(Q_))):
            for x in Q_.pop(0).split("\n"): I(x.strip())
    drain(NOK)
    I("s_waitcnt lgkmcnt(0)")
    sst(0)
    mk("X", 4, 2048 * 896, f=I)
    XS = [0x4000, 0x8000, 0xc000, 0x14000, 0x18000, 0x1c000, 0x20000]
    per = (len(Q_) + 27) // 28
    for j in range(7):
        I("s_add_u32 m0, s%d, %d" % (sM0, XS[j]))
        if j: I("s_add_u32 s%d, s%d, 128" % (sSO, sSO))
        else: I("s_nop 0")
        for i in range(4):
            P.vmem("buffer_load_dwordx4 v%d, %s, s%d offen offset:%d lds" % (TD + i, srd("X"), sSO, 1024 * i), ("x", j))
            drain(per)
    drain(10 ** 6)
    NV = 16
    TL = 9
    tiles = []
    for t in range(7): tiles.append([("W1", WD, (sW13, t * 64 * 3584)), ("W3", WD, (sW13, t * 64 * 3584))])
    for j in range(7): tiles.append([("WQ", QD, (sWQ, 64 * j * 8192)), ("WQ", QD, (sWQ, (64 * j + 32) * 8192))])
    tiles.append([("K", KD, "inc"), None])
    for n in range(NV): tiles.append([("K", KD, "inc") if n < NV - 1 else None, ("V", VD, "inc")])
    for j in range(7): tiles.append([("WO", TD, (sWO, 128 * j)), ("WO", TD, (sWO, 128 * 896 + 128 * j))])
    NT = len(tiles); AT = 15
    def dma_ops(tau):
        groups = []
        for hf, half in enumerate(tiles[tau]):
            if half is None: continue
            sn, vb, so = half
            m0 = "s_add_u32 m0, s%d, %d" % (sM0, 65536 * hf + 16384 * (tau % 4))
            if so == "inc": sreg = sK if sn == "K" else sV; pre = [m0]; post = ["s_add_u32 s%d, s%d, 16384" % (sreg, sreg)]
            else: sreg = sSO + hf; pre = [m0, "s_add_u32 s%d, s%d, %d" % (sreg, so[0], so[1])]; post = []
            for j in range(4):
                groups.append((pre if j == 0 else [], "buffer_load_dwordx4 v%d, %s, s%d offen offset:%d lds" % (vb + j, srd(sn), sreg, 1024 * j), post if j == 3 else []))
        return groups
    def issue_group(g, tag):
        pre, d, post = g
        for x in pre: I(x)
        if pre: I("s_nop 0")
        P.vmem(d, tag)
        for x in post: I(x)
    t0 = dma_ops(0)
    def xread(s):
        j = s >> 1; base = XS[j]
        P.wait(vm=[("x", j)])
        for G in range(2):
            P.ds("ds_read_b128 %s, v%d offset:%d" % (r4(XC(s, G)), 2 + (s & 1) + 2 * (base >> 16), (base & 0xffff) + 2048 * G), ("xf", s))
    sst(1)
    for g in t0[:4]: issue_group(g, ("T", 0))
    for s in range(4): xread(s)
    for g in t0[4:]: issue_group(g, ("T", 0))
    sst(2)
    for s in range(14):
        if s + 4 < 14: xread(s + 4)
        P.wait(lg=[("xf", s)])
        for G in range(2): I("%s %s, %s, %s, %s" % (MF, r4(ST + 4 * G), r4(ST + 16), r4(XC(s, G)), "0" if s == 0 else r4(ST + 4 * G)))
    sst(3)
    def xlane(op, reg, tmp):
        ops = []
        for sw in ("v_permlane32_swap_b32", "v_permlane16_swap_b32"):
            ops += [("V", "v_mov_b32 v%d, v%d" % (tmp, reg)), ("T", "%s v%d, v%d" % (sw, reg, tmp)), ("V", "%s v%d, v%d, v%d" % (op, reg, reg, tmp))]
        return ops
    def center_ops(s):
        ops = []
        regs = [(G, XC(s, G) + r) for G in range(2) for r in range(4)]
        for i, (G, x) in enumerate(regs):
            lo = TMP + 2 * (i % 3); hi = lo + 1
            ops += [("V", "v_lshlrev_b32 v%d, 16, v%d" % (lo, x)), ("V", "v_and_b32 v%d, s%d, v%d" % (hi, sMASK, x)),
                    ("V", "v_sub_f32 v%d, v%d, v%d" % (lo, lo, MB + G)), ("V", "v_sub_f32 v%d, v%d, v%d" % (hi, hi, MB + G)),
                    ("V", "v_cvt_pk_bf16_f32 v%d, v%d, v%d" % (x, lo, hi))]
        return ops
    pre_ops = []
    for G in range(2):
        a = TMP + G
        pre_ops += ["v_mul_f32 v%d, 0x%x, v%d" % (a, f2u(1.0 / 448), ST + 4 * G), "v_cvt_pk_bf16_f32 v%d, v%d, v%d" % (MB + G, a, a), "v_lshlrev_b32 v%d, 16, v%d" % (MB + G, MB + G),
                    "v_sub_f32 v%d, v%d, v%d" % (DM + G, a, MB + G)]
    pre_ops += [t for k, t in center_ops(0)]
    for i, g in enumerate(dma_ops(1)):
        issue_group(g, ("T", 1))
        for x in pre_ops[6 * i:6 * i + 6]: I(x)
    P.wait(vm=[("T", 0)])
    I("s_barrier")
    if timing:
        for k in range(4): I("v_readfirstlane_b32 s94, v%d" % (36 + k)); I("s_nop 3"); I("v_writelane_b32 v0, s94, %d" % (50 + k))

    fr = []; sb = []
    def tr(areg, off, d2): return [("tr0", areg, off), ("tr1", areg, off + d2)]
    def add(reads, mf, ring, **kw): fr.append(dict(reads=reads, mf=mf, ring=ring, **kw))
    mark = {}
    for tau in range(7):
        sb.append(2 * len(fr))
        for ks in range(2):
            s = 2 * tau + ks
            mark[("F1", s)] = 2 * len(fr)
            for t in range(7):
                for kind in range(2):
                    ms = []
                    for G in range(2):
                        a = r4(GU + ((kind * 7 + t) * 2 + G) * 4, "a")
                        ms.append((a, r4(XC(s, G)), "0" if s == 0 else a, None))
                    add(tr(WA + 7 * kind + t, 8192 * ks + 16384 * (tau % 4), 4096), ms, "v")
                if t == 3:
                    add([], [(r4(ST + 8 + 4 * G), r4(XC(s, G)), "0" if s == 0 else r4(ST + 8 + 4 * G), r4(XC(s, G))) for G in range(2)], None)
    for j in range(7):
        tau = 7 + j; sb.append(2 * len(fr))
        order = [(hf, t) for hf in range(2) for t in range(16)] if (j < 6 and not (chain & 4 and j > 1)) else [(hf, t) for t in range(16) for hf in range(2)]
        for hf, t in order:
            s = 2 * j + hf
            ms = []
            for G in range(2):
                a = r4(O + 8 * t + 4 * G, "a")
                ms.append((a, r4(XC(s, G)), "0" if s == 0 else a, None))
            add(tr((VA if hf else VAL) + (t & 7), 256 * (t >> 3) + 16384 * (tau % 4), 8192), ms, "v", cg=(("q", j, t) if (j > 1 and chain & 4) else None))
    outs = []
    def qk_block(n, tau):
        order = [(kt, s) for kt in range(2) for s in range(8)] if (n > 0 and gray < 2) else [(kt, s) for s in range(8) for kt in range(2)]
        for kt, s in order:
            ms = []
            for G in range(2):
                d = r4(S[n % 2] + 8 * kt + 4 * G)
                c = ("0" if n <= 1 else r4(NEGM + 4 * G)) if s == 0 else d
                ms.append((d, r4(QF(G, s)), c, None))
            if n == 0 and kt == 0: mark[("QK0", s)] = 2 * len(fr)
            add([("b128", KA + (s & 3), 256 * (s >> 2) + 8192 * kt + 16384 * (tau % 4))], ms, "f" if n <= TL + 3 else "a", cg=(("qk", n, kt) if (0 < n <= TL + 3 and chain & 1) else None))
    def pv_block(n, tau):
        for t in range(16):
            ms = []
            for G in range(2):
                o = r4(O + 8 * t + 4 * G, "a")
                ms.append((o, r4(PK[n % 2] + 4 * G), "0" if n == 0 else o, None))
            add(tr(VA + (t & 7), 256 * (t >> 3) + 16384 * (tau % 4), 8192), ms, "a")
    sb.append(2 * len(fr)); qk_block(0, 14)
    pvs = {}; fsum_at = {}
    for n in range(NV):
        tau = AT + n; sb.append(2 * len(fr))
        if n < NV - 1: qk_block(n + 1, tau)
        pvs[n] = 2 * len(fr)
        pv_block(n, tau)
    OT = AT + NV
    for j in range(7):
        tau = OT + j; sb.append(2 * len(fr))
        order = [(tt, k) for k in range(8) for tt in range(4)] if j == 0 else [(tt, k) for tt in range(4) for k in range(8)]
        for tt, k in order:
            acc = 16 + 48 * (j & 1) + 8 * tt
            ms = [(r4(acc + 4 * G), r4(OF(k, G)), "0" if k == 0 else r4(acc + 4 * G), None) for G in range(2)]
            if j == 0 and tt == 0: mark[("O", k)] = 2 * len(fr)
            add(tr(TA + 4 * (k >> 2) + tt, 4096 * (k & 3) + 16384 * (tau % 4), 2048), ms, "a", cg=(("o", j, tt, k >> 2) if (j > 0 and chain & 2) else None))
            if k == 7: outs.append(("S", 2 * len(fr), acc, j))
    N = 2 * len(fr); sb.append(N)
    END = N + 40
    G_ = Gaps2(END)
    seq = []; i = 0
    while i < len(fr):
        cg = fr[i].get("cg"); j = i + 1
        while cg is not None and j < len(fr) and fr[j].get("cg") == cg: j += 1
        if j - i > 1:
            grp = list(range(i, j))
            seq += [(f_, 0) for f_ in grp] + [(f_, 1) for f_ in reversed(grp)]
            a_, b_ = fr[grp[0]]["mf"][1], fr[grp[-1]]["mf"][1]
            fr[grp[0]]["mf"][1] = (a_[0], a_[1], b_[2], a_[3]); fr[grp[-1]]["mf"][1] = (b_[0], b_[1], a_[2], b_[3])
        else:
            o_ = 1 if (gray and i % 2 == 1 and fr[i]["reads"]) else 0
            seq += [(i, o_), (i, 1 - o_)]
        i = j
    first = {}; last = {}
    for p_, (f_, k_) in enumerate(seq):
        first.setdefault(f_, p_); last[f_] = p_
    ws = set(first.values()) | set(range(0, N, 2))
    for p_ in sorted(ws): G_.put(p_, "S", ("waitslot", seq[p_][0]), force=True)
    barpos = {}
    for tau in range(NT):
        g = sb[tau + 1] - bar_off; barpos[tau] = g
        assert g % 2 == 1
        G_.put(g, "S", ("bar", tau), force=True); G_.put(g, "S", ("nil",), force=True)
    holes = set(); estart = {}
    for n in range(1, NV - 1):
        estart[n] = pvs[n - 1] + e0
        for e in range(16): holes.add(estart[n] + estep * e)
    cnt = {"v": 0, "a": 0, "f": 0}
    rl = []
    for i, f in enumerate(fr):
        if not f["reads"]: continue
        if f["ring"] == "v": r = FRV + 4 * (cnt["v"] % 8); p = "v"; lead = LW
        elif f["ring"] == "f": r = FRF + 4 * (cnt["f"] % 16); p = "a"; lead = L
        else: r = FRA + 4 * (cnt["a"] % 16); p = "a"; lead = L
        cnt[f["ring"]] += 1
        f["fr"] = r4(r, p)
        for q, (k, a, off) in enumerate(f["reads"]):
            assert off < 65536
            if k == "b128": txt = "ds_read_b128 %s[%d:%d], v%d offset:%d" % (p, r, r + 3, a, off)
            elif k == "tr0": txt = "ds_read_b64_tr_b16 %s[%d:%d], v%d offset:%d" % (p, r, r + 1, a, off)
            else: txt = "ds_read_b64_tr_b16 %s[%d:%d], v%d offset:%d" % (p, r + 2, r + 3, a, off)
            rl.append([first[i] - lead, txt, i])
    nxt = 10 ** 9
    for x in reversed(rl):
        g = min(x[0], nxt - 1)
        while g in holes: g -= 1
        x[0] = g; nxt = g
    lastuse = {}
    for g, txt, i in rl:
        g = max(g, 0)
        key = fr[i]["fr"]
        if key in lastuse and lastuse[key] != i: assert g > last[lastuse[key]], ("ring WAR", i, g, lastuse[key])
        lastuse[key] = i
        tau = max(t for t in range(NT) if sb[t] <= 2 * i)
        if tau > 0: assert g > barpos[tau - 1], ("read before barrier", i, g, tau, barpos[tau - 1])
        G_.put(g, "D", ("ds", txt, ("f", i)), force=True)
    def place_softmax(n, e0_, estep_, limit, dense=False):
        s = S[n % 2]; pk = PK[n % 2]; lo = LB[n % 2]; ln = LB[(n + 1) % 2]
        first = [True, True]; gl = 0; pend = []
        for e, (kt, G, r) in enumerate([(kt, G, r) for kt in range(2) for G in range(2) for r in range(4)]):
            src = s + 8 * kt + 4 * G + r; p = PT + e
            g = G_.put(e0_ + int(estep_ * e), "T", ("ins", "v_exp_f32 v%d, v%d" % (p, src)), force=True)
            pend.append((g + 1, "v_add_f32 v%d, v%d, v%d" % (ln + G, (lo if first[G] else ln) + G, p))); first[G] = False
            if r % 2 == 1: pend.append((g + 1, "v_cvt_pk_bf16_f32 v%d, v%d, v%d" % (pk + 4 * G + 2 * kt + r // 2, p - 1, p)))
        pend.append((0, "v_add_f32 v%d, v%d, v%d" % (TC, ln, ln + 1))); pend.append((0, "v_cmp_nge_f32 vcc, s%d, v%d" % (sTH, TC)))
        for k, (g, t) in enumerate(pend):
            st = max(g, gl)
            gl = G_.put(st, "V", ("ins", t), limit=min(st + (1 if dense else 4), limit - 1))
        G_.put(gl + 1, "S", ("chk", n), limit=limit)
    b0 = sb[AT]
    ops = []
    for G in range(2):
        e = [S[0] + 8 * kt + 4 * G + r for kt in range(2) for r in range(4)]
        m = MX + G
        ops += [("V", "v_max3_f32 v%d, v%d, v%d, v%d" % (m, e[0], e[1], e[2])), ("V", "v_max3_f32 v%d, v%d, v%d, v%d" % (m, m, e[3], e[4])),
                ("V", "v_max3_f32 v%d, v%d, v%d, v%d" % (m, m, e[5], e[6])), ("V", "v_max_f32 v%d, v%d, v%d" % (m, m, e[7]))]
        ops += xlane("v_max_f32", m, T0)
        ops += [("V", "v_sub_f32 v%d, v%d, v%d" % (x, x, m)) for x in e]
        ops += [("V", "v_mov_b32 v%d, 0" % (LB[0] + G))]
    g_init = G_.chain(ops, b0 + 4, b0 + 15)
    for n in range(NV):
        bn = sb[AT + n]
        if n == 0: place_softmax(0, g_init + 1, 0.75, pvs[0] - 1, dense=True)
        elif n == NV - 1: place_softmax(n, pvs[n - 1] + 6, 1.4, pvs[n], dense=True)
        else: place_softmax(n, estart[n], estep, bn + 31)
    def fix_ops(kt): return [("V", "v_sub_f32 v%d, v%d, v%d" % (S[1] + 8 * kt + 4 * G + r, S[1] + 8 * kt + 4 * G + r, MX + G)) for G in range(2) for r in range(4)]
    G_.chain(fix_ops(0), b0 + (30 if gray < 2 else 36), estart[1] - 1)
    G_.chain(fix_ops(1) + [("V", "v_sub_f32 v%d, 0, v%d" % (NEGM + 4 * G + r, MX + G)) for G in range(2) for r in range(4)], estart[1], min(estart[1] + 8 * estep + 6, b0 + 62))
    def place_dma(groups, g, dstep, tag):
        for pre, d, post in groups:
            g0 = g
            for x in pre: g0 = G_.put(g0 - 1, "S", ("ins", x), limit=g0 + 1) + 1
            g0 = G_.put(max(g, g0), "M", ("vm", d, tag), limit=max(g, g0) + 2)
            for x in post: G_.put(g0 + 1, "S", ("ins", x), limit=g0 + 2)
            g = max(g + dstep, g0 + 3)
        return g, g0
    place_dma(dma_ops(2), 3, 4, ("T", 2))
    dmaend = {}
    lead_pf = lambda d, v: ([], "buffer_load_dword v%d, v%d, %s, s%d offen" % (d, v, srd("PF"), sPFO), ["s_add_u32 s%d, s%d, 0x40010000" % (sPFO, sPFO)])
    for tau in range(NT - 3):
        nn = tau - AT
        groups = dma_ops(tau + 3)
        pre_g = []
        extra = []
        if tau in (3, 7, 11): extra = [lead_pf(44, 43)] if lpf & 1 else [([], 'buffer_load_dword v44, v45, %s, s%d offen' % (srd('DBG'), sAT), ['s_add_u32 s%d, s%d, 0x40010000' % (sPFO, sPFO)])]
        if nn in (1, 5) and lpf & 2: extra = [lead_pf(PFD, PFV)]
        if tau == 9: extra = [([], "buffer_store_dword v46, v47, %s, s%d offen sc1" % (srd("WS"), sFLW), [])]
        if nn in (2, 6): extra = [([], "buffer_atomic_add v3, v4, %s, s%d offen offset:4" % (srd("DBG"), sAT), ["s_sub_u32 s%d, s%d, 4096" % (sAT, sAT)])]
        if nn in (3, 7): extra = [([], "buffer_load_dword v%d, v%d, %s, s91 offen" % (PFD, PFW, srd("WO")), ["s_sub_u32 s91, s91, 0x400000"])]
        if nn in (0, 4, 8): extra = [([], "buffer_load_dword v%d, v%d, %s, s90 offen" % (PFD, PF2, srd("W2")), ["s_sub_u32 s90, s90, 0x400000"])]
        g = barpos[tau] + 3; hi = barpos[tau + 1] - 1
        dstep = min(dma_step, (hi - g) // (len(groups) + len(extra) + len(pre_g)))
        if pre_g: g, g0 = place_dma(pre_g, g, dstep, ("T", tau + 2))
        g, g0 = place_dma(groups, g, dstep, ("T", tau + 3))
        if extra: g, g0 = place_dma(extra, g, dstep, ("T", tau + 4))
        assert g0 <= barpos[tau + 1] + 1, (tau, g0, barpos[tau + 1])
        dmaend[tau] = g0
    for s in range(1, 14):
        G_.chain(center_ops(s), mark[("F1", s - 1)] + 1, mark[("F1", s)] - 1)
    q0 = sb[7]; q1 = sb[14]
    ops = []
    for G in range(2):
        a = CI + G; t = TMP + G; g = ST + 8 + 4 * G
        ops += [("V", "v_cndmask_b32 v%d, 0, v%d, s[%d:%d]" % (a, g, sDG, sDG + 1))]
        ops += [("V", "v_cndmask_b32 v%d, v%d, v%d, s[%d:%d]" % (a, a, g + r, sDG + 2 * r, sDG + 2 * r + 1)) for r in range(1, 4)]
        ops += xlane("v_add_f32", a, t)
        ops += [("V", "v_mul_f32 v%d, v%d, v%d" % (t, DM + G, DM + G)), ("V", "v_mul_f32 v%d, 0x%x, v%d" % (a, f2u(1.0 / 448), a)), ("V", "v_sub_f32 v%d, v%d, v%d" % (a, a, t)),
                ("V", "v_max_f32 v%d, 0, v%d" % (a, a)),
                ("V", "v_cvt_pk_bf16_f32 v%d, v%d, v%d" % (a, a, a)), ("V", "v_lshlrev_b32 v%d, 16, v%d" % (a, a)),
                ("V", "v_add_f32 v%d, 0x%x, v%d" % (a, f2u(1e-5), a)), ("V", "v_cvt_pk_bf16_f32 v%d, v%d, v%d" % (a, a, a)), ("V", "v_lshlrev_b32 v%d, 16, v%d" % (a, a)),
                ("T", "v_sqrt_f32 v%d, v%d" % (a, a)), ("V", "v_cvt_pk_bf16_f32 v%d, v%d, v%d" % (a, a, a)), ("V", "v_lshlrev_b32 v%d, 16, v%d" % (a, a)),
                ("T", "v_rcp_f32 v%d, v%d" % (t, a)), ("V", "v_mul_f32 v%d, v%d, v%d" % (a, a, a)),
                ("V", "v_mul_f32 v%d, 0x%x, v%d" % (RSQ + G, f2u(LOG2E / 16), t)), ("V", "v_mul_f32 v%d, 0x%x, v%d" % (RSN + G, f2u(-LOG2E), t))]
    gv = G_.chain(ops, mark[("F1", 13)] + 24, q0 + 32)
    els = [(t, G, r) for t in range(7) for G in range(2) for r in range(4)]
    def stage(i, st):
        t, G, r = els[i]
        b = WA + 3 * (i % 4); hv = WA + 12 + (i % 2)
        ga = GU + ((0 * 7 + t) * 2 + G) * 4 + r; ua = GU + ((7 + t) * 2 + G) * 4 + r
        if st == 0: return [("V", "v_accvgpr_read_b32 v%d, a%d" % (b, ga)), ("V", "v_accvgpr_read_b32 v%d, a%d" % (b + 1, ua)), ("V", "v_mul_f32 v%d, v%d, v%d" % (b + 2, b, RSN + G)), ("T", "v_exp_f32 v%d, v%d" % (b + 2, b + 2))]
        if st == 1: return [("V", "v_mul_f32 v%d, v%d, v%d" % (b, b, b + 1)), ("V", "v_fma_f32 v%d, v%d, v%d, v%d" % (b + 2, b + 2, CI + G, CI + G)), ("T", "v_rcp_f32 v%d, v%d" % (b + 2, b + 2))]
        o = [("V", "v_mul_f32 v%d, v%d, v%d" % (hv, b, b + 2))]
        if r % 2 == 1: o.append(("V", "v_cvt_pk_bf16_f32 v%d, v%d, v%d" % (H(t // 2, G) + 2 * (t & 1) + r // 2, WA + 12, WA + 13)))
        return o
    ops = []
    for i in range(len(els) + 2):
        if i < len(els): ops += stage(i, 0)
        if 0 <= i - 1 < len(els): ops += stage(i - 1, 1)
        if 0 <= i - 2 < len(els): ops += stage(i - 2, 2)
    for G in range(2): ops += [("V", "v_mov_b32 v%d, 0" % (H(3, G) + 2)), ("V", "v_mov_b32 v%d, 0" % (H(3, G) + 3))]
    gsw = G_.chain(ops, max(gv + 1, q0 + 34), sb[13] + 10, window=1)
    gprev = gsw + 1
    for k in range(8):
        ops = []
        for G in range(2):
            q = QF(G, k)
            dst = (16 + 4 * k) if q < 128 + 16 else q
            for half in range(2):
                a = O + 8 * (2 * k + half) + 4 * G
                tb = WA + 4 * ((2 * (2 * k + G) + half) % 3)
                ops += [("V", "v_accvgpr_read_b32 v%d, a%d" % (tb + r, a + r)) for r in range(4)]
                ops += [("V", "v_mul_f32 v%d, v%d, v%d" % (tb + r, tb + r, RSQ + G)) for r in range(4)]
                ops += [("V", "v_cvt_pk_bf16_f32 v%d, v%d, v%d" % (dst + 2 * half + p, tb + 2 * p, tb + 2 * p + 1)) for p in range(2)]
            ops += [("T", "v_permlane32_swap_b32 v%d, v%d" % (dst + p, dst + 2 + p)) for p in range(2)]
            ops += [("T", "v_permlane16_swap_b32 v%d, v%d" % (dst + p, dst + 2 + p)) for p in range(2)]
        st = max(gprev, sb[13] + 8 * k + 8 + 4)
        en = max(st, min(mark[("QK0", k)] - 1, (sb[13] + 12 + 13 * (k + 1)) if k < 4 else 10 ** 9, q1 - 1 if k < 4 else 10 ** 9))
        gprev = G_.chain(ops, st, en, window=1)
    for i in range(16): G_.put(q1, "V", ("ins", "v_mov_b32 v%d, v%d" % (128 + i, 16 + i)), force=True)
    G_.put(q1 + 5, "V", ("ins", "v_mov_b32 v%d, v41" % PF2), force=True)
    ops = []
    for k in range(4):
        for G in range(2):
            ops.append(("M", ("vm", "buffer_store_dwordx4 %s, v%d, %s, s%d offen offset:%d sc1" % (r4(H(k, G)), VL16, srd("WS"), sFO, 1024 * ((2 * k + G) & 3)), "hst")))
            if (k, G) == (1, 1): ops.append(("S", "s_add_u32 s%d, s%d, 4096" % (sFO, sFO)))
    G_.chain(ops, pvs[0] + 1, pvs[0] + 30, window=2)
    G_.put(q1 + 6, "V", ("ins", "v_mov_b32 v%d, v43" % PFV), force=True); G_.put(q1 + 7, "V", ("ins", "v_mov_b32 v%d, v42" % PFW), force=True)
    G_.put(q1 + 8, "V", ("ins", "v_mov_b32 v4, v45"), force=True); G_.put(q1 + 9, "V", ("ins", "v_mov_b32 v%d, v47" % AVP), force=True)
    G_.put(b0 + 1, "V", ("ins", "v_mov_b32 v3, 1"), force=True)
    G_.put(b0 + 2, "V", ("ins", "v_lshrrev_b32 v2, 24, v4"), force=True); G_.put(b0 + 3, "V", ("ins", "v_and_b32 v2, 0x40, v2"), force=True)
    ta = AT + TL
    G_.chain([("V", "v_mov_b32 v6, 0"), ("V", "v_mov_b32 v5, 0x24000"), ("V", "v_add_u32 v7, v2, v5"),
              ("M", ("vm", "buffer_load_dword v6, v4, %s, s%d offen offset:4 sc1" % (srd("DBG"), sCW), "fpoll"))], sb[ta] + 1, sb[ta] + 10)
    G_.chain([("S", ("waitvm", "fpoll")), ("D", ("ds", "ds_write_b32 v7, v6", "fw"))], barpos[ta + 1] - 8, barpos[ta + 1] - 4)
    G_.put(barpos[ta + 1] - 1, "S", ("waitlg", "fw"), force=True)
    sSH = 77; WV = 96
    def share_s():
        return ["s_lshr_b32 s16, s%d, 2" % sSH, "s_lshl_b32 s17, s%d, 2" % sQB, "s_add_u32 s16, s16, s17",
                "s_lshl_b32 s18, s16, 4", "s_lshl_b32 s17, s%d, 2" % sW, "s_add_u32 s18, s18, s17", "s_lshl_b32 s18, s18, 13", "s_add_u32 s18, s18, 0x%x" % WS_F,
                "s_and_b32 s19, s%d, 3" % sSH, "s_mul_i32 s%d, s%d, %d" % (sW2, sW, 448 * 896), "s_lshl_b32 s17, s19, 8", "s_add_u32 s%d, s%d, s17" % (sW2, sW2),
                "s_lshl_b32 s93, s16, 7", "s_add_u32 s93, s93, 0x%x" % WS_FL,
                "s_cmp_eq_u32 s19, 3\n    s_cselect_b32 s17, 3, 7"]
    def share_v():
        o = ["v_lshrrev_b32 v100, 8, v%d" % VL16, "v_bfe_u32 v101, v%d, 5, 3" % VL16, "v_mul_u32_u24 v102, 896, v100", "v_and_b32 v103, 16, v%d" % VL16, "v_add_u32 v102, v102, v103"]
        for j in range(4):
            o += ["v_add_u32 v103, %d, v100" % (4 * (j & 1)), "v_xor_b32 v103, v103, v101", "v_and_b32 v103, s17, v103", "v_lshl_add_u32 v103, v103, 5, v102", "v_add_u32 v%d, %d, v103" % (WV + j, j * (4 * 896 - 1024))]
        return o
    BF = lambda j: r4(192 + 4 * j) if j < 16 else r4(128 + 4 * (j - 16), "a")
    def bload(j): return "buffer_load_dwordx4 %s, v%d, %s, s18 offen offset:%d sc1" % (BF(j), VL16, srd("WS"), 1024 * (j & 3))
    RING = [0x20000, 0x24000] + [0x10000 * hf + 16384 * ((OT + j) % 4) for j in (3, 4, 5, 6) for hf in range(2)]
    def w2dma(i):
        return [(["s_add_u32 m0, s%d, %d" % (sM0, RING[i % 10])] if j == 0 else [], "buffer_load_dwordx4 v%d, %s, s%d offen offset:%d lds" % (WV + j, srd("W2"), sW2, 1024 * j),
                 ["s_add_u32 s%d, s%d, 14336" % (sW2, sW2)] if j == 3 else []) for j in range(4)]
    ops = [("D", ("ds", "ds_read_b32 v6, v5", "fr")), ("S", "s_mov_b32 s%d, s%d" % (sSH, sH))] + [("S", x) for x in share_s()]
    ops += [("S", ("waitlg", "fr")), ("V", "v_readfirstlane_b32 s%d, v6" % sFC)]
    if test_nof: ops += [("S", "s_bitcmp1_b32 %d, s%d\n    s_cselect_b32 s%d, 0, s%d" % (test_nof, sH, sFC, sFC))]
    ops += [("S", "s_cmp_eq_u32 s%d, 16\n    s_cselect_b32 s18, s18, 0x%x" % (sFC, BIG))]
    g = G_.chain(ops, barpos[ta + 1] + 1, barpos[ta + 1] + 24)
    bl = pvs[NV - 1]
    G_.put(bl + 8, "V", ("ins", "v_mov_b32 v%d, v%d" % (AVW, AVP)), force=True)
    G_.chain([("V", x) for x in share_v()], sb[OT + 1] + 2, sb[OT + 2] + 20)
    lo_ = g + 2; hi_ = sb[OT] - 6
    for j in range(32):
        gq = lo_ + ((hi_ - lo_) * j) // 32
        gq = G_.put(max(gq, g + 1), "M", ("vm", bload(j), ("bl", j)), limit=max(gq, g + 1) + 3)
        assert j < 16 or gq > sb[AT + TL + 3]
        if j & 3 == 3: G_.put(gq + 1, "S", ("ins", "s_add_u32 s18, s18, 4096"), limit=gq + 2)
        g = gq + 2
    G_.chain([("V", "v_bfe_u32 v104, v%d, 4, 4" % VL16), ("V", "v_lshlrev_b32 v104, 2, v104"), ("M", ("vm", "buffer_load_dword v6, v104, %s, s93 offen sc1" % srd("WS"), "poll"))], N - 6, N + 2)
    for i in range(2):
        g, g0 = place_dma(w2dma(i), dmaend[OT + 2 + i] + 3, 3, ("W", i))
        assert g0 + 2 < barpos[OT + 3 + i] + 2, (g0, barpos[OT + 3 + i])
    for j in (4, 5, 6):
        i = 2 * (j - 4) + 2
        g, g0 = place_dma(w2dma(i), barpos[OT + j] + 3, 5 if j < 6 else 3, ("W", i))
        g, g0 = place_dma(w2dma(i + 1), g, 5 if j < 6 else 3, ("W", i + 1))
        assert g0 + 2 < (barpos[OT + j + 1] + 2 if j < 6 else END), (j, g0)
    lf = LB[NV % 2]
    ops = []
    for G in range(2):
        ops += xlane("v_add_f32", lf + G, T0) + [("T", "v_rcp_f32 v%d, v%d" % (RL + G, lf + G))]
    gprev = G_.chain(ops, bl + 1, bl + 10)
    for k in range(8):
        ops = []
        for G in range(2):
            for half in range(2):
                a = O + 8 * (2 * k + half) + 4 * G
                tb = PT + 4 * ((2 * G + half) % 4)
                ops += [("V", "v_accvgpr_read_b32 v%d, a%d" % (tb + r, a + r)) for r in range(4)]
                ops += [("V", "v_cvt_pk_bf16_f32 v%d, v%d, v%d" % (OF(k, G) + 2 * half + p, tb + 2 * p, tb + 2 * p + 1)) for p in range(2)]
        st = max(gprev, bl + 4 * k + 4 + 5)
        en = max(st, min(mark[("O", k)] - 1, bl + 10 + 10 * (k + 1)))
        gprev = G_.chain(ops, st, en, window=1)
    gout = 0; lastst = {}
    for idx, (kind, g, acc, ch) in enumerate(outs):
        tb = TMP + 4 * (idx % 2)
        ops = []
        if kind == "S":
            ops += [("V", "v_mul_f32 v%d, v%d, v%d" % (acc + 4 * G + r, acc + 4 * G + r, RL + G)) for G in range(2) for r in range(4)]
        ops += [("V", "v_cvt_pk_bf16_f32 v%d, v%d, v%d" % (tb + 2 * G + p, acc + 4 * G + 2 * p, acc + 4 * G + 2 * p + 1)) for G in range(2) for p in range(2)]
        so = sSOe
        ops += [("M", ("vm", "buffer_store_dwordx4 %s, v%d, %s, s%d offen sc1" % (r4(tb), VL16, srd("WS"), so), ("st", ch))), ("S", "s_add_u32 s%d, s%d, 16384" % (so, so))]
        st = max(g + 5, gout + 1)
        gout = G_.chain(ops, st, min(st + (7 if kind == "F" else 13), END))
        lastst[ch] = gout
    pub = {NT - 1: -1}
    for c in range(6):
        g = max(lastst[c] + pub_lag, barpos[OT + 0] + 2)
        if g > N + 10: continue
        g = G_.put(g - 1, "V", ("ins", "v_mov_b32 v3, %d" % (c + 1)), limit=g + 2)
        g = G_.put(g + 1, "S", ("waitvm", ("st", c)), limit=g + 3)
        G_.put(g, "M", ("vm", "buffer_store_dword v3, v%d, %s, s%d offen sc1" % (AVW, srd("WS"), sFLW), "flg"), force=True)
    loops = [(sb[AT + 1], sb[AT + 5], sb[AT + 9], "A", range(5, 9))]
    rare_sites = []
    def stamp(k):
        I("s_memtime s[94:95]"); I("s_waitcnt lgkmcnt(0)")
        I("s_sub_u32 s94, s94, s98"); I("v_writelane_b32 v0, s94, %d" % k); I("s_mov_b32 s96, s94")
    def rstamp(k):
        I("s_memrealtime s[94:95]"); I("s_waitcnt lgkmcnt(0)"); I("v_writelane_b32 v0, s94, %d" % k)
    mk_ = {}
    for i in range(END + 1):
        for (ls, le, ce, nm, drop) in loops:
            if i == le: mk_[nm + "1"] = len(P.lines)
            if i == ce:
                m0_, m1_ = mk_[nm + "0"], mk_[nm + "1"]
                A = P.lines[m0_:m1_]; B = P.lines[m1_:]
                norm = lambda L_: [re.sub(r"L_(rare|back)_\d+", "L_x", x) for x in L_]
                assert len(A) == len(B), (nm, len(A), len(B), [(a, b) for a, b in zip(norm(A), norm(B)) if a != b][:6])
                for k_, (a_, b_) in enumerate(zip(norm(A), norm(B))):
                    if a_ != b_:
                        ma = re.fullmatch(r"\s*s_waitcnt vmcnt\((\d+)\)", a_); mb = re.fullmatch(r"\s*s_waitcnt vmcnt\((\d+)\)", b_)
                        assert ma and mb, (nm, a_, b_)
                        if int(mb.group(1)) < int(ma.group(1)): P.lines[m0_ + k_] = b_
                del P.lines[m1_:]
                rare_sites = [x for x in rare_sites if x not in drop]
                I("s_add_u32 s%d, s%d, 1" % (sLOOP, sLOOP)); I("s_cmp_lt_u32 s%d, %d" % (sLOOP, 14)); I("s_cbranch_scc1 L_loop%s" % nm)
        if timing and i in sb:
            t_ = sb.index(i)
            if t_ <= AT + 1: stamp(t_)
            elif t_ >= AT + 9: stamp(t_ - (AT + 9) + 18)
            if t_ == AT + 9:
                rstamp(41)
                for k_ in range(17, 18): I("v_writelane_b32 v0, s96, %d" % k_)
            if i == N: rstamp(42)
        for (ls, le, ce, nm, drop) in loops:
            if i == ls:
                I("s_mov_b32 s%d, 0" % sLOOP)
                P.label("L_loop%s" % nm); mk_[nm + "0"] = len(P.lines)
        for it in G_.items(i):
            if it[0] == "ds": P.ds(it[1], it[2])
            elif it[0] == "bar":
                tau = it[1]
                if tau + 1 < NT or tau in pub:
                    P.wait(vm=[("T", tau + 1)] + [("st", c) for c in range(-1, pub.get(tau, -1))]); I("s_barrier")
            elif it[0] == "vm": P.vmem(it[1], it[2])
            elif it[0] == "waitslot":
                if i > 0: P.wait(lg=[("f", it[1])], maxq=12)
            elif it[0] == "chk":
                if it[1] > 0:
                    I("s_cbranch_vccnz L_rare_%d" % it[1]); P.label("L_back_%d" % it[1]); rare_sites.append(it[1])
            elif it[0] == "nil": pass
            elif it[0] == "waitvm": P.wait(vm=[it[1]])
            elif it[0] == "waitlg": P.wait(lg=[it[1]])
            else:
                for x in it[1].split("\n"): I(x.strip())
        if i < N:
            f = fr[seq[i][0]]; d, b, c, ao = f["mf"][seq[i][1]]
            P.wait(lg=[("f", seq[i][0])])
            I("%s %s, %s, %s, %s" % (MF, d, ao or f["fr"], b, c))
    SEL = 48; AC = 192; A2 = 0; RA = 64; TT = 56; XV = 88; PV = 104; THR = 90; V4 = 92; XR = 16; LA = 105; TQ = 106; SS = 24; GV = 128
    sRD, sSP, sALL, sPE, sM1, sM2, sB, sX = 78, 79, 83, 4, 5, 6, 8, 10
    slot = lambda b: r4(64 + 4 * b, "a") if b < 16 else r4(128 + 4 * (b - 16))
    def consts():
        I("v_lshrrev_b32 v107, 4, v%d" % VL16); I("v_and_b32 v108, 15, v107"); I("v_lshrrev_b32 v109, 4, v107")
        I("v_bfe_u32 v110, v107, 2, 4"); I("v_and_b32 v111, 3, v107"); I("v_and_b32 v112, 7, v110"); I("v_lshlrev_b32 v113, 8, v110"); I("v_lshl_add_u32 v113, v111, 3, v113"); I("v_add_u32 v113, s%d, v113" % sM0)
        for t in range(8):
            I("v_xor_b32 v111, %d, v112" % t); I("v_lshl_add_u32 v%d, v111, 5, v113" % (RA + t)); I("v_add_u32 v%d, 0x10000, v%d" % (RA + 8 + t, RA + t)); I("v_add_u32 v%d, 0x20000, v%d" % (RA + 16 + t, RA + t))
        I("v_lshrrev_b32 v110, 2, v108"); I("v_cmp_eq_u32 vcc, v110, v109"); I("v_and_b32 v111, 1, v108"); I("v_lshlrev_b32 v111, 4, v111"); I("v_mov_b32 v112, 0x3f80"); I("v_lshlrev_b32 v112, v111, v112")
        I("v_cndmask_b32 v112, 0, v112, vcc"); I("v_and_b32 v111, 2, v108"); I("v_cmp_eq_u32 vcc, 0, v111")
        for r in (0, 1, 4, 5): I("v_mov_b32 v%d, 0" % (SEL + r))
        I("v_cndmask_b32 v%d, 0, v112, vcc" % (SEL + 2)); I("v_cndmask_b32 v%d, v112, 0, vcc" % (SEL + 3))
        I("v_and_b32 v55, 1, v109")
        I("v_mul_u32_u24 v%d, 896, v108" % XV); I("v_lshl_add_u32 v%d, v109, 3, v%d" % (XV, XV)); I("v_add_u32 v%d, 14336, v%d" % (XV + 1, XV))
        for q in range(4): I("v_add_u32 v%d, %d, v%d" % (V4 + q, 4096 * q, VL16))
        I("v_add_u32 v%d, s%d, v%d" % (LA, sM0, VL16))
        I("s_lshr_b32 s84, s%d, 1" % sW); I("s_lshl_b32 s84, s84, 14"); I("s_and_b32 s82, s%d, 1" % sW); I("s_lshl_b32 s82, s82, 11"); I("s_add_u32 s82, s82, s84"); I("v_add_u32 v%d, s82, v%d" % (TQ, VL16))
    def call(lbl): I("s_call_b64 s[88:89], %s" % lbl)
    I("v_mov_b32 v3, 7"); I("v_mov_b32 v7, 1"); I("v_mov_b32 v5, 0x10000")
    I("s_mov_b32 s%d, 0" % sALL); I("s_mov_b32 s%d, 0" % sRD)
    I("s_barrier")
    if timing: stamp(33)
    I("s_cmp_eq_u32 s%d, 16" % sFC); I("s_cbranch_scc1 L_hot")
    consts()
    I("s_waitcnt vmcnt(0)"); I("buffer_store_dword v3, v%d, %s, s%d offen sc1" % (AVW, srd("WS"), sFLW)); I("s_barrier")
    I("v_mov_b32 v7, 0x101"); I("buffer_atomic_add v7, v4, %s, s%d offen sc0" % (srd("DBG"), sCW)); I("s_branch L_done")
    P.label("L_hot")
    for i in (8, 9):
        for g_ in w2dma(i): issue_group(g_, ("W", i))
    consts()
    P.label("L_roles")
    I("s_mul_i32 s84, s16, %d" % (32 * 896)); I("s_lshl_b32 s85, s19, 8"); I("s_add_u32 s84, s84, s85"); I("s_lshl_b32 s85, s%d, 5" % sW); I("s_add_u32 s%d, s84, s85" % sX); I("s_add_u32 s%d, s%d, 128" % (sX + 1, sX))
    I("s_mul_i32 s82, s16, 28"); I("s_lshl_b32 s84, s19, 3"); I("s_add_u32 s82, s82, s84"); I("s_add_u32 s82, s82, s%d" % sW); I("s_lshl_b32 s%d, s82, 14" % sB); I("s_add_u32 s%d, s%d, 0x10000" % (sB + 1, sB))
    I("s_cmp_eq_u32 s19, 3"); I("s_cselect_b32 s%d, 0xffff, -1" % sPE); I("s_cselect_b32 s%d, 0x%x, s%d" % (sX + 1, BIG, sX + 1))
    I("s_mov_b32 s%d, %d" % (sSP, spin))
    I("s_lshl_b32 s82, s19, 1"); I("v_add_u32 v%d, s82, v55" % THR)
    for r in range(16): I("v_mov_b32 v%d, 0" % (SS + r))
    def ready(dst, lim=None):
        I("v_cmp_lt_u32 vcc, v%d, v6" % THR); I("s_cmp_eq_u32 s%d, 1" % sALL); I("s_cselect_b32 s14, -1, vcc_lo"); I("s_and_b32 s14, s14, s%d" % sPE)
        if lim: I("s_and_b32 s14, s14, 0x%x" % lim)
        I("s_andn2_b32 s%d, s%d, s14" % (sPE, sPE))
    P.wait(vm=["poll"])
    if timing: stamp(54)
    fl = []
    for hd in range(4):
        for k in range(4):
            a_ = 7 * hd + 2 * k; b_ = a_ + 1 if k < 3 else a_
            for tt in range(8): fl.append((hd, k, tt, a_, b_))
    LD = 6
    pend = []
    def rd(fi, half):
        hd, k, tt, a_, b_ = fl[fi]
        ht = b_ if half else a_; base = RING[ht % 10]; r = FRA + 4 * (fi % 16) + 2 * half
        P.wait(vm=[("W", ht)])
        P.ds("ds_read_b64_tr_b16 a[%d:%d], v%d offset:%d" % (r, r + 1, RA + 8 * (base >> 16) + tt, base & 0xffff), ("g", fi))
    for fi in range(LD): rd(fi, 0); rd(fi, 1)
    for fi, (hd, k, tt, a_, b_) in enumerate(fl):
        if timing and k == 0 and tt == 0 and hd > 0: stamp(54 + hd)
        P.wait(lg=[("g", fi)], vm=[("bl", 8 * hd + 2 * k), ("bl", 8 * hd + 2 * k + 1)])
        if tt == 7:
            for ht in sorted({a_, b_}):
                if ht + 10 < 28: pend += [(g_, ("W", ht + 10)) for g_ in w2dma(ht + 10)]
                if ht + 10 == poll2 + 10: pend += ["poll"]
                if ht + 10 == 27: pend += ["skip"] * r2delay + ["round2"]
        for G in range(2):
            d = r4(A2 + 8 * tt + 4 * G, "a")
            I("%s %s, %s, %s, %s" % (MF, d, r4(FRA + 4 * (fi % 16), "a"), BF(8 * hd + 2 * k + G), "0" if (hd, k) == (0, 0) else d))
            if fi + LD < len(fl): rd(fi + LD, G)
        if fi == flag_at:
            P.wait(vm=[("st", 6)]); P.vmem("buffer_store_dword v3, v%d, %s, s%d offen sc1" % (AVW, srd("WS"), sFLW), "flg")
        if fi == max(r1_at, flag_at + 1): ready(None, r1mask); call("L_loadpass")
        if tt == 0 and 4 * hd + k == sum_ks:
            P.wait(vm=[("W", 12)]); call("L_sumpass")
        if pend:
            p_ = pend.pop(0)
            if p_ == "poll": P.vmem("buffer_load_dword v6, v%d, %s, s93 offen sc1" % (PV, srd("WS")), "poll")
            elif p_ == "round2":
                P.wait(vm="all"); ready(sM2); call("L_loadpass")
                for q in range(2):
                    for G in range(2): I("buffer_load_dwordx2 v[%d:%d], v%d, %s, s%d offen" % (XR + 4 * q + 2 * G, XR + 4 * q + 2 * G + 1, XV + G, srd("X"), sX + q))
                I("buffer_load_dword v6, v%d, %s, s93 offen sc1" % (PV, srd("WS")))
            elif p_ == "skip": pass
            else: issue_group(*p_)
    assert not pend
    if timing: stamp(58)
    P.vm = []; P.lgkm = []
    def lofs(tt, G): return 16384 * (tt >> 1) + 2048 * (tt & 1) + 1024 * G
    for tt in range(8):
        for G in range(2): I("ds_write_b128 v%d, %s offset:%d" % (LA, r4(A2 + 8 * tt + 4 * G, "a"), lofs(tt, G)))
    I("s_waitcnt lgkmcnt(0)"); I("s_barrier")
    I("s_cmp_lg_u32 s%d, 0" % sRD); I("s_cbranch_scc1 L_noarr")
    I("buffer_atomic_add v7, v4, %s, s%d offen sc0" % (srd("DBG"), sCW))
    P.label("L_noarr")
    if timing: stamp(59)
    def rnd2(a_):
        I("v_cvt_pk_bf16_f32 v%d, v%d, v%d" % (TT, a_, a_ + 1)); I("v_lshlrev_b32 v%d, 16, v%d" % (a_, TT)); I("v_and_b32 v%d, s%d, v%d" % (a_ + 1, sMASK, TT))
    for q in range(2):
        for wv in range(4):
            for G in range(2): I("ds_read_b128 %s, v%d offset:%d" % (r4(AC + 32 * q + 8 * wv + 4 * G), TQ, 32768 * q + 4096 * wv + 1024 * G))
        if q == 0: I("s_waitcnt lgkmcnt(0)")
    for q in range(2):
        if q == 1: I("s_waitcnt lgkmcnt(0)")
        b_ = AC + 32 * q
        for wv in range(1, 4):
            for e in range(8): I("v_add_f32 v%d, v%d, v%d" % (b_ + e, b_ + e, b_ + 8 * wv + e))
        for j in range(4):
            f_ = b_ + 2 * j
            rnd2(f_)
            for e in range(2): I("v_mul_f32 v%d, 0x%x, v%d" % (TT + 1 + e, f2u(-LOG2E), f_ + e))
            for e in range(2): I("v_exp_f32 v%d, v%d" % (TT + 1 + e, TT + 1 + e))
            for e in range(2): I("v_add_f32 v%d, 1.0, v%d" % (TT + 1 + e, TT + 1 + e))
            for e in range(2): I("v_rcp_f32 v%d, v%d" % (TT + 1 + e, TT + 1 + e))
            for e in range(2): I("v_mul_f32 v%d, v%d, v%d" % (f_ + e, f_ + e, TT + 1 + e))
            rnd2(f_)
    if timing: stamp(35)
    if test_fail: I("s_cmp_eq_u32 s%d, 1" % sALL); I("s_cbranch_scc1 L_round"); I("s_cmp_eq_u32 s%d, %d" % (sSH, test_fail)); I("s_cbranch_scc1 L_giveup")
    P.label("L_round")
    I("s_waitcnt vmcnt(0)")
    call("L_sumpass")
    I("s_cmp_eq_u32 s%d, 0" % sPE); I("s_cbranch_scc1 L_last")
    ready(None); call("L_loadpass")
    I("buffer_load_dword v6, v%d, %s, s93 offen sc1" % (PV, srd("WS")))
    I("s_sub_u32 s%d, s%d, 1" % (sSP, sSP)); I("s_cmp_lg_u32 s%d, 0" % sSP); I("s_cbranch_scc1 L_round")
    P.label("L_giveup")
    I("v_mov_b32 v%d, 0x100" % TT); I("buffer_atomic_add v%d, v%d, %s, s%d offen sc0" % (TT, AVW, srd("DBG"), sCW)); I("s_waitcnt vmcnt(0)")
    I("v_readfirstlane_b32 s82, v%d" % TT); I("s_nop 0"); I("s_and_b32 s82, s82, 31"); I("s_cmp_lg_u32 s82, 16"); I("s_cbranch_scc1 L_sdone")
    I("s_mov_b32 s%d, 1" % sALL); I("s_mov_b32 s%d, 100" % sSP); I("s_branch L_round")
    P.label("L_last")
    I("s_nop 5")
    for q in range(2):
        for j in range(4):
            f_ = AC + 32 * q + 2 * j; s_ = SS + 8 * q + 2 * j; x_ = XR + 4 * q + j
            rnd2(s_)
            for e in range(2): I("v_mul_f32 v%d, v%d, v%d" % (s_ + e, s_ + e, f_ + e))
            rnd2(s_)
            I("v_lshlrev_b32 v%d, 16, v%d" % (TT + 1, x_)); I("v_and_b32 v%d, s%d, v%d" % (TT + 2, sMASK, x_))
            for e in range(2): I("v_add_f32 v%d, v%d, v%d" % (s_ + e, s_ + e, TT + 1 + e))
            I("v_cvt_pk_bf16_f32 v%d, v%d, v%d" % (x_, s_, s_ + 1))
            if j % 2 == 1: I("buffer_store_dwordx2 v[%d:%d], v%d, %s, s%d offen" % (x_ - 1, x_, XV + (j >> 1), srd("OUT"), sX + q))
    P.label("L_sdone")
    I("s_cmp_eq_u32 s%d, 0" % sRD); I("s_cbranch_scc1 L_done")
    I("s_add_u32 s%d, s%d, 1" % (sSH, sSH)); I("s_cmp_lt_u32 s%d, 16" % sSH); I("s_cbranch_scc1 L_cold"); I("s_branch L_fin")
    P.label("L_loadpass")
    for u in range(2):
        I("s_bfe_u32 s82, s14, 0x%x" % (0x100000 + 16 * u)); I("s_bcnt1_i32_b32 s%d, s82" % (sM1 + u))
        for k in range(16):
            I("s_cbranch_scc0 L_lp%d" % u)
            I("s_ff1_i32_b32 s84, s82"); I("s_lshl_b32 s85, s84, 10"); I("s_add_u32 s85, s85, s%d" % (sB + u)); I("s_bitset0_b32 s82, s84")
            I("buffer_load_dwordx4 %s, v%d, %s, s85 offen sc1" % (slot(16 * u + k), VL16, srd("WS")))
            I("s_cmp_lg_u32 s82, 0")
        P.label("L_lp%d" % u)
    I("s_setpc_b64 s[88:89]")
    P.label("L_sumpass")
    for u in range(2):
        for k in range(16):
            I("s_cmp_le_u32 s%d, %d" % (sM1 + u, k)); I("s_cbranch_scc1 L_sp%d" % u)
            for hi in range(2):
                d = r4(SS + 8 * u + 4 * hi); I("%s %s, %s, %s, %s" % (MF, d, r4(SEL + (0 if hi else 2)), slot(16 * u + k), d))
        P.label("L_sp%d" % u)
        I("s_mov_b32 s%d, 0" % (sM1 + u))
    I("s_setpc_b64 s[88:89]")
    P.label("L_done")
    I("s_cmp_lg_u32 s%d, 0" % sW); I("s_cbranch_scc1 L_meet")
    I("s_waitcnt vmcnt(0)"); I("v_readfirstlane_b32 s82, v7"); I("s_nop 1"); I("v_mov_b32 v6, s82"); I("ds_write_b32 v5, v6 offset:128"); I("s_waitcnt lgkmcnt(0)")
    P.label("L_meet")
    I("s_barrier")
    I("ds_read_b32 v7, v5 offset:128"); I("s_waitcnt lgkmcnt(0)"); I("v_readfirstlane_b32 s82, v7"); I("s_nop 0")
    I("s_and_b32 s84, s82, 31"); I("s_cmp_lg_u32 s84, 15"); I("s_cbranch_scc1 L_fin")
    I("s_lshr_b32 s82, s82, 8"); I("s_cmp_lg_u32 s%d, 16" % sFC); I("s_cselect_b32 s84, 1, 0"); I("s_or_b32 s82, s82, s84")
    I("s_cmp_eq_u32 s82, 0"); I("s_cbranch_scc1 L_fin")
    I("s_mov_b32 s%d, 1" % sRD); I("s_mov_b32 s%d, 1" % sALL); I("s_mov_b32 s%d, 0" % sSH)
    P.label("L_cold")
    I("s_waitcnt vmcnt(0) lgkmcnt(0)"); I("s_barrier")
    for x in share_s() + share_v():
        for y in x.split("\n"): I(y.strip())
    for j in range(32):
        I(bload(j))
        if j & 3 == 3: I("s_add_u32 s18, s18, 4096")
    I("s_waitcnt vmcnt(0)")
    P.vm = []
    for i in range(10):
        for g_ in w2dma(i): issue_group(g_, "x")
    I("s_waitcnt vmcnt(0) lgkmcnt(0)"); P.vm = []
    I("s_barrier"); I("s_branch L_roles")
    P.label("L_fin")
    if timing:
        I("s_waitcnt vmcnt(0)"); P.vm = []
        stamp(34); rstamp(43); I("v_writelane_b32 v0, s100, 40")
        I("s_lshl_b32 s94, s2, 2"); I("s_add_u32 s94, s94, s%d" % sW); I("s_lshl_b32 s94, s94, 10"); I("s_add_u32 s94, s94, 0x%x" % WS_T)
        I("buffer_store_dword v0, v%d, %s, s94 offen" % (VL16, srd("WS")))
    P.label("L_end"); I("s_endpgm")
    P.label("L_code_end")
    for n in rare_sites:
        P.label("L_rare_%d" % n); I("s_mov_b32 s%d, %d" % (sRET, n)); I("s_branch L_rp_%d" % (n % 2))
    for par in range(2):
        P.label("L_rp_%d" % par)
        I("s_nop 15")
        s = S[par]; s2 = S[1 - par]; lo = LB[par]; ln = LB[1 - par]; pk = PK[par]
        for G in range(2):
            e = [s + 8 * kt + 4 * G + r for kt in range(2) for r in range(4)]
            e2 = [s2 + 8 * kt + 4 * G + r for kt in range(2) for r in range(4)]
            m = MX + G
            I("v_log_f32 v%d, v%d" % (m, lo + G))
            I("v_max3_f32 v%d, v%d, v%d, v%d" % (T0, e[0], e[1], e[2])); I("v_max3_f32 v%d, v%d, v%d, v%d" % (T0, T0, e[3], e[4]))
            I("v_max3_f32 v%d, v%d, v%d, v%d" % (T0, T0, e[5], e[6])); I("v_max3_f32 v%d, v%d, v%d, v%d" % (m, m, T0, e[7]))
            for k, t in xlane("v_max_f32", m, T0): I(t)
            I("v_max_f32 v%d, 0, v%d" % (m, m))
            I("v_exp_f32 v%d, -v%d" % (TC, m))
            for x in e + e2 + [NEGM + 4 * G + r for r in range(4)]: I("v_sub_f32 v%d, v%d, v%d" % (x, x, m))
            I("v_mul_f32 v%d, v%d, v%d" % (lo + G, lo + G, TC))
            for t in range(16):
                for r in range(4): I("v_accvgpr_read_b32 v%d, a%d" % (PT + r, O + 8 * t + 4 * G + r))
                for r in range(4): I("v_mul_f32 v%d, v%d, v%d" % (PT + r, PT + r, TC))
                for r in range(4): I("v_accvgpr_write_b32 a%d, v%d" % (O + 8 * t + 4 * G + r, PT + r))
            for j, x in enumerate(e): I("v_exp_f32 v%d, v%d" % (PT + j, x))
            I("v_add_f32 v%d, v%d, v%d" % (ln + G, lo + G, PT))
            for j in range(1, 8): I("v_add_f32 v%d, v%d, v%d" % (ln + G, ln + G, PT + j))
            for j in range(4): I("v_cvt_pk_bf16_f32 v%d, v%d, v%d" % (pk + 4 * G + j, PT + 2 * j, PT + 2 * j + 1))
        I("s_nop 3")
        mine = [n for n in rare_sites if n % 2 == par]
        for n in mine[:-1]:
            I("s_cmp_eq_u32 s%d, %d" % (sRET, n)); I("s_cbranch_scc1 L_back_%d" % n)
        I("s_branch L_back_%d" % mine[-1])
    rep = []
    P.lines = fix_hazards(P.lines, rep)
    if verbose:
        print("K1: MFMAs(virtual) %d, nops inserted %d (total ws %d) pub %s" % (N, len(rep), sum(r[1] for r in rep), pub))
        print("penalty per step:", [G_.total_pen(sb[t], sb[t + 1]) for t in range(len(sb) - 1)])
    for p in check_text(P.text()): print(p)
    return P.text(), rep, G_, sb

def head():
    import os
    p = "cdna_kernels/%s.s.ref" % NAME
    return open(p).read().split("; Override launch")[0] if os.path.exists(p) else ""
def build(**kw):
    k1, rep, G_, sb = gen_k1(**kw)
    s = head()
    s += "; @launch grid=(256,1,1) block=(256,1,1) lds=163840\n"
    s += '.amdgcn_target "amdgcn-amd-amdhsa--gfx950"\n.text\n'
    s += ".globl %s\n.p2align 8\n.type %s,@function\n%s:\n%s" % (K1, K1, K1, k1)
    s += '''.section .rodata,"a"
.p2align 6
.amdhsa_kernel %s
  .amdhsa_next_free_vgpr 512
  .amdhsa_next_free_sgpr 102
  .amdhsa_accum_offset 256
  .amdhsa_group_segment_fixed_size 0
  .amdhsa_kernarg_size 96
  .amdhsa_user_sgpr_count 2
  .amdhsa_user_sgpr_kernarg_segment_ptr 1
  .amdhsa_system_sgpr_workgroup_id_x 1
.end_amdhsa_kernel
''' % K1
    return s, rep, G_, sb

if __name__ == "__main__":
    import json
    if len(sys.argv) > 1:
        for name, kw in json.loads(sys.argv[1]).items():
            open(name, "w").write(build(verbose=False, **kw)[0])
    else:
        open("k26_a.s", "w").write(build()[0])
        open("k26_fail.s", "w").write(build(test_fail=5, verbose=False)[0])
        open("k26_nof.s", "w").write(build(test_nof=0x0410, spin=40, verbose=False)[0])
        open("k26_at.s", "w").write(build(timing=True, verbose=False)[0])
```

```python
import sys, struct
from gen import *
NAME = "recurrent_scan__mha_block_cached__glu_gated_swiglu__prompt"
K1 = NAME + "_kernel"
LOG2E = 1.4426950408889634
def f2u(x): return struct.unpack("<I", struct.pack("<f", x))[0]
def r4(x, p="v"): return "%s[%d:%d]" % (p, x, x + 3)
WS_S = 0x0; WS_F = 0x2000000; WS_FL = 0x4000000; WS_G = 0x4100000; WS_T = 0xa000000
BIG = 0x40000000
MF = "v_mfma_f32_16x16x32_bf16"

def gen_k1(L=10, LW=9, estep=3, e0=8, timing=False, verbose=True, bar_off=25, dma_step=6, spin=3000, test_fail=0, test_nof=0, pub_lag=50, gray=1, r1mask=0x00ffffff, poll2=16, r2delay=12, r1_at=4, sum_ks=8, lpf=3, chain=7, flag_at=10, tlb=True):
    P = Prog(); I = P.ins
    O = 0; GU = 128; FRA = 192; FRF = 128
    S = [16, 32]; NEGM = 48; LB = [56, 58]; MX = 60; TC = 62; T0 = 63
    WA = 48; FRV = 64; PT = 64; PK = [80, 88]
    KA = 96; VA = 100; KD = 108; VD = 112; TA = 116; TD = 124
    XC = lambda s, G: 128 + 8 * (13 - s) + 4 * G
    QF = lambda G, k: 128 + 32 * G + 4 * k
    H = lambda k, G: XC(k, G)
    OF = lambda k, G: 128 + 8 * k + 4 * G
    VAL = 240; WD = 248; QD = 252
    PFV = 9; PFD = 10; PFW = 11; PF2 = 12
    FA = [192, 200]; AVP = 13; AVW = 54
    ST = 16
    VL16 = 1; MB = 2; RSQ = 2; DM = 4; RSN = 4; CI = 6; RL = 60
    TMP = 8
    SRD = dict(X=28, K=32, V=36, WQ=40, WO=44, W1=48, W3=52, W2=56, WS=60, DBG=20, OUT=24, PF=12)
    def srd(n): return "s[%d:%d]" % (SRD[n], SRD[n] + 3)
    sH, sQB, sW, sM0, sSO, sLOOP, sTH, sRET, sCW, sFO, sSOe, sFC = 64, 65, 66, 67, 68, 70, 71, 72, 73, 74, 75, 76
    sW13, sWQ, sW2, sWO, sK, sV, sT0, sT1, sMASK, sAT, sFLW = 78, 79, 80, 81, 82, 83, 84, 85, 86, 87, 3
    sDG = 4; sPFO = 16
    I("s_cmp_ge_u32 s2, 256"); I("s_cbranch_scc1 L_end")
    I("s_load_dwordx16 s[4:19], s[0:1], 0"); I("s_load_dwordx8 s[20:27], s[0:1], 64")
    if timing: I("s_memtime s[98:99]"); I("s_memrealtime s[100:101]")
    I("s_and_b32 s%d, s2, 7" % sH); I("s_lshr_b32 s%d, s2, 3" % sQB)
    I("s_lshr_b32 s%d, s%d, 4" % (sT0, sQB)); I("s_lshl_b32 s%d, s%d, 1" % (sH, sH)); I("s_add_u32 s%d, s%d, s%d" % (sH, sH, sT0))
    I("s_and_b32 s%d, s%d, 15" % (sQB, sQB))
    I("v_lshrrev_b32 v8, 6, v0"); I("s_nop 0"); I("v_readfirstlane_b32 s%d, v8" % sW)
    I("v_and_b32 v9, 63, v0"); I("v_and_b32 v10, 15, v0"); I("v_bfe_u32 v11, v0, 4, 2")
    I("v_lshlrev_b32 v%d, 4, v9" % VL16)
    I("s_lshl_b32 s%d, s%d, 2" % (sT0, sQB)); I("s_add_u32 s%d, s%d, s%d" % (sT0, sT0, sW))
    I("s_getpc_b64 s[88:89]"); P.label("L_pc")
    I("s_and_b32 s%d, s%d, 15" % (sT1, sT0)); I("s_lshl_b32 s%d, s%d, 13" % (sT1, sT1))
    I("v_lshlrev_b32 v14, 7, v9"); I("v_add_u32 v14, s%d, v14" % sT1); I("v_min_u32 v14, L_code_end-L_pc-4, v14")
    P.vmem("global_load_dword v44, v14, s[88:89]", "cpf")
    I("s_mul_i32 s%d, s%d, %d" % (sSO, sQB, 128 * 896))
    I("s_lshl_b32 s%d, s%d, 5" % (sT1, sW)); I("s_lshl_b32 s%d, s%d, 12" % (sM0, sW))
    I("v_lshrrev_b32 v14, 3, v9"); I("v_add_u32 v14, s%d, v14" % sT1); I("v_mul_u32_u24 v14, 896, v14")
    I("v_bfe_u32 v15, v0, 1, 2"); I("v_xor_b32 v15, v15, v11"); I("v_lshl_add_u32 v14, v15, 5, v14"); I("v_and_b32 v15, 1, v0"); I("v_lshl_add_u32 v14, v15, 4, v14")
    for j in range(4): I("v_add_u32 v%d, %d, v14" % (TD + j, j * (8 * 896 - 1024)))
    Q_ = []; J = Q_.append
    J("s_mul_i32 s%d, s%d, 224" % (sW13, sH))
    J("s_lshr_b32 s%d, s%d, 1" % (sK, sW)); J("s_lshl_b32 s%d, s%d, 5" % (sK, sK)); J("s_and_b32 s%d, s%d, 1" % (sV, sW)); J("s_lshl_b32 s%d, s%d, 2" % (sV, sV))
    J("s_add_u32 s%d, s%d, s%d" % (sK, sK, sV))
    J("v_add_u32 v12, s%d, v11" % sK); J("v_mul_u32_u24 v12, 3584, v12")
    J("v_and_b32 v13, 1, v10"); J("v_lshl_add_u32 v12, v13, 4, v12"); J("v_lshrrev_b32 v13, 1, v10")
    for j in range(4):
        J("v_add_u32 v14, %d, v11" % (4 * (j & 1))); J("v_xor_b32 v14, v14, v13"); J("v_min_u32 v14, 6, v14"); J("v_lshl_add_u32 v14, v14, 5, v12")
        J("v_add_u32 v%d, %d, v14" % (WD + j, j * (8 * 3584 - 1024)))
    NOK = len(Q_)
    def mk(n, lo, size, add=None, f=None):
        f = f or J; d = SRD[n]
        if add is None: f("s_mov_b32 s%d, s%d" % (d, lo)); f("s_mov_b32 s%d, s%d" % (d + 1, lo + 1))
        else: f("s_add_u32 s%d, s%d, s%d\n    s_addc_u32 s%d, s%d, 0" % (d, lo, add, d + 1, lo + 1))
        f("s_mov_b32 s%d, 0x%x" % (d + 2, size)); f("s_mov_b32 s%d, 0x20000" % (d + 3))
    mk("W1", 16, 448 * 3584); mk("W3", 18, 448 * 3584)
    J("s_lshl_b32 s%d, s%d, 20" % (sK, sH))
    mk("K", 6, 0x100000, sK); mk("V", 8, 0x100000, sK)
    mk("WQ", 10, 448 * 8192); mk("WO", 12, 4096 * 896); mk("W2", 20, 1792 * 896); mk("WS", 26, 0x10000000)
    J("s_mov_b32 s20, s24"); J("s_mov_b32 s21, s25"); J("s_mov_b32 s24, s22"); J("s_mov_b32 s25, s23")
    J("s_mov_b32 s22, 256"); J("s_mov_b32 s23, 0x20000"); J("s_mov_b32 s26, %d" % (2048 * 896)); J("s_mov_b32 s27, 0x20000")
    J("s_lshl_b32 s%d, s%d, 4" % (sCW, sQB)); J("s_add_u32 s%d, s%d, 4096" % (sAT, sCW))
    J("s_lshl_b32 s%d, s%d, 5" % (sFLW, sT0)); J("s_add_u32 s%d, s%d, s%d" % (sFLW, sFLW, sH)); J("s_lshl_b32 s%d, s%d, 2" % (sFLW, sFLW)); J("s_add_u32 s%d, s%d, 0x%x" % (sFLW, sFLW, WS_FL))
    J("s_and_b32 s93, s%d, 0xffffff80" % sFLW)
    J("v_mov_b32 v47, 0x7f000000"); J("v_cmp_eq_u32 vcc, 0, v9"); J("s_nop 0"); J("v_cndmask_b32 v47, v47, 0, vcc")
    J("v_mov_b32 v45, 0x7f000000"); J("v_cmp_eq_u32 vcc, 0, v0"); J("v_mov_b32 v46, 0"); J("v_cndmask_b32 v45, v45, 0, vcc")
    J("s_lshl_b32 s%d, s%d, 9" % (sWQ, sH)); J("s_mul_i32 s%d, s%d, %d" % (sWO, sH, 256 * 896))
    J("s_mul_i32 s%d, s%d, %d" % (sFO, sT0, 28 * 16)); J("s_add_u32 s%d, s%d, s%d" % (sFO, sFO, sH)); J("s_lshl_b32 s%d, s%d, 10" % (sFO, sFO))
    J("s_add_u32 s%d, s%d, 0x%x" % (sSOe, sFO, WS_S))
    J("s_lshl_b32 s%d, s%d, 4" % (sFO, sT0)); J("s_add_u32 s%d, s%d, s%d" % (sFO, sFO, sH)); J("s_lshl_b32 s%d, s%d, 13" % (sFO, sFO)); J("s_add_u32 s%d, s%d, 0x%x" % (sFO, sFO, WS_F))
    J("s_add_u32 s91, s%d, 0x%x" % (sWO, 13 * 0x400000)); J("s_and_b32 s90, s%d, 3" % sH); J("s_lshl_b32 s90, s90, 8"); J("s_add_u32 s90, s90, 0x%x" % (12 * 0x400000))
    J("s_mov_b32 s%d, 0x53800000" % sTH); J("s_mov_b32 s%d, 0xffff0000" % sMASK)
    for r in range(4):
        m = (1 << r) | (1 << (20 + r)) | (1 << (40 + r)) | (1 << (60 + r))
        J("s_mov_b32 s%d, 0x%x" % (sDG + 2 * r, m & 0xffffffff)); J("s_mov_b32 s%d, 0x%x" % (sDG + 2 * r + 1, m >> 32))
    for r in range(4): J("v_mov_b32 v%d, 0x3f803f80" % (ST + 16 + r))
    J("v_and_b32 v12, 31, v0"); J("v_bfe_u32 v13, v0, 5, 1")
    J("v_lshlrev_b32 v14, 9, v10")
    for s in range(4):
        J("v_add_u32 v15, %d, v11" % (4 * s)); J("v_xor_b32 v15, v15, v10"); J("v_lshl_add_u32 v%d, v15, 4, v14" % (KA + s))
    J("v_bfe_u32 v4, v0, 2, 4"); J("v_and_b32 v5, 3, v0"); J("v_and_b32 v6, 7, v4")
    J("v_lshlrev_b32 v14, 8, v4"); J("v_lshl_add_u32 v14, v5, 3, v14")
    for t in range(7):
        J("v_xor_b32 v15, %d, v6" % t); J("v_lshl_add_u32 v%d, v15, 5, v14" % (WA + t)); J("v_add_u32 v%d, 0x10000, v%d" % (WA + 7 + t, WA + t))
    J("v_lshlrev_b32 v14, 9, v4"); J("v_lshl_add_u32 v14, v5, 3, v14")
    for b in range(8):
        J("v_xor_b32 v15, %d, v6" % b); J("v_lshl_add_u32 v%d, v15, 5, v14" % (VAL + b)); J("v_add_u32 v%d, 0x10000, v%d" % (VA + b, VAL + b))
    J("v_lshlrev_b32 v14, 7, v4"); J("v_lshl_add_u32 v14, v5, 3, v14"); J("v_bfe_u32 v7, v4, 1, 2")
    for t in range(4):
        J("v_xor_b32 v15, %d, v7" % t); J("v_lshl_add_u32 v%d, v15, 5, v14" % (TA + t)); J("v_add_u32 v%d, 0x10000, v%d" % (TA + 4 + t, TA + t))
    J("s_and_b32 s%d, s%d, 1" % (sT1, sW)); J("s_lshl_b32 s%d, s%d, 3" % (sT1, sT1))
    J("v_lshlrev_b32 v14, 9, v13"); J("v_add_u32 v14, s%d, v14" % sM0)
    for j in range(4):
        J("v_add_u32 v15, %d, v13" % (2 * j)); J("v_add_u32 v15, s%d, v15" % sT1); J("v_xor_b32 v15, v15, v12"); J("v_lshl_add_u32 v%d, v15, 4, v14" % (KD + j))
    J("s_lshl_b32 s%d, s%d, 1" % (sT1, sT1)); J("s_lshr_b32 s%d, s%d, 1" % (sK, sW)); J("s_lshl_b32 s%d, s%d, 2" % (sK, sK)); J("s_add_u32 s%d, s%d, s%d" % (sT1, sT1, sK))
    J("v_add_u32 v7, s%d, v13" % sT1); J("v_lshlrev_b32 v7, 13, v7")
    for j in range(4):
        J("v_add_u32 v15, %d, v13" % (2 * j)); J("v_lshlrev_b32 v15, 1, v15"); J("v_xor_b32 v15, v15, v12")
        J("v_lshl_add_u32 v%d, v15, 4, v14" % (VD + j))
        J("v_lshl_add_u32 v15, v15, 4, v7"); J("v_add_u32 v%d, %d, v15" % (QD + j, (8 * (j >> 1) + 2 * (j & 1)) * 8192 - 1024 * j))
    J("s_mov_b32 s%d, 0" % sK); J("s_mov_b32 s%d, 0" % sV)
    J("v_lshrrev_b32 v14, 3, v10"); J("v_lshlrev_b32 v14, 10, v14"); J("v_and_b32 v15, 7, v10"); J("v_lshl_add_u32 v14, v15, 7, v14"); J("v_add_u32 v14, s%d, v14" % sM0)
    J("v_bfe_u32 v15, v10, 1, 2"); J("v_lshlrev_b32 v15, 1, v15"); J("v_xor_b32 v15, v15, v11")
    J("v_lshl_add_u32 v2, v15, 4, v14"); J("v_xor_b32 v3, 64, v2")
    for k in range(2): J("v_add_u32 v%d, 0x10000, v%d" % (4 + k, 2 + k)); J("v_add_u32 v%d, 0x20000, v%d" % (6 + k, 2 + k))
    J("s_mul_i32 s%d, s%d, 28" % (sT1, sT0)); J("v_add_u32 v14, s%d, v9" % sT1); J("v_mov_b32 v13, 0x7f000000"); J("v_cmp_gt_u32 vcc, 28, v9")
    J("v_lshlrev_b32 v42, 7, v14"); J("v_cndmask_b32 v42, v13, v42, vcc")
    J("v_lshrrev_b32 v14, 1, v9"); J("v_add_u32 v14, s%d, v14" % sT1); J("v_mul_u32_u24 v14, 896, v14"); J("v_and_b32 v15, 1, v9"); J("v_lshl_add_u32 v14, v15, 7, v14"); J("v_cmp_gt_u32 vcc, 56, v9"); J("s_nop 0"); J("v_cndmask_b32 v41, v13, v14, vcc")
    J("s_and_b32 s%d, s%d, 1" % (sT1, sW)); J("s_lshl_b32 s%d, s%d, 13" % (sT1, sT1)); J("v_lshlrev_b32 v43, 7, v9"); J("v_add_u32 v43, s%d, v43" % sT1)
    J("s_cmp_lt_u32 s%d, 2\n    s_cselect_b32 s12, s%d, s%d\n    s_cselect_b32 s13, s%d, s%d" % (sW, SRD["K"], SRD["V"], SRD["K"] + 1, SRD["V"] + 1)); J("s_mov_b32 s14, 0x100000"); J("s_mov_b32 s15, 0x20000")
    J("s_and_b32 s16, s%d, 3" % sQB); J("s_lshl_b32 s16, s16, 14"); J("s_lshr_b32 s17, s%d, 2" % sQB)
    J("s_sub_u32 s17, 4, s17"); J("s_lshl_b32 s17, s17, 30"); J("s_add_u32 s16, s16, s17")
    def sst(k):
        if timing: I("s_memtime s[94:95]"); I("s_waitcnt lgkmcnt(0)"); I("s_sub_u32 s94, s94, s98"); I("v_mov_b32 v%d, s94" % (36 + k))
    def drain(n):
        for _ in range(min(n, len(Q_))):
            for x in Q_.pop(0).split("\n"): I(x.strip())
    drain(NOK)
    I("s_waitcnt lgkmcnt(0)")
    sst(0)
    mk("X", 4, 2048 * 896, f=I)
    XS = [0x4000, 0x8000, 0xc000, 0x14000, 0x18000, 0x1c000, 0x20000]
    per = (len(Q_) + 27) // 28
    for j in range(7):
        I("s_add_u32 m0, s%d, %d" % (sM0, XS[j]))
        if j: I("s_add_u32 s%d, s%d, 128" % (sSO, sSO))
        else: I("s_nop 0")
        for i in range(4):
            P.vmem("buffer_load_dwordx4 v%d, %s, s%d offen offset:%d lds" % (TD + i, srd("X"), sSO, 1024 * i), ("x", j))
            drain(per)
    drain(10 ** 6)
    NV = 16
    TL = 9
    tiles = []
    for t in range(7): tiles.append([("W1", WD, (sW13, t * 64 * 3584)), ("W3", WD, (sW13, t * 64 * 3584))])
    for j in range(7): tiles.append([("WQ", QD, (sWQ, 64 * j * 8192)), ("WQ", QD, (sWQ, (64 * j + 32) * 8192))])
    tiles.append([("K", KD, "inc"), None])
    for n in range(NV): tiles.append([("K", KD, "inc") if n < NV - 1 else None, ("V", VD, "inc")])
    for j in range(7): tiles.append([("WO", TD, (sWO, 128 * j)), ("WO", TD, (sWO, 128 * 896 + 128 * j))])
    NT = len(tiles); AT = 15
    def dma_ops(tau):
        groups = []
        for hf, half in enumerate(tiles[tau]):
            if half is None: continue
            sn, vb, so = half
            m0 = "s_add_u32 m0, s%d, %d" % (sM0, 65536 * hf + 16384 * (tau % 4))
            if so == "inc": sreg = sK if sn == "K" else sV; pre = [m0]; post = ["s_add_u32 s%d, s%d, 16384" % (sreg, sreg)]
            else: sreg = sSO + hf; pre = [m0, "s_add_u32 s%d, s%d, %d" % (sreg, so[0], so[1])]; post = []
            for j in range(4):
                groups.append((pre if j == 0 else [], "buffer_load_dwordx4 v%d, %s, s%d offen offset:%d lds" % (vb + j, srd(sn), sreg, 1024 * j), post if j == 3 else []))
        return groups
    def issue_group(g, tag):
        pre, d, post = g
        for x in pre: I(x)
        if pre: I("s_nop 0")
        P.vmem(d, tag)
        for x in post: I(x)
    t0 = dma_ops(0)
    def xread(s):
        j = s >> 1; base = XS[j]
        P.wait(vm=[("x", j)])
        for G in range(2):
            P.ds("ds_read_b128 %s, v%d offset:%d" % (r4(XC(s, G)), 2 + (s & 1) + 2 * (base >> 16), (base & 0xffff) + 2048 * G), ("xf", s))
    sst(1)
    for g in t0[:4]: issue_group(g, ("T", 0))
    for s in range(4): xread(s)
    for g in t0[4:]: issue_group(g, ("T", 0))
    sst(2)
    for s in range(14):
        if s + 4 < 14: xread(s + 4)
        P.wait(lg=[("xf", s)])
        for G in range(2): I("%s %s, %s, %s, %s" % (MF, r4(ST + 4 * G), r4(ST + 16), r4(XC(s, G)), "0" if s == 0 else r4(ST + 4 * G)))
    sst(3)
    def xlane(op, reg, tmp):
        ops = []
        for sw in ("v_permlane32_swap_b32", "v_permlane16_swap_b32"):
            ops += [("V", "v_mov_b32 v%d, v%d" % (tmp, reg)), ("T", "%s v%d, v%d" % (sw, reg, tmp)), ("V", "%s v%d, v%d, v%d" % (op, reg, reg, tmp))]
        return ops
    def center_ops(s):
        ops = []
        regs = [(G, XC(s, G) + r) for G in range(2) for r in range(4)]
        for i, (G, x) in enumerate(regs):
            lo = TMP + 2 * (i % 3); hi = lo + 1
            ops += [("V", "v_lshlrev_b32 v%d, 16, v%d" % (lo, x)), ("V", "v_and_b32 v%d, s%d, v%d" % (hi, sMASK, x)),
                    ("V", "v_sub_f32 v%d, v%d, v%d" % (lo, lo, MB + G)), ("V", "v_sub_f32 v%d, v%d, v%d" % (hi, hi, MB + G)),
                    ("V", "v_cvt_pk_bf16_f32 v%d, v%d, v%d" % (x, lo, hi))]
        return ops
    pre_ops = []
    for G in range(2):
        a = TMP + G
        pre_ops += ["v_mul_f32 v%d, 0x%x, v%d" % (a, f2u(1.0 / 448), ST + 4 * G), "v_cvt_pk_bf16_f32 v%d, v%d, v%d" % (MB + G, a, a), "v_lshlrev_b32 v%d, 16, v%d" % (MB + G, MB + G),
                    "v_sub_f32 v%d, v%d, v%d" % (DM + G, a, MB + G)]
    pre_ops += [t for k, t in center_ops(0)]
    for i, g in enumerate(dma_ops(1)):
        issue_group(g, ("T", 1))
        for x in pre_ops[6 * i:6 * i + 6]: I(x)
    P.wait(vm=[("T", 0)])
    I("s_barrier")
    if timing:
        for k in range(4): I("v_readfirstlane_b32 s94, v%d" % (36 + k)); I("s_nop 3"); I("v_writelane_b32 v0, s94, %d" % (50 + k))

    fr = []; sb = []
    def tr(areg, off, d2): return [("tr0", areg, off), ("tr1", areg, off + d2)]
    def add(reads, mf, ring, **kw): fr.append(dict(reads=reads, mf=mf, ring=ring, **kw))
    mark = {}
    for tau in range(7):
        sb.append(2 * len(fr))
        for ks in range(2):
            s = 2 * tau + ks
            mark[("F1", s)] = 2 * len(fr)
            for t in range(7):
                for kind in range(2):
                    ms = []
                    for G in range(2):
                        a = r4(GU + ((kind * 7 + t) * 2 + G) * 4, "a")
                        ms.append((a, r4(XC(s, G)), "0" if s == 0 else a, None))
                    add(tr(WA + 7 * kind + t, 8192 * ks + 16384 * (tau % 4), 4096), ms, "v")
                if t == 3:
                    add([], [(r4(ST + 8 + 4 * G), r4(XC(s, G)), "0" if s == 0 else r4(ST + 8 + 4 * G), r4(XC(s, G))) for G in range(2)], None)
    for j in range(7):
        tau = 7 + j; sb.append(2 * len(fr))
        order = [(hf, t) for hf in range(2) for t in range(16)] if (j < 6 and not (chain & 4 and j > 1)) else [(hf, t) for t in range(16) for hf in range(2)]
        for hf, t in order:
            s = 2 * j + hf
            ms = []
            for G in range(2):
                a = r4(O + 8 * t + 4 * G, "a")
                ms.append((a, r4(XC(s, G)), "0" if s == 0 else a, None))
            add(tr((VA if hf else VAL) + (t & 7), 256 * (t >> 3) + 16384 * (tau % 4), 8192), ms, "v", cg=(("q", j, t) if (j > 1 and chain & 4) else None))
    outs = []
    def qk_block(n, tau):
        order = [(kt, s) for kt in range(2) for s in range(8)] if (n > 0 and gray < 2) else [(kt, s) for s in range(8) for kt in range(2)]
        for kt, s in order:
            ms = []
            for G in range(2):
                d = r4(S[n % 2] + 8 * kt + 4 * G)
                c = ("0" if n <= 1 else r4(NEGM + 4 * G)) if s == 0 else d
                ms.append((d, r4(QF(G, s)), c, None))
            if n == 0 and kt == 0: mark[("QK0", s)] = 2 * len(fr)
            add([("b128", KA + (s & 3), 256 * (s >> 2) + 8192 * kt + 16384 * (tau % 4))], ms, "f" if n <= TL + 3 else "a", cg=(("qk", n, kt) if (0 < n <= TL + 3 and chain & 1) else None))
    def pv_block(n, tau):
        for t in range(16):
            ms = []
            for G in range(2):
                o = r4(O + 8 * t + 4 * G, "a")
                ms.append((o, r4(PK[n % 2] + 4 * G), "0" if n == 0 else o, None))
            add(tr(VA + (t & 7), 256 * (t >> 3) + 16384 * (tau % 4), 8192), ms, "a")
    sb.append(2 * len(fr)); qk_block(0, 14)
    pvs = {}; fsum_at = {}
    for n in range(NV):
        tau = AT + n; sb.append(2 * len(fr))
        if n < NV - 1: qk_block(n + 1, tau)
        pvs[n] = 2 * len(fr)
        pv_block(n, tau)
    OT = AT + NV
    for j in range(7):
        tau = OT + j; sb.append(2 * len(fr))
        order = [(tt, k) for k in range(8) for tt in range(4)] if j == 0 else [(tt, k) for tt in range(4) for k in range(8)]
        for tt, k in order:
            acc = 16 + 48 * (j & 1) + 8 * tt
            ms = [(r4(acc + 4 * G), r4(OF(k, G)), "0" if k == 0 else r4(acc + 4 * G), None) for G in range(2)]
            if j == 0 and tt == 0: mark[("O", k)] = 2 * len(fr)
            add(tr(TA + 4 * (k >> 2) + tt, 4096 * (k & 3) + 16384 * (tau % 4), 2048), ms, "a", cg=(("o", j, tt, k >> 2) if (j > 0 and chain & 2) else None))
            if k == 7: outs.append(("S", 2 * len(fr), acc, j))
    N = 2 * len(fr); sb.append(N)
    END = N + 40
    G_ = Gaps2(END)
    seq = []; i = 0
    while i < len(fr):
        cg = fr[i].get("cg"); j = i + 1
        while cg is not None and j < len(fr) and fr[j].get("cg") == cg: j += 1
        if j - i > 1:
            grp = list(range(i, j))
            seq += [(f_, 0) for f_ in grp] + [(f_, 1) for f_ in reversed(grp)]
            a_, b_ = fr[grp[0]]["mf"][1], fr[grp[-1]]["mf"][1]
            fr[grp[0]]["mf"][1] = (a_[0], a_[1], b_[2], a_[3]); fr[grp[-1]]["mf"][1] = (b_[0], b_[1], a_[2], b_[3])
        else:
            o_ = 1 if (gray and i % 2 == 1 and fr[i]["reads"]) else 0
            seq += [(i, o_), (i, 1 - o_)]
        i = j
    first = {}; last = {}
    for p_, (f_, k_) in enumerate(seq):
        first.setdefault(f_, p_); last[f_] = p_
    ws = set(first.values()) | set(range(0, N, 2))
    for p_ in sorted(ws): G_.put(p_, "S", ("waitslot", seq[p_][0]), force=True)
    barpos = {}
    for tau in range(NT):
        g = sb[tau + 1] - bar_off; barpos[tau] = g
        assert g % 2 == 1
        G_.put(g, "S", ("bar", tau), force=True); G_.put(g, "S", ("nil",), force=True)
    holes = set(); estart = {}
    for n in range(1, NV - 1):
        estart[n] = pvs[n - 1] + e0
        for e in range(16): holes.add(estart[n] + estep * e)
    cnt = {"v": 0, "a": 0, "f": 0}
    rl = []
    for i, f in enumerate(fr):
        if not f["reads"]: continue
        if f["ring"] == "v": r = FRV + 4 * (cnt["v"] % 8); p = "v"; lead = LW
        elif f["ring"] == "f": r = FRF + 4 * (cnt["f"] % 16); p = "a"; lead = L
        else: r = FRA + 4 * (cnt["a"] % 16); p = "a"; lead = L
        cnt[f["ring"]] += 1
        f["fr"] = r4(r, p)
        for q, (k, a, off) in enumerate(f["reads"]):
            assert off < 65536
            if k == "b128": txt = "ds_read_b128 %s[%d:%d], v%d offset:%d" % (p, r, r + 3, a, off)
            elif k == "tr0": txt = "ds_read_b64_tr_b16 %s[%d:%d], v%d offset:%d" % (p, r, r + 1, a, off)
            else: txt = "ds_read_b64_tr_b16 %s[%d:%d], v%d offset:%d" % (p, r + 2, r + 3, a, off)
            rl.append([first[i] - lead, txt, i])
    nxt = 10 ** 9
    for x in reversed(rl):
        g = min(x[0], nxt - 1)
        while g in holes: g -= 1
        x[0] = g; nxt = g
    lastuse = {}
    for g, txt, i in rl:
        g = max(g, 0)
        key = fr[i]["fr"]
        if key in lastuse and lastuse[key] != i: assert g > last[lastuse[key]], ("ring WAR", i, g, lastuse[key])
        lastuse[key] = i
        tau = max(t for t in range(NT) if sb[t] <= 2 * i)
        if tau > 0: assert g > barpos[tau - 1], ("read before barrier", i, g, tau, barpos[tau - 1])
        G_.put(g, "D", ("ds", txt, ("f", i)), force=True)
    def place_softmax(n, e0_, estep_, limit, dense=False):
        s = S[n % 2]; pk = PK[n % 2]; lo = LB[n % 2]; ln = LB[(n + 1) % 2]
        first = [True, True]; gl = 0; pend = []
        for e, (kt, G, r) in enumerate([(kt, G, r) for kt in range(2) for G in range(2) for r in range(4)]):
            src = s + 8 * kt + 4 * G + r; p = PT + e
            g = G_.put(e0_ + int(estep_ * e), "T", ("ins", "v_exp_f32 v%d, v%d" % (p, src)), force=True)
            pend.append((g + 1, "v_add_f32 v%d, v%d, v%d" % (ln + G, (lo if first[G] else ln) + G, p))); first[G] = False
            if r % 2 == 1: pend.append((g + 1, "v_cvt_pk_bf16_f32 v%d, v%d, v%d" % (pk + 4 * G + 2 * kt + r // 2, p - 1, p)))
        pend.append((0, "v_add_f32 v%d, v%d, v%d" % (TC, ln, ln + 1))); pend.append((0, "v_cmp_nge_f32 vcc, s%d, v%d" % (sTH, TC)))
        for k, (g, t) in enumerate(pend):
            st = max(g, gl)
            gl = G_.put(st, "V", ("ins", t), limit=min(st + (1 if dense else 4), limit - 1))
        G_.put(gl + 1, "S", ("chk", n), limit=limit)
    b0 = sb[AT]
    ops = []
    for G in range(2):
        e = [S[0] + 8 * kt + 4 * G + r for kt in range(2) for r in range(4)]
        m = MX + G
        ops += [("V", "v_max3_f32 v%d, v%d, v%d, v%d" % (m, e[0], e[1], e[2])), ("V", "v_max3_f32 v%d, v%d, v%d, v%d" % (m, m, e[3], e[4])),
                ("V", "v_max3_f32 v%d, v%d, v%d, v%d" % (m, m, e[5], e[6])), ("V", "v_max_f32 v%d, v%d, v%d" % (m, m, e[7]))]
        ops += xlane("v_max_f32", m, T0)
        ops += [("V", "v_sub_f32 v%d, v%d, v%d" % (x, x, m)) for x in e]
        ops += [("V", "v_mov_b32 v%d, 0" % (LB[0] + G))]
    g_init = G_.chain(ops, b0 + 4, b0 + 15)
    for n in range(NV):
        bn = sb[AT + n]
        if n == 0: place_softmax(0, g_init + 1, 0.75, pvs[0] - 1, dense=True)
        elif n == NV - 1: place_softmax(n, pvs[n - 1] + 6, 1.4, pvs[n], dense=True)
        else: place_softmax(n, estart[n], estep, bn + 31)
    def fix_ops(kt): return [("V", "v_sub_f32 v%d, v%d, v%d" % (S[1] + 8 * kt + 4 * G + r, S[1] + 8 * kt + 4 * G + r, MX + G)) for G in range(2) for r in range(4)]
    G_.chain(fix_ops(0), b0 + (30 if gray < 2 else 36), estart[1] - 1)
    G_.chain(fix_ops(1) + [("V", "v_sub_f32 v%d, 0, v%d" % (NEGM + 4 * G + r, MX + G)) for G in range(2) for r in range(4)], estart[1], min(estart[1] + 8 * estep + 6, b0 + 62))
    def place_dma(groups, g, dstep, tag):
        for pre, d, post in groups:
            g0 = g
            for x in pre: g0 = G_.put(g0 - 1, "S", ("ins", x), limit=g0 + 1) + 1
            g0 = G_.put(max(g, g0), "M", ("vm", d, tag), limit=max(g, g0) + 2)
            for x in post: G_.put(g0 + 1, "S", ("ins", x), limit=g0 + 2)
            g = max(g + dstep, g0 + 3)
        return g, g0
    place_dma(dma_ops(2), 3, 4, ("T", 2))
    dmaend = {}
    lead_pf = lambda d, v: ([], "buffer_load_dword v%d, v%d, %s, s%d offen" % (d, v, srd("PF"), sPFO), ["s_add_u32 s%d, s%d, 0x40010000" % (sPFO, sPFO)])
    for tau in range(NT - 3):
        nn = tau - AT
        groups = dma_ops(tau + 3)
        pre_g = []
        extra = []
        if tau in (3, 7, 11): extra = [lead_pf(44, 43)] if lpf & 1 else [([], 'buffer_load_dword v44, v45, %s, s%d offen' % (srd('DBG'), sAT), ['s_add_u32 s%d, s%d, 0x40010000' % (sPFO, sPFO)])]
        if nn in (1, 5) and lpf & 2: extra = [lead_pf(PFD, PFV)]
        if tau == 9: extra = [([], "buffer_store_dword v46, v47, %s, s%d offen sc1" % (srd("WS"), sFLW), [])]
        if nn in (2, 6): extra = [([], "buffer_atomic_add v3, v4, %s, s%d offen offset:4" % (srd("DBG"), sAT), ["s_sub_u32 s%d, s%d, 4096" % (sAT, sAT)])]
        if nn in (3, 7): extra = [([], "buffer_load_dword v%d, v%d, %s, s91 offen" % (PFD, PFW, srd("WO")), ["s_sub_u32 s91, s91, 0x400000"])]
        if nn in (0, 4, 8): extra = [([], "buffer_load_dword v%d, v%d, %s, s90 offen" % (PFD, PF2, srd("W2")), ["s_sub_u32 s90, s90, 0x400000"])]
        g = barpos[tau] + 3; hi = barpos[tau + 1] - 1
        dstep = min(dma_step, (hi - g) // (len(groups) + len(extra) + len(pre_g)))
        if pre_g: g, g0 = place_dma(pre_g, g, dstep, ("T", tau + 2))
        g, g0 = place_dma(groups, g, dstep, ("T", tau + 3))
        if extra: g, g0 = place_dma(extra, g, dstep, ("T", tau + 4))
        assert g0 <= barpos[tau + 1] + 1, (tau, g0, barpos[tau + 1])
        dmaend[tau] = g0
    for s in range(1, 14):
        G_.chain(center_ops(s), mark[("F1", s - 1)] + 1, mark[("F1", s)] - 1)
    q0 = sb[7]; q1 = sb[14]
    ops = []
    for G in range(2):
        a = CI + G; t = TMP + G; g = ST + 8 + 4 * G
        ops += [("V", "v_cndmask_b32 v%d, 0, v%d, s[%d:%d]" % (a, g, sDG, sDG + 1))]
        ops += [("V", "v_cndmask_b32 v%d, v%d, v%d, s[%d:%d]" % (a, a, g + r, sDG + 2 * r, sDG + 2 * r + 1)) for r in range(1, 4)]
        ops += xlane("v_add_f32", a, t)
        ops += [("V", "v_mul_f32 v%d, v%d, v%d" % (t, DM + G, DM + G)), ("V", "v_mul_f32 v%d, 0x%x, v%d" % (a, f2u(1.0 / 448), a)), ("V", "v_sub_f32 v%d, v%d, v%d" % (a, a, t)),
                ("V", "v_max_f32 v%d, 0, v%d" % (a, a)),
                ("V", "v_cvt_pk_bf16_f32 v%d, v%d, v%d" % (a, a, a)), ("V", "v_lshlrev_b32 v%d, 16, v%d" % (a, a)),
                ("V", "v_add_f32 v%d, 0x%x, v%d" % (a, f2u(1e-5), a)), ("V", "v_cvt_pk_bf16_f32 v%d, v%d, v%d" % (a, a, a)), ("V", "v_lshlrev_b32 v%d, 16, v%d" % (a, a)),
                ("T", "v_sqrt_f32 v%d, v%d" % (a, a)), ("V", "v_cvt_pk_bf16_f32 v%d, v%d, v%d" % (a, a, a)), ("V", "v_lshlrev_b32 v%d, 16, v%d" % (a, a)),
                ("T", "v_rcp_f32 v%d, v%d" % (t, a)), ("V", "v_mul_f32 v%d, v%d, v%d" % (a, a, a)),
                ("V", "v_mul_f32 v%d, 0x%x, v%d" % (RSQ + G, f2u(LOG2E / 16), t)), ("V", "v_mul_f32 v%d, 0x%x, v%d" % (RSN + G, f2u(-LOG2E), t))]
    gv = G_.chain(ops, mark[("F1", 13)] + 24, q0 + 32)
    els = [(t, G, r) for t in range(7) for G in range(2) for r in range(4)]
    def stage(i, st):
        t, G, r = els[i]
        b = WA + 3 * (i % 4); hv = WA + 12 + (i % 2)
        ga = GU + ((0 * 7 + t) * 2 + G) * 4 + r; ua = GU + ((7 + t) * 2 + G) * 4 + r
        if st == 0: return [("V", "v_accvgpr_read_b32 v%d, a%d" % (b, ga)), ("V", "v_accvgpr_read_b32 v%d, a%d" % (b + 1, ua)), ("V", "v_mul_f32 v%d, v%d, v%d" % (b + 2, b, RSN + G)), ("T", "v_exp_f32 v%d, v%d" % (b + 2, b + 2))]
        if st == 1: return [("V", "v_mul_f32 v%d, v%d, v%d" % (b, b, b + 1)), ("V", "v_fma_f32 v%d, v%d, v%d, v%d" % (b + 2, b + 2, CI + G, CI + G)), ("T", "v_rcp_f32 v%d, v%d" % (b + 2, b + 2))]
        o = [("V", "v_mul_f32 v%d, v%d, v%d" % (hv, b, b + 2))]
        if r % 2 == 1: o.append(("V", "v_cvt_pk_bf16_f32 v%d, v%d, v%d" % (H(t // 2, G) + 2 * (t & 1) + r // 2, WA + 12, WA + 13)))
        return o
    ops = []
    for i in range(len(els) + 2):
        if i < len(els): ops += stage(i, 0)
        if 0 <= i - 1 < len(els): ops += stage(i - 1, 1)
        if 0 <= i - 2 < len(els): ops += stage(i - 2, 2)
    for G in range(2): ops += [("V", "v_mov_b32 v%d, 0" % (H(3, G) + 2)), ("V", "v_mov_b32 v%d, 0" % (H(3, G) + 3))]
    gsw = G_.chain(ops, max(gv + 1, q0 + 34), sb[13] + 10, window=1)
    gprev = gsw + 1
    for k in range(8):
        ops = []
        for G in range(2):
            q = QF(G, k)
            dst = (16 + 4 * k) if q < 128 + 16 else q
            for half in range(2):
                a = O + 8 * (2 * k + half) + 4 * G
                tb = WA + 4 * ((2 * (2 * k + G) + half) % 3)
                ops += [("V", "v_accvgpr_read_b32 v%d, a%d" % (tb + r, a + r)) for r in range(4)]
                ops += [("V", "v_mul_f32 v%d, v%d, v%d" % (tb + r, tb + r, RSQ + G)) for r in range(4)]
                ops += [("V", "v_cvt_pk_bf16_f32 v%d, v%d, v%d" % (dst + 2 * half + p, tb + 2 * p, tb + 2 * p + 1)) for p in range(2)]
            ops += [("T", "v_permlane32_swap_b32 v%d, v%d" % (dst + p, dst + 2 + p)) for p in range(2)]
            ops += [("T", "v_permlane16_swap_b32 v%d, v%d" % (dst + p, dst + 2 + p)) for p in range(2)]
        st = max(gprev, sb[13] + 8 * k + 8 + 4)
        en = max(st, min(mark[("QK0", k)] - 1, (sb[13] + 12 + 13 * (k + 1)) if k < 4 else 10 ** 9, q1 - 1 if k < 4 else 10 ** 9))
        gprev = G_.chain(ops, st, en, window=1)
    for i in range(16): G_.put(q1, "V", ("ins", "v_mov_b32 v%d, v%d" % (128 + i, 16 + i)), force=True)
    G_.put(q1 + 5, "V", ("ins", "v_mov_b32 v%d, v41" % PF2), force=True)
    ops = []
    for k in range(4):
        for G in range(2):
            ops.append(("M", ("vm", "buffer_store_dwordx4 %s, v%d, %s, s%d offen offset:%d sc1" % (r4(H(k, G)), VL16, srd("WS"), sFO, 1024 * ((2 * k + G) & 3)), "hst")))
            if (k, G) == (1, 1): ops.append(("S", "s_add_u32 s%d, s%d, 4096" % (sFO, sFO)))
    G_.chain(ops, pvs[0] + 1, pvs[0] + 30, window=2)
    G_.put(q1 + 6, "V", ("ins", "v_mov_b32 v%d, v43" % PFV), force=True); G_.put(q1 + 7, "V", ("ins", "v_mov_b32 v%d, v42" % PFW), force=True)
    G_.put(q1 + 8, "V", ("ins", "v_mov_b32 v4, v45"), force=True); G_.put(q1 + 9, "V", ("ins", "v_mov_b32 v%d, v47" % AVP), force=True)
    G_.put(b0 + 1, "V", ("ins", "v_mov_b32 v3, 1"), force=True)
    G_.put(b0 + 2, "V", ("ins", "v_lshrrev_b32 v2, 24, v4"), force=True); G_.put(b0 + 3, "V", ("ins", "v_and_b32 v2, 0x40, v2"), force=True)
    ta = AT + TL
    G_.chain([("V", "v_mov_b32 v6, 0"), ("V", "v_mov_b32 v5, 0x24000"), ("V", "v_add_u32 v7, v2, v5"),
              ("M", ("vm", "buffer_load_dword v6, v4, %s, s%d offen offset:4 sc1" % (srd("DBG"), sCW), "fpoll"))], sb[ta] + 1, sb[ta] + 10)
    G_.chain([("S", ("waitvm", "fpoll")), ("D", ("ds", "ds_write_b32 v7, v6", "fw"))], barpos[ta + 1] - 8, barpos[ta + 1] - 4)
    G_.put(barpos[ta + 1] - 1, "S", ("waitlg", "fw"), force=True)
    sSH = 77; WV = 96
    def share_s():
        return ["s_lshr_b32 s16, s%d, 2" % sSH, "s_lshl_b32 s17, s%d, 2" % sQB, "s_add_u32 s16, s16, s17",
                "s_lshl_b32 s18, s16, 4", "s_lshl_b32 s17, s%d, 2" % sW, "s_add_u32 s18, s18, s17", "s_lshl_b32 s18, s18, 13", "s_add_u32 s18, s18, 0x%x" % WS_F,
                "s_and_b32 s19, s%d, 3" % sSH, "s_mul_i32 s%d, s%d, %d" % (sW2, sW, 448 * 896), "s_lshl_b32 s17, s19, 8", "s_add_u32 s%d, s%d, s17" % (sW2, sW2),
                "s_lshl_b32 s93, s16, 7", "s_add_u32 s93, s93, 0x%x" % WS_FL,
                "s_cmp_eq_u32 s19, 3\n    s_cselect_b32 s17, 3, 7"]
    def share_v():
        o = ["v_lshrrev_b32 v100, 8, v%d" % VL16, "v_bfe_u32 v101, v%d, 5, 3" % VL16, "v_mul_u32_u24 v102, 896, v100", "v_and_b32 v103, 16, v%d" % VL16, "v_add_u32 v102, v102, v103"]
        for j in range(4):
            o += ["v_add_u32 v103, %d, v100" % (4 * (j & 1)), "v_xor_b32 v103, v103, v101", "v_and_b32 v103, s17, v103", "v_lshl_add_u32 v103, v103, 5, v102", "v_add_u32 v%d, %d, v103" % (WV + j, j * (4 * 896 - 1024))]
        return o
    BF = lambda j: r4(192 + 4 * j) if j < 16 else r4(128 + 4 * (j - 16), "a")
    def bload(j): return "buffer_load_dwordx4 %s, v%d, %s, s18 offen offset:%d sc1" % (BF(j), VL16, srd("WS"), 1024 * (j & 3))
    RING = [0x20000, 0x24000] + [0x10000 * hf + 16384 * ((OT + j) % 4) for j in (3, 4, 5, 6) for hf in range(2)]
    def w2dma(i):
        return [(["s_add_u32 m0, s%d, %d" % (sM0, RING[i % 10])] if j == 0 else [], "buffer_load_dwordx4 v%d, %s, s%d offen offset:%d lds" % (WV + j, srd("W2"), sW2, 1024 * j),
                 ["s_add_u32 s%d, s%d, 14336" % (sW2, sW2)] if j == 3 else []) for j in range(4)]
    ops = [("D", ("ds", "ds_read_b32 v6, v5", "fr")), ("S", "s_mov_b32 s%d, s%d" % (sSH, sH))] + [("S", x) for x in share_s()]
    ops += [("S", ("waitlg", "fr")), ("V", "v_readfirstlane_b32 s%d, v6" % sFC)]
    if test_nof: ops += [("S", "s_bitcmp1_b32 %d, s%d\n    s_cselect_b32 s%d, 0, s%d" % (test_nof, sH, sFC, sFC))]
    ops += [("S", "s_cmp_eq_u32 s%d, 16\n    s_cselect_b32 s18, s18, 0x%x" % (sFC, BIG))]
    g = G_.chain(ops, barpos[ta + 1] + 1, barpos[ta + 1] + 24)
    bl = pvs[NV - 1]
    G_.put(bl + 8, "V", ("ins", "v_mov_b32 v%d, v%d" % (AVW, AVP)), force=True)
    G_.chain([("V", x) for x in share_v()], sb[OT + 1] + 2, sb[OT + 2] + 20)
    if tlb:
        ops = [("S", "s_mul_i32 s92, s16, %d" % (28 * 16384)), ("M", ("vm", "buffer_load_dword v%d, v%d, %s, s92 offen sc1" % (PFD, AVP, srd("WS")), "tlb")),
               ("S", "s_add_u32 s92, s92, %d" % (28 * 16384 - 64)), ("M", ("vm", "buffer_load_dword v%d, v%d, %s, s92 offen sc1" % (PFD, AVP, srd("WS")), "tlb")),
               ("M", ("vm", "buffer_load_dword v%d, v%d, %s, s%d offen sc1" % (PFD, AVP, srd("WS"), sSOe), "tlb")),
               ("S", "s_add_u32 s92, s%d, %d" % (sSOe, 27 * 16384)), ("M", ("vm", "buffer_load_dword v%d, v%d, %s, s92 offen sc1" % (PFD, AVP, srd("WS")), "tlb")),
               ("S", "s_mul_i32 s92, s16, %d" % (32 * 896)), ("M", ("vm", "buffer_load_dword v%d, v%d, %s, s92 offen sc1" % (PFD, AVP, srd("OUT")), "tlb")),
               ("M", ("vm", "buffer_load_dword v%d, v%d, %s, s92 offen" % (PFD, AVP, srd("X")), "tlb")),
               ("M", ("vm", "buffer_load_dword v%d, v%d, %s, s93 offen sc1" % (PFD, AVP, srd("WS")), "tlb"))]
        g = G_.chain(ops, g + 2, g + 40, window=2)
    lo_ = g + 2; hi_ = sb[OT] - 6
    for j in range(32):
        gq = lo_ + ((hi_ - lo_) * j) // 32
        gq = G_.put(max(gq, g + 1), "M", ("vm", bload(j), ("bl", j)), limit=max(gq, g + 1) + 3)
        assert j < 16 or gq > sb[AT + TL + 3]
        if j & 3 == 3: G_.put(gq + 1, "S", ("ins", "s_add_u32 s18, s18, 4096"), limit=gq + 2)
        g = gq + 2
    G_.chain([("V", "v_bfe_u32 v104, v%d, 4, 4" % VL16), ("V", "v_lshlrev_b32 v104, 2, v104"), ("M", ("vm", "buffer_load_dword v6, v104, %s, s93 offen sc1" % srd("WS"), "poll"))], N - 6, N + 2)
    for i in range(2):
        g, g0 = place_dma(w2dma(i), dmaend[OT + 2 + i] + 3, 3, ("W", i))
        assert g0 + 2 < barpos[OT + 3 + i] + 2, (g0, barpos[OT + 3 + i])
    for j in (4, 5, 6):
        i = 2 * (j - 4) + 2
        g, g0 = place_dma(w2dma(i), barpos[OT + j] + 3, 5 if j < 6 else 3, ("W", i))
        g, g0 = place_dma(w2dma(i + 1), g, 5 if j < 6 else 3, ("W", i + 1))
        assert g0 + 2 < (barpos[OT + j + 1] + 2 if j < 6 else END), (j, g0)
    lf = LB[NV % 2]
    ops = []
    for G in range(2):
        ops += xlane("v_add_f32", lf + G, T0) + [("T", "v_rcp_f32 v%d, v%d" % (RL + G, lf + G))]
    gprev = G_.chain(ops, bl + 1, bl + 10)
    for k in range(8):
        ops = []
        for G in range(2):
            for half in range(2):
                a = O + 8 * (2 * k + half) + 4 * G
                tb = PT + 4 * ((2 * G + half) % 4)
                ops += [("V", "v_accvgpr_read_b32 v%d, a%d" % (tb + r, a + r)) for r in range(4)]
                ops += [("V", "v_cvt_pk_bf16_f32 v%d, v%d, v%d" % (OF(k, G) + 2 * half + p, tb + 2 * p, tb + 2 * p + 1)) for p in range(2)]
        st = max(gprev, bl + 4 * k + 4 + 5)
        en = max(st, min(mark[("O", k)] - 1, bl + 10 + 10 * (k + 1)))
        gprev = G_.chain(ops, st, en, window=1)
    gout = 0; lastst = {}
    for idx, (kind, g, acc, ch) in enumerate(outs):
        tb = TMP + 4 * (idx % 2)
        ops = []
        if kind == "S":
            ops += [("V", "v_mul_f32 v%d, v%d, v%d" % (acc + 4 * G + r, acc + 4 * G + r, RL + G)) for G in range(2) for r in range(4)]
        ops += [("V", "v_cvt_pk_bf16_f32 v%d, v%d, v%d" % (tb + 2 * G + p, acc + 4 * G + 2 * p, acc + 4 * G + 2 * p + 1)) for G in range(2) for p in range(2)]
        so = sSOe
        ops += [("M", ("vm", "buffer_store_dwordx4 %s, v%d, %s, s%d offen sc1" % (r4(tb), VL16, srd("WS"), so), ("st", ch))), ("S", "s_add_u32 s%d, s%d, 16384" % (so, so))]
        st = max(g + 5, gout + 1)
        gout = G_.chain(ops, st, min(st + (7 if kind == "F" else 13), END))
        lastst[ch] = gout
    pub = {NT - 1: -1}
    for c in range(6):
        g = max(lastst[c] + pub_lag, barpos[OT + 0] + 2)
        if g > N + 10: continue
        g = G_.put(g - 1, "V", ("ins", "v_mov_b32 v3, %d" % (c + 1)), limit=g + 2)
        g = G_.put(g + 1, "S", ("waitvm", ("st", c)), limit=g + 3)
        G_.put(g, "M", ("vm", "buffer_store_dword v3, v%d, %s, s%d offen sc1" % (AVW, srd("WS"), sFLW), "flg"), force=True)
    loops = [(sb[AT + 1], sb[AT + 5], sb[AT + 9], "A", range(5, 9))]
    rare_sites = []
    def stamp(k):
        I("s_memtime s[94:95]"); I("s_waitcnt lgkmcnt(0)")
        I("s_sub_u32 s94, s94, s98"); I("v_writelane_b32 v0, s94, %d" % k); I("s_mov_b32 s96, s94")
    def rstamp(k):
        I("s_memrealtime s[94:95]"); I("s_waitcnt lgkmcnt(0)"); I("v_writelane_b32 v0, s94, %d" % k)
    mk_ = {}
    for i in range(END + 1):
        for (ls, le, ce, nm, drop) in loops:
            if i == le: mk_[nm + "1"] = len(P.lines)
            if i == ce:
                m0_, m1_ = mk_[nm + "0"], mk_[nm + "1"]
                A = P.lines[m0_:m1_]; B = P.lines[m1_:]
                norm = lambda L_: [re.sub(r"L_(rare|back)_\d+", "L_x", x) for x in L_]
                assert len(A) == len(B), (nm, len(A), len(B), [(a, b) for a, b in zip(norm(A), norm(B)) if a != b][:6])
                for k_, (a_, b_) in enumerate(zip(norm(A), norm(B))):
                    if a_ != b_:
                        ma = re.fullmatch(r"\s*s_waitcnt vmcnt\((\d+)\)", a_); mb = re.fullmatch(r"\s*s_waitcnt vmcnt\((\d+)\)", b_)
                        assert ma and mb, (nm, a_, b_)
                        if int(mb.group(1)) < int(ma.group(1)): P.lines[m0_ + k_] = b_
                del P.lines[m1_:]
                rare_sites = [x for x in rare_sites if x not in drop]
                I("s_add_u32 s%d, s%d, 1" % (sLOOP, sLOOP)); I("s_cmp_lt_u32 s%d, %d" % (sLOOP, 14)); I("s_cbranch_scc1 L_loop%s" % nm)
        if timing and i in sb:
            t_ = sb.index(i)
            if t_ <= AT + 1: stamp(t_)
            elif t_ >= AT + 9: stamp(t_ - (AT + 9) + 18)
            if t_ == AT + 9:
                rstamp(41)
                for k_ in range(17, 18): I("v_writelane_b32 v0, s96, %d" % k_)
            if i == N: rstamp(42)
        for (ls, le, ce, nm, drop) in loops:
            if i == ls:
                I("s_mov_b32 s%d, 0" % sLOOP)
                P.label("L_loop%s" % nm); mk_[nm + "0"] = len(P.lines)
        for it in G_.items(i):
            if it[0] == "ds": P.ds(it[1], it[2])
            elif it[0] == "bar":
                tau = it[1]
                if tau + 1 < NT or tau in pub:
                    P.wait(vm=[("T", tau + 1)] + [("st", c) for c in range(-1, pub.get(tau, -1))]); I("s_barrier")
            elif it[0] == "vm": P.vmem(it[1], it[2])
            elif it[0] == "waitslot":
                if i > 0: P.wait(lg=[("f", it[1])], maxq=12)
            elif it[0] == "chk":
                if it[1] > 0:
                    I("s_cbranch_vccnz L_rare_%d" % it[1]); P.label("L_back_%d" % it[1]); rare_sites.append(it[1])
            elif it[0] == "nil": pass
            elif it[0] == "waitvm": P.wait(vm=[it[1]])
            elif it[0] == "waitlg": P.wait(lg=[it[1]])
            else:
                for x in it[1].split("\n"): I(x.strip())
        if i < N:
            f = fr[seq[i][0]]; d, b, c, ao = f["mf"][seq[i][1]]
            P.wait(lg=[("f", seq[i][0])])
            I("%s %s, %s, %s, %s" % (MF, d, ao or f["fr"], b, c))
    SEL = 48; AC = 192; A2 = 0; RA = 64; TT = 56; XV = 88; PV = 104; THR = 90; V4 = 92; XR = 16; LA = 105; TQ = 106; SS = 24; GV = 128
    sRD, sSP, sALL, sPE, sM1, sM2, sB, sX = 78, 79, 83, 4, 5, 6, 8, 10
    slot = lambda b: r4(64 + 4 * b, "a") if b < 16 else r4(128 + 4 * (b - 16))
    def consts():
        I("v_lshrrev_b32 v107, 4, v%d" % VL16); I("v_and_b32 v108, 15, v107"); I("v_lshrrev_b32 v109, 4, v107")
        I("v_bfe_u32 v110, v107, 2, 4"); I("v_and_b32 v111, 3, v107"); I("v_and_b32 v112, 7, v110"); I("v_lshlrev_b32 v113, 8, v110"); I("v_lshl_add_u32 v113, v111, 3, v113"); I("v_add_u32 v113, s%d, v113" % sM0)
        for t in range(8):
            I("v_xor_b32 v111, %d, v112" % t); I("v_lshl_add_u32 v%d, v111, 5, v113" % (RA + t)); I("v_add_u32 v%d, 0x10000, v%d" % (RA + 8 + t, RA + t)); I("v_add_u32 v%d, 0x20000, v%d" % (RA + 16 + t, RA + t))
        I("v_lshrrev_b32 v110, 2, v108"); I("v_cmp_eq_u32 vcc, v110, v109"); I("v_and_b32 v111, 1, v108"); I("v_lshlrev_b32 v111, 4, v111"); I("v_mov_b32 v112, 0x3f80"); I("v_lshlrev_b32 v112, v111, v112")
        I("v_cndmask_b32 v112, 0, v112, vcc"); I("v_and_b32 v111, 2, v108"); I("v_cmp_eq_u32 vcc, 0, v111")
        for r in (0, 1, 4, 5): I("v_mov_b32 v%d, 0" % (SEL + r))
        I("v_cndmask_b32 v%d, 0, v112, vcc" % (SEL + 2)); I("v_cndmask_b32 v%d, v112, 0, vcc" % (SEL + 3))
        I("v_and_b32 v55, 1, v109")
        I("v_mul_u32_u24 v%d, 896, v108" % XV); I("v_lshl_add_u32 v%d, v109, 3, v%d" % (XV, XV)); I("v_add_u32 v%d, 14336, v%d" % (XV + 1, XV))
        for q in range(4): I("v_add_u32 v%d, %d, v%d" % (V4 + q, 4096 * q, VL16))
        I("v_add_u32 v%d, s%d, v%d" % (LA, sM0, VL16))
        I("s_lshr_b32 s84, s%d, 1" % sW); I("s_lshl_b32 s84, s84, 14"); I("s_and_b32 s82, s%d, 1" % sW); I("s_lshl_b32 s82, s82, 11"); I("s_add_u32 s82, s82, s84"); I("v_add_u32 v%d, s82, v%d" % (TQ, VL16))
    def call(lbl): I("s_call_b64 s[88:89], %s" % lbl)
    I("v_mov_b32 v3, 7"); I("v_mov_b32 v7, 1"); I("v_mov_b32 v5, 0x10000")
    I("s_mov_b32 s%d, 0" % sALL); I("s_mov_b32 s%d, 0" % sRD)
    I("s_barrier")
    if timing: stamp(33)
    I("s_cmp_eq_u32 s%d, 16" % sFC); I("s_cbranch_scc1 L_hot")
    consts()
    I("s_waitcnt vmcnt(0)"); I("buffer_store_dword v3, v%d, %s, s%d offen sc1" % (AVW, srd("WS"), sFLW)); I("s_barrier")
    I("v_mov_b32 v7, 0x101"); I("buffer_atomic_add v7, v4, %s, s%d offen sc0" % (srd("DBG"), sCW)); I("s_branch L_done")
    P.label("L_hot")
    for i in (8, 9):
        for g_ in w2dma(i): issue_group(g_, ("W", i))
    consts()
    P.label("L_roles")
    I("s_mul_i32 s84, s16, %d" % (32 * 896)); I("s_lshl_b32 s85, s19, 8"); I("s_add_u32 s84, s84, s85"); I("s_lshl_b32 s85, s%d, 5" % sW); I("s_add_u32 s%d, s84, s85" % sX); I("s_add_u32 s%d, s%d, 128" % (sX + 1, sX))
    I("s_mul_i32 s82, s16, 28"); I("s_lshl_b32 s84, s19, 3"); I("s_add_u32 s82, s82, s84"); I("s_add_u32 s82, s82, s%d" % sW); I("s_lshl_b32 s%d, s82, 14" % sB); I("s_add_u32 s%d, s%d, 0x10000" % (sB + 1, sB))
    I("s_cmp_eq_u32 s19, 3"); I("s_cselect_b32 s%d, 0xffff, -1" % sPE); I("s_cselect_b32 s%d, 0x%x, s%d" % (sX + 1, BIG, sX + 1))
    I("s_mov_b32 s%d, %d" % (sSP, spin))
    I("s_lshl_b32 s82, s19, 1"); I("v_add_u32 v%d, s82, v55" % THR)
    for r in range(16): I("v_mov_b32 v%d, 0" % (SS + r))
    def ready(dst, lim=None):
        I("v_cmp_lt_u32 vcc, v%d, v6" % THR); I("s_cmp_eq_u32 s%d, 1" % sALL); I("s_cselect_b32 s14, -1, vcc_lo"); I("s_and_b32 s14, s14, s%d" % sPE)
        if lim: I("s_and_b32 s14, s14, 0x%x" % lim)
        I("s_andn2_b32 s%d, s%d, s14" % (sPE, sPE))
    P.wait(vm=["poll"])
    if timing: stamp(54)
    fl = []
    for hd in range(4):
        for k in range(4):
            a_ = 7 * hd + 2 * k; b_ = a_ + 1 if k < 3 else a_
            for tt in range(8): fl.append((hd, k, tt, a_, b_))
    LD = 6
    pend = []
    def rd(fi, half):
        hd, k, tt, a_, b_ = fl[fi]
        ht = b_ if half else a_; base = RING[ht % 10]; r = FRA + 4 * (fi % 16) + 2 * half
        P.wait(vm=[("W", ht)])
        P.ds("ds_read_b64_tr_b16 a[%d:%d], v%d offset:%d" % (r, r + 1, RA + 8 * (base >> 16) + tt, base & 0xffff), ("g", fi))
    for fi in range(LD): rd(fi, 0); rd(fi, 1)
    for fi, (hd, k, tt, a_, b_) in enumerate(fl):
        if timing and k == 0 and tt == 0 and hd > 0: stamp(54 + hd)
        P.wait(lg=[("g", fi)], vm=[("bl", 8 * hd + 2 * k), ("bl", 8 * hd + 2 * k + 1)])
        if tt == 7:
            for ht in sorted({a_, b_}):
                if ht + 10 < 28: pend += [(g_, ("W", ht + 10)) for g_ in w2dma(ht + 10)]
                if ht + 10 == poll2 + 10: pend += ["poll"]
                if ht + 10 == 27: pend += ["skip"] * r2delay + ["round2"]
        for G in range(2):
            d = r4(A2 + 8 * tt + 4 * G, "a")
            I("%s %s, %s, %s, %s" % (MF, d, r4(FRA + 4 * (fi % 16), "a"), BF(8 * hd + 2 * k + G), "0" if (hd, k) == (0, 0) else d))
            if fi + LD < len(fl): rd(fi + LD, G)
        if fi == flag_at:
            P.wait(vm=[("st", 6)]); P.vmem("buffer_store_dword v3, v%d, %s, s%d offen sc1" % (AVW, srd("WS"), sFLW), "flg")
        if fi == max(r1_at, flag_at + 1): ready(None, r1mask); call("L_loadpass")
        if tt == 0 and 4 * hd + k == sum_ks:
            P.wait(vm=[("W", 12)]); call("L_sumpass")
        if pend:
            p_ = pend.pop(0)
            if p_ == "poll": P.vmem("buffer_load_dword v6, v%d, %s, s93 offen sc1" % (PV, srd("WS")), "poll")
            elif p_ == "round2":
                P.wait(vm="all"); ready(sM2); call("L_loadpass")
                for q in range(2):
                    for G in range(2): I("buffer_load_dwordx2 v[%d:%d], v%d, %s, s%d offen" % (XR + 4 * q + 2 * G, XR + 4 * q + 2 * G + 1, XV + G, srd("X"), sX + q))
                I("buffer_load_dword v6, v%d, %s, s93 offen sc1" % (PV, srd("WS")))
            elif p_ == "skip": pass
            else: issue_group(*p_)
    assert not pend
    if timing: stamp(58)
    P.vm = []; P.lgkm = []
    def lofs(tt, G): return 16384 * (tt >> 1) + 2048 * (tt & 1) + 1024 * G
    for tt in range(8):
        for G in range(2): I("ds_write_b128 v%d, %s offset:%d" % (LA, r4(A2 + 8 * tt + 4 * G, "a"), lofs(tt, G)))
    I("s_waitcnt lgkmcnt(0)"); I("s_barrier")
    I("s_cmp_lg_u32 s%d, 0" % sRD); I("s_cbranch_scc1 L_noarr")
    I("buffer_atomic_add v7, v4, %s, s%d offen sc0" % (srd("DBG"), sCW))
    P.label("L_noarr")
    if timing: stamp(59)
    def rnd2(a_):
        I("v_cvt_pk_bf16_f32 v%d, v%d, v%d" % (TT, a_, a_ + 1)); I("v_lshlrev_b32 v%d, 16, v%d" % (a_, TT)); I("v_and_b32 v%d, s%d, v%d" % (a_ + 1, sMASK, TT))
    for q in range(2):
        for wv in range(4):
            for G in range(2): I("ds_read_b128 %s, v%d offset:%d" % (r4(AC + 32 * q + 8 * wv + 4 * G), TQ, 32768 * q + 4096 * wv + 1024 * G))
        if q == 0: I("s_waitcnt lgkmcnt(0)")
    for q in range(2):
        if q == 1: I("s_waitcnt lgkmcnt(0)")
        b_ = AC + 32 * q
        for wv in range(1, 4):
            for e in range(8): I("v_add_f32 v%d, v%d, v%d" % (b_ + e, b_ + e, b_ + 8 * wv + e))
        for j in range(4):
            f_ = b_ + 2 * j
            rnd2(f_)
            for e in range(2): I("v_mul_f32 v%d, 0x%x, v%d" % (TT + 1 + e, f2u(-LOG2E), f_ + e))
            for e in range(2): I("v_exp_f32 v%d, v%d" % (TT + 1 + e, TT + 1 + e))
            for e in range(2): I("v_add_f32 v%d, 1.0, v%d" % (TT + 1 + e, TT + 1 + e))
            for e in range(2): I("v_rcp_f32 v%d, v%d" % (TT + 1 + e, TT + 1 + e))
            for e in range(2): I("v_mul_f32 v%d, v%d, v%d" % (f_ + e, f_ + e, TT + 1 + e))
            rnd2(f_)
    if timing: stamp(35)
    if test_fail: I("s_cmp_eq_u32 s%d, 1" % sALL); I("s_cbranch_scc1 L_round"); I("s_cmp_eq_u32 s%d, %d" % (sSH, test_fail)); I("s_cbranch_scc1 L_giveup")
    P.label("L_round")
    I("s_waitcnt vmcnt(0)")
    call("L_sumpass")
    I("s_cmp_eq_u32 s%d, 0" % sPE); I("s_cbranch_scc1 L_last")
    ready(None); call("L_loadpass")
    I("buffer_load_dword v6, v%d, %s, s93 offen sc1" % (PV, srd("WS")))
    I("s_sub_u32 s%d, s%d, 1" % (sSP, sSP)); I("s_cmp_lg_u32 s%d, 0" % sSP); I("s_cbranch_scc1 L_round")
    P.label("L_giveup")
    I("v_mov_b32 v%d, 0x100" % TT); I("buffer_atomic_add v%d, v%d, %s, s%d offen sc0" % (TT, AVW, srd("DBG"), sCW)); I("s_waitcnt vmcnt(0)")
    I("v_readfirstlane_b32 s82, v%d" % TT); I("s_nop 0"); I("s_and_b32 s82, s82, 31"); I("s_cmp_lg_u32 s82, 16"); I("s_cbranch_scc1 L_sdone")
    I("s_mov_b32 s%d, 1" % sALL); I("s_mov_b32 s%d, 100" % sSP); I("s_branch L_round")
    P.label("L_last")
    I("s_nop 5")
    for q in range(2):
        for j in range(4):
            f_ = AC + 32 * q + 2 * j; s_ = SS + 8 * q + 2 * j; x_ = XR + 4 * q + j
            rnd2(s_)
            for e in range(2): I("v_mul_f32 v%d, v%d, v%d" % (s_ + e, s_ + e, f_ + e))
            rnd2(s_)
            I("v_lshlrev_b32 v%d, 16, v%d" % (TT + 1, x_)); I("v_and_b32 v%d, s%d, v%d" % (TT + 2, sMASK, x_))
            for e in range(2): I("v_add_f32 v%d, v%d, v%d" % (s_ + e, s_ + e, TT + 1 + e))
            I("v_cvt_pk_bf16_f32 v%d, v%d, v%d" % (x_, s_, s_ + 1))
            if j % 2 == 1: I("buffer_store_dwordx2 v[%d:%d], v%d, %s, s%d offen" % (x_ - 1, x_, XV + (j >> 1), srd("OUT"), sX + q))
    P.label("L_sdone")
    I("s_cmp_eq_u32 s%d, 0" % sRD); I("s_cbranch_scc1 L_done")
    I("s_add_u32 s%d, s%d, 1" % (sSH, sSH)); I("s_cmp_lt_u32 s%d, 16" % sSH); I("s_cbranch_scc1 L_cold"); I("s_branch L_fin")
    P.label("L_loadpass")
    for u in range(2):
        I("s_bfe_u32 s82, s14, 0x%x" % (0x100000 + 16 * u)); I("s_bcnt1_i32_b32 s%d, s82" % (sM1 + u))
        for k in range(16):
            I("s_cbranch_scc0 L_lp%d" % u)
            I("s_ff1_i32_b32 s84, s82"); I("s_lshl_b32 s85, s84, 10"); I("s_add_u32 s85, s85, s%d" % (sB + u)); I("s_bitset0_b32 s82, s84")
            I("buffer_load_dwordx4 %s, v%d, %s, s85 offen sc1" % (slot(16 * u + k), VL16, srd("WS")))
            I("s_cmp_lg_u32 s82, 0")
        P.label("L_lp%d" % u)
    I("s_setpc_b64 s[88:89]")
    P.label("L_sumpass")
    for u in range(2):
        for k in range(16):
            I("s_cmp_le_u32 s%d, %d" % (sM1 + u, k)); I("s_cbranch_scc1 L_sp%d" % u)
            for hi in range(2):
                d = r4(SS + 8 * u + 4 * hi); I("%s %s, %s, %s, %s" % (MF, d, r4(SEL + (0 if hi else 2)), slot(16 * u + k), d))
        P.label("L_sp%d" % u)
        I("s_mov_b32 s%d, 0" % (sM1 + u))
    I("s_setpc_b64 s[88:89]")
    P.label("L_done")
    I("s_cmp_lg_u32 s%d, 0" % sW); I("s_cbranch_scc1 L_meet")
    I("s_waitcnt vmcnt(0)"); I("v_readfirstlane_b32 s82, v7"); I("s_nop 1"); I("v_mov_b32 v6, s82"); I("ds_write_b32 v5, v6 offset:128"); I("s_waitcnt lgkmcnt(0)")
    P.label("L_meet")
    I("s_barrier")
    I("ds_read_b32 v7, v5 offset:128"); I("s_waitcnt lgkmcnt(0)"); I("v_readfirstlane_b32 s82, v7"); I("s_nop 0")
    I("s_and_b32 s84, s82, 31"); I("s_cmp_lg_u32 s84, 15"); I("s_cbranch_scc1 L_fin")
    I("s_lshr_b32 s82, s82, 8"); I("s_cmp_lg_u32 s%d, 16" % sFC); I("s_cselect_b32 s84, 1, 0"); I("s_or_b32 s82, s82, s84")
    I("s_cmp_eq_u32 s82, 0"); I("s_cbranch_scc1 L_fin")
    I("s_mov_b32 s%d, 1" % sRD); I("s_mov_b32 s%d, 1" % sALL); I("s_mov_b32 s%d, 0" % sSH)
    P.label("L_cold")
    I("s_waitcnt vmcnt(0) lgkmcnt(0)"); I("s_barrier")
    for x in share_s() + share_v():
        for y in x.split("\n"): I(y.strip())
    for j in range(32):
        I(bload(j))
        if j & 3 == 3: I("s_add_u32 s18, s18, 4096")
    I("s_waitcnt vmcnt(0)")
    P.vm = []
    for i in range(10):
        for g_ in w2dma(i): issue_group(g_, "x")
    I("s_waitcnt vmcnt(0) lgkmcnt(0)"); P.vm = []
    I("s_barrier"); I("s_branch L_roles")
    P.label("L_fin")
    if timing:
        I("s_waitcnt vmcnt(0)"); P.vm = []
        stamp(34); rstamp(43); I("v_writelane_b32 v0, s100, 40")
        I("s_lshl_b32 s94, s2, 2"); I("s_add_u32 s94, s94, s%d" % sW); I("s_lshl_b32 s94, s94, 10"); I("s_add_u32 s94, s94, 0x%x" % WS_T)
        I("buffer_store_dword v0, v%d, %s, s94 offen" % (VL16, srd("WS")))
    P.label("L_end"); I("s_endpgm")
    P.label("L_code_end")
    for n in rare_sites:
        P.label("L_rare_%d" % n); I("s_mov_b32 s%d, %d" % (sRET, n)); I("s_branch L_rp_%d" % (n % 2))
    for par in range(2):
        P.label("L_rp_%d" % par)
        I("s_nop 15")
        s = S[par]; s2 = S[1 - par]; lo = LB[par]; ln = LB[1 - par]; pk = PK[par]
        for G in range(2):
            e = [s + 8 * kt + 4 * G + r for kt in range(2) for r in range(4)]
            e2 = [s2 + 8 * kt + 4 * G + r for kt in range(2) for r in range(4)]
            m = MX + G
            I("v_log_f32 v%d, v%d" % (m, lo + G))
            I("v_max3_f32 v%d, v%d, v%d, v%d" % (T0, e[0], e[1], e[2])); I("v_max3_f32 v%d, v%d, v%d, v%d" % (T0, T0, e[3], e[4]))
            I("v_max3_f32 v%d, v%d, v%d, v%d" % (T0, T0, e[5], e[6])); I("v_max3_f32 v%d, v%d, v%d, v%d" % (m, m, T0, e[7]))
            for k, t in xlane("v_max_f32", m, T0): I(t)
            I("v_max_f32 v%d, 0, v%d" % (m, m))
            I("v_exp_f32 v%d, -v%d" % (TC, m))
            for x in e + e2 + [NEGM + 4 * G + r for r in range(4)]: I("v_sub_f32 v%d, v%d, v%d" % (x, x, m))
            I("v_mul_f32 v%d, v%d, v%d" % (lo + G, lo + G, TC))
            for t in range(16):
                for r in range(4): I("v_accvgpr_read_b32 v%d, a%d" % (PT + r, O + 8 * t + 4 * G + r))
                for r in range(4): I("v_mul_f32 v%d, v%d, v%d" % (PT + r, PT + r, TC))
                for r in range(4): I("v_accvgpr_write_b32 a%d, v%d" % (O + 8 * t + 4 * G + r, PT + r))
            for j, x in enumerate(e): I("v_exp_f32 v%d, v%d" % (PT + j, x))
            I("v_add_f32 v%d, v%d, v%d" % (ln + G, lo + G, PT))
            for j in range(1, 8): I("v_add_f32 v%d, v%d, v%d" % (ln + G, ln + G, PT + j))
            for j in range(4): I("v_cvt_pk_bf16_f32 v%d, v%d, v%d" % (pk + 4 * G + j, PT + 2 * j, PT + 2 * j + 1))
        I("s_nop 3")
        mine = [n for n in rare_sites if n % 2 == par]
        for n in mine[:-1]:
            I("s_cmp_eq_u32 s%d, %d" % (sRET, n)); I("s_cbranch_scc1 L_back_%d" % n)
        I("s_branch L_back_%d" % mine[-1])
    rep = []
    P.lines = fix_hazards(P.lines, rep)
    if verbose:
        print("K1: MFMAs(virtual) %d, nops inserted %d (total ws %d) pub %s" % (N, len(rep), sum(r[1] for r in rep), pub))
        print("penalty per step:", [G_.total_pen(sb[t], sb[t + 1]) for t in range(len(sb) - 1)])
    for p in check_text(P.text()): print(p)
    return P.text(), rep, G_, sb

def head():
    import os
    p = "cdna_kernels/%s.s.ref" % NAME
    return open(p).read().split("; Override launch")[0] if os.path.exists(p) else ""
def build(**kw):
    k1, rep, G_, sb = gen_k1(**kw)
    s = head()
    s += "; @launch grid=(256,1,1) block=(256,1,1) lds=163840\n"
    s += '.amdgcn_target "amdgcn-amd-amdhsa--gfx950"\n.text\n'
    s += ".globl %s\n.p2align 8\n.type %s,@function\n%s:\n%s" % (K1, K1, K1, k1)
    s += '''.section .rodata,"a"
.p2align 6
.amdhsa_kernel %s
  .amdhsa_next_free_vgpr 512
  .amdhsa_next_free_sgpr 102
  .amdhsa_accum_offset 256
  .amdhsa_group_segment_fixed_size 0
  .amdhsa_kernarg_size 96
  .amdhsa_user_sgpr_count 2
  .amdhsa_user_sgpr_kernarg_segment_ptr 1
  .amdhsa_system_sgpr_workgroup_id_x 1
.end_amdhsa_kernel
''' % K1
    return s, rep, G_, sb

if __name__ == "__main__":
    import json
    if len(sys.argv) > 1:
        for name, kw in json.loads(sys.argv[1]).items():
            open(name, "w").write(build(verbose=False, **kw)[0])
    else:
        open("k28_a.s", "w").write(build()[0])
        open("k28_fail.s", "w").write(build(test_fail=5, verbose=False)[0])
        open("k28_nof.s", "w").write(build(test_nof=0x0410, spin=40, verbose=False)[0])
        open("k28_at.s", "w").write(build(timing=True, verbose=False)[0])
```

```python
import sys, struct
from gen import *
NAME = "recurrent_scan__mha_block_cached__glu_gated_swiglu__prompt"
K1 = NAME + "_kernel"
LOG2E = 1.4426950408889634
def f2u(x): return struct.unpack("<I", struct.pack("<f", x))[0]
def r4(x, p="v"): return "%s[%d:%d]" % (p, x, x + 3)
WS_S = 0x0; WS_F = 0x2000000; WS_FL = 0x4000000; WS_G = 0x4100000; WS_T = 0xa000000
BIG = 0x40000000
MF = "v_mfma_f32_16x16x32_bf16"

def gen_k1(L=10, LW=9, estep=3, e0=8, timing=False, verbose=True, bar_off=25, dma_step=6, spin=3000, test_fail=0, test_nof=0, pub_lag=50, gray=1, r1mask=0x00ffffff, poll2=16, r2delay=12, r1_at=4, sum_ks=8, lpf=3, chain=6, emu=0):
    P = Prog(); I = P.ins
    O = 0; GU = 128; FRA = 192; FRF = 128
    S = [16, 32]; NEGM = 48; LB = [56, 58]; MX = 60; TC = 62; T0 = 63
    WA = 48; FRV = 64; PT = 64; PK = [80, 88]
    KA = 96; VA = 100; KD = 108; VD = 112; TA = 116; TD = 124
    XC = lambda s, G: 128 + 8 * (13 - s) + 4 * G
    QF = lambda G, k: 128 + 32 * G + 4 * k
    H = lambda k, G: XC(k, G)
    OF = lambda k, G: 128 + 8 * k + 4 * G
    VAL = 240; WD = 248; QD = 252
    PFV = 244; PFD = 245; PFW = 246; PF2 = 243
    FA = [192, 200]; AVP = 247; AVW = 54
    ST = 16
    VL16 = 1; MB = 2; RSQ = 2; DM = 4; RSN = 4; CI = 6; RL = 60
    TMP = 8
    SRD = dict(X=28, K=32, V=36, WQ=40, WO=44, W1=48, W3=52, W2=56, WS=60, DBG=20, OUT=24, PF=12)
    def srd(n): return "s[%d:%d]" % (SRD[n], SRD[n] + 3)
    sH, sQB, sW, sM0, sSO, sLOOP, sTH, sRET, sCW, sFO, sSOe, sFC = 64, 65, 66, 67, 68, 70, 71, 72, 73, 74, 75, 76
    sW13, sWQ, sW2, sWO, sK, sV, sT0, sT1, sMASK, sAT, sFLW = 78, 79, 80, 81, 82, 83, 84, 85, 86, 87, 3
    sDG = 4; sPFO = 16
    I("s_cmp_ge_u32 s2, 256"); I("s_cbranch_scc1 L_end")
    I("s_load_dwordx16 s[4:19], s[0:1], 0"); I("s_load_dwordx8 s[20:27], s[0:1], 64")
    if timing: I("s_memtime s[98:99]"); I("s_memrealtime s[100:101]")
    I("s_and_b32 s%d, s2, 7" % sH); I("s_lshr_b32 s%d, s2, 3" % sQB)
    I("s_lshr_b32 s%d, s%d, 4" % (sT0, sQB)); I("s_lshl_b32 s%d, s%d, 1" % (sH, sH)); I("s_add_u32 s%d, s%d, s%d" % (sH, sH, sT0))
    I("s_and_b32 s%d, s%d, 15" % (sQB, sQB))
    I("v_lshrrev_b32 v8, 6, v0"); I("s_nop 0"); I("v_readfirstlane_b32 s%d, v8" % sW)
    I("v_and_b32 v9, 63, v0"); I("v_and_b32 v10, 15, v0"); I("v_bfe_u32 v11, v0, 4, 2")
    I("v_lshlrev_b32 v%d, 4, v9" % VL16)
    I("s_lshl_b32 s%d, s%d, 2" % (sT0, sQB)); I("s_add_u32 s%d, s%d, s%d" % (sT0, sT0, sW))
    I("s_getpc_b64 s[88:89]"); P.label("L_pc")
    I("s_and_b32 s%d, s%d, 15" % (sT1, sT0)); I("s_lshl_b32 s%d, s%d, 13" % (sT1, sT1))
    I("v_lshlrev_b32 v14, 7, v9"); I("v_add_u32 v14, s%d, v14" % sT1); I("v_min_u32 v14, L_code_end-L_pc-4, v14")
    P.vmem("global_load_dword v44, v14, s[88:89]", "cpf")
    I("s_mul_i32 s%d, s%d, %d" % (sSO, sQB, 128 * 896))
    I("s_lshl_b32 s%d, s%d, 5" % (sT1, sW)); I("s_lshl_b32 s%d, s%d, 12" % (sM0, sW))
    I("v_lshrrev_b32 v14, 3, v9"); I("v_add_u32 v14, s%d, v14" % sT1); I("v_mul_u32_u24 v14, 896, v14")
    I("v_bfe_u32 v15, v0, 1, 2"); I("v_xor_b32 v15, v15, v11"); I("v_lshl_add_u32 v14, v15, 5, v14"); I("v_and_b32 v15, 1, v0"); I("v_lshl_add_u32 v14, v15, 4, v14")
    for j in range(4): I("v_add_u32 v%d, %d, v14" % (TD + j, j * (8 * 896 - 1024)))
    Q_ = []; J = Q_.append
    J("s_mul_i32 s%d, s%d, 224" % (sW13, sH))
    J("s_lshr_b32 s%d, s%d, 1" % (sK, sW)); J("s_lshl_b32 s%d, s%d, 5" % (sK, sK)); J("s_and_b32 s%d, s%d, 1" % (sV, sW)); J("s_lshl_b32 s%d, s%d, 2" % (sV, sV))
    J("s_add_u32 s%d, s%d, s%d" % (sK, sK, sV))
    J("v_add_u32 v12, s%d, v11" % sK); J("v_mul_u32_u24 v12, 3584, v12")
    J("v_and_b32 v13, 1, v10"); J("v_lshl_add_u32 v12, v13, 4, v12"); J("v_lshrrev_b32 v13, 1, v10")
    for j in range(4):
        J("v_add_u32 v14, %d, v11" % (4 * (j & 1))); J("v_xor_b32 v14, v14, v13"); J("v_min_u32 v14, 6, v14"); J("v_lshl_add_u32 v14, v14, 5, v12")
        J("v_add_u32 v%d, %d, v14" % (WD + j, j * (8 * 3584 - 1024)))
    NOK = len(Q_)
    def mk(n, lo, size, add=None, f=None):
        f = f or J; d = SRD[n]
        if add is None: f("s_mov_b32 s%d, s%d" % (d, lo)); f("s_mov_b32 s%d, s%d" % (d + 1, lo + 1))
        else: f("s_add_u32 s%d, s%d, s%d\n    s_addc_u32 s%d, s%d, 0" % (d, lo, add, d + 1, lo + 1))
        f("s_mov_b32 s%d, 0x%x" % (d + 2, size)); f("s_mov_b32 s%d, 0x20000" % (d + 3))
    mk("W1", 16, 448 * 3584); mk("W3", 18, 448 * 3584)
    J("s_lshl_b32 s%d, s%d, 20" % (sK, sH))
    mk("K", 6, 0x100000, sK); mk("V", 8, 0x100000, sK)
    mk("WQ", 10, 448 * 8192); mk("WO", 12, 4096 * 896); mk("W2", 20, 1792 * 896); mk("WS", 26, 0x10000000)
    J("s_mov_b32 s20, s24"); J("s_mov_b32 s21, s25"); J("s_mov_b32 s24, s22"); J("s_mov_b32 s25, s23")
    J("s_mov_b32 s22, 256"); J("s_mov_b32 s23, 0x20000"); J("s_mov_b32 s26, %d" % (2048 * 896)); J("s_mov_b32 s27, 0x20000")
    J("s_lshl_b32 s%d, s%d, 4" % (sCW, sQB)); J("s_add_u32 s%d, s%d, 4096" % (sAT, sCW))
    J("s_lshl_b32 s%d, s%d, 5" % (sFLW, sT0)); J("s_add_u32 s%d, s%d, s%d" % (sFLW, sFLW, sH)); J("s_lshl_b32 s%d, s%d, 2" % (sFLW, sFLW)); J("s_add_u32 s%d, s%d, 0x%x" % (sFLW, sFLW, WS_FL))
    J("s_and_b32 s93, s%d, 0xffffff80" % sFLW)
    J("v_mov_b32 v47, 0x7f000000"); J("v_cmp_eq_u32 vcc, 0, v9"); J("s_nop 0"); J("v_cndmask_b32 v47, v47, 0, vcc")
    J("v_mov_b32 v45, 0x7f000000"); J("v_cmp_eq_u32 vcc, 0, v0"); J("v_mov_b32 v46, 0"); J("v_cndmask_b32 v45, v45, 0, vcc")
    J("s_lshl_b32 s%d, s%d, 9" % (sWQ, sH)); J("s_mul_i32 s%d, s%d, %d" % (sWO, sH, 256 * 896))
    J("s_mul_i32 s%d, s%d, %d" % (sFO, sT0, 28 * 16)); J("s_add_u32 s%d, s%d, s%d" % (sFO, sFO, sH)); J("s_lshl_b32 s%d, s%d, 10" % (sFO, sFO))
    J("s_add_u32 s%d, s%d, 0x%x" % (sSOe, sFO, WS_S))
    J("s_lshl_b32 s%d, s%d, 4" % (sFO, sT0)); J("s_add_u32 s%d, s%d, s%d" % (sFO, sFO, sH)); J("s_lshl_b32 s%d, s%d, 13" % (sFO, sFO)); J("s_add_u32 s%d, s%d, 0x%x" % (sFO, sFO, WS_F))
    J("s_add_u32 s91, s%d, 0x%x" % (sWO, 13 * 0x400000)); J("s_and_b32 s90, s%d, 3" % sH); J("s_lshl_b32 s90, s90, 8"); J("s_add_u32 s90, s90, 0x%x" % (12 * 0x400000))
    J("s_mov_b32 s%d, 0x53800000" % sTH); J("s_mov_b32 s%d, 0xffff0000" % sMASK)
    for r in range(4):
        m = (1 << r) | (1 << (20 + r)) | (1 << (40 + r)) | (1 << (60 + r))
        J("s_mov_b32 s%d, 0x%x" % (sDG + 2 * r, m & 0xffffffff)); J("s_mov_b32 s%d, 0x%x" % (sDG + 2 * r + 1, m >> 32))
    for r in range(4): J("v_mov_b32 v%d, 0x3f803f80" % (ST + 16 + r))
    J("v_and_b32 v12, 31, v0"); J("v_bfe_u32 v13, v0, 5, 1")
    J("v_lshlrev_b32 v14, 9, v10")
    for s in range(4):
        J("v_add_u32 v15, %d, v11" % (4 * s)); J("v_xor_b32 v15, v15, v10"); J("v_lshl_add_u32 v%d, v15, 4, v14" % (KA + s))
    J("v_bfe_u32 v4, v0, 2, 4"); J("v_and_b32 v5, 3, v0"); J("v_and_b32 v6, 7, v4")
    J("v_lshlrev_b32 v14, 8, v4"); J("v_lshl_add_u32 v14, v5, 3, v14")
    for t in range(7):
        J("v_xor_b32 v15, %d, v6" % t); J("v_lshl_add_u32 v%d, v15, 5, v14" % (WA + t)); J("v_add_u32 v%d, 0x10000, v%d" % (WA + 7 + t, WA + t))
    J("v_lshlrev_b32 v14, 9, v4"); J("v_lshl_add_u32 v14, v5, 3, v14")
    for b in range(8):
        J("v_xor_b32 v15, %d, v6" % b); J("v_lshl_add_u32 v%d, v15, 5, v14" % (VAL + b)); J("v_add_u32 v%d, 0x10000, v%d" % (VA + b, VAL + b))
    J("v_lshlrev_b32 v14, 7, v4"); J("v_lshl_add_u32 v14, v5, 3, v14"); J("v_bfe_u32 v7, v4, 1, 2")
    for t in range(4):
        J("v_xor_b32 v15, %d, v7" % t); J("v_lshl_add_u32 v%d, v15, 5, v14" % (TA + t)); J("v_add_u32 v%d, 0x10000, v%d" % (TA + 4 + t, TA + t))
    J("s_and_b32 s%d, s%d, 1" % (sT1, sW)); J("s_lshl_b32 s%d, s%d, 3" % (sT1, sT1))
    J("v_lshlrev_b32 v14, 9, v13"); J("v_add_u32 v14, s%d, v14" % sM0)
    for j in range(4):
        J("v_add_u32 v15, %d, v13" % (2 * j)); J("v_add_u32 v15, s%d, v15" % sT1); J("v_xor_b32 v15, v15, v12"); J("v_lshl_add_u32 v%d, v15, 4, v14" % (KD + j))
    J("s_lshl_b32 s%d, s%d, 1" % (sT1, sT1)); J("s_lshr_b32 s%d, s%d, 1" % (sK, sW)); J("s_lshl_b32 s%d, s%d, 2" % (sK, sK)); J("s_add_u32 s%d, s%d, s%d" % (sT1, sT1, sK))
    J("v_add_u32 v7, s%d, v13" % sT1); J("v_lshlrev_b32 v7, 13, v7")
    for j in range(4):
        J("v_add_u32 v15, %d, v13" % (2 * j)); J("v_lshlrev_b32 v15, 1, v15"); J("v_xor_b32 v15, v15, v12")
        J("v_lshl_add_u32 v%d, v15, 4, v14" % (VD + j))
        J("v_lshl_add_u32 v15, v15, 4, v7"); J("v_add_u32 v%d, %d, v15" % (QD + j, (8 * (j >> 1) + 2 * (j & 1)) * 8192 - 1024 * j))
    J("s_mov_b32 s%d, 0" % sK); J("s_mov_b32 s%d, 0" % sV)
    J("v_lshrrev_b32 v14, 3, v10"); J("v_lshlrev_b32 v14, 10, v14"); J("v_and_b32 v15, 7, v10"); J("v_lshl_add_u32 v14, v15, 7, v14"); J("v_add_u32 v14, s%d, v14" % sM0)
    J("v_bfe_u32 v15, v10, 1, 2"); J("v_lshlrev_b32 v15, 1, v15"); J("v_xor_b32 v15, v15, v11")
    J("v_lshl_add_u32 v2, v15, 4, v14"); J("v_xor_b32 v3, 64, v2")
    for k in range(2): J("v_add_u32 v%d, 0x10000, v%d" % (4 + k, 2 + k)); J("v_add_u32 v%d, 0x20000, v%d" % (6 + k, 2 + k))
    J("s_mul_i32 s%d, s%d, 28" % (sT1, sT0)); J("v_add_u32 v14, s%d, v9" % sT1); J("v_mov_b32 v13, 0x7f000000"); J("v_cmp_gt_u32 vcc, 28, v9")
    J("v_lshlrev_b32 v42, 7, v14"); J("v_cndmask_b32 v42, v13, v42, vcc")
    J("v_lshrrev_b32 v14, 1, v9"); J("v_add_u32 v14, s%d, v14" % sT1); J("v_mul_u32_u24 v14, 896, v14"); J("v_and_b32 v15, 1, v9"); J("v_lshl_add_u32 v14, v15, 7, v14"); J("v_cmp_gt_u32 vcc, 56, v9"); J("s_nop 0"); J("v_cndmask_b32 v41, v13, v14, vcc")
    J("s_and_b32 s%d, s%d, 1" % (sT1, sW)); J("s_lshl_b32 s%d, s%d, 13" % (sT1, sT1)); J("v_lshlrev_b32 v43, 7, v9"); J("v_add_u32 v43, s%d, v43" % sT1)
    J("s_cmp_lt_u32 s%d, 2\n    s_cselect_b32 s12, s%d, s%d\n    s_cselect_b32 s13, s%d, s%d" % (sW, SRD["K"], SRD["V"], SRD["K"] + 1, SRD["V"] + 1)); J("s_mov_b32 s14, 0x100000"); J("s_mov_b32 s15, 0x20000")
    J("s_and_b32 s16, s%d, 3" % sQB); J("s_lshl_b32 s16, s16, 14"); J("s_lshr_b32 s17, s%d, 2" % sQB)
    J("s_sub_u32 s17, 4, s17"); J("s_lshl_b32 s17, s17, 30"); J("s_add_u32 s16, s16, s17")
    def sst(k):
        if timing: I("s_memtime s[94:95]"); I("s_waitcnt lgkmcnt(0)"); I("s_sub_u32 s94, s94, s98"); I("v_mov_b32 v%d, s94" % (36 + k))
    def drain(n):
        for _ in range(min(n, len(Q_))):
            for x in Q_.pop(0).split("\n"): I(x.strip())
    drain(NOK)
    I("s_waitcnt lgkmcnt(0)")
    sst(0)
    mk("X", 4, 2048 * 896, f=I)
    XS = [0x4000, 0x8000, 0xc000, 0x14000, 0x18000, 0x1c000, 0x20000]
    per = (len(Q_) + 27) // 28
    for j in range(7):
        I("s_add_u32 m0, s%d, %d" % (sM0, XS[j]))
        if j: I("s_add_u32 s%d, s%d, 128" % (sSO, sSO))
        else: I("s_nop 0")
        for i in range(4):
            P.vmem("buffer_load_dwordx4 v%d, %s, s%d offen offset:%d lds" % (TD + i, srd("X"), sSO, 1024 * i), ("x", j))
            drain(per)
    drain(10 ** 6)
    NV = 12
    TL = 9
    tiles = []
    for t in range(7): tiles.append([("W1", WD, (sW13, t * 64 * 3584)), ("W3", WD, (sW13, t * 64 * 3584))])
    for j in range(7): tiles.append([("WQ", QD, (sWQ, 64 * j * 8192)), ("WQ", QD, (sWQ, (64 * j + 32) * 8192))])
    tiles.append([("K", KD, "inc"), None])
    for n in range(NV): tiles.append([("K", KD, "inc"), ("V", VD, "inc")])
    for j in range(7): tiles.append([("WO", TD, (sWO, 128 * j)), ("WO", TD, (sWO, 128 * 896 + 128 * j))])
    NT = len(tiles); AT = 15
    def dma_ops(tau):
        groups = []
        for hf, half in enumerate(tiles[tau]):
            if half is None: continue
            sn, vb, so = half
            m0 = "s_add_u32 m0, s%d, %d" % (sM0, 65536 * hf + 16384 * (tau % 4))
            if so == "inc": sreg = sK if sn == "K" else sV; pre = [m0]; post = ["s_add_u32 s%d, s%d, 16384" % (sreg, sreg)]
            else: sreg = sSO + hf; pre = [m0, "s_add_u32 s%d, s%d, %d" % (sreg, so[0], so[1])]; post = []
            for j in range(4):
                groups.append((pre if j == 0 else [], "buffer_load_dwordx4 v%d, %s, s%d offen offset:%d lds" % (vb + j, srd(sn), sreg, 1024 * j), post if j == 3 else []))
        return groups
    def issue_group(g, tag):
        pre, d, post = g
        for x in pre: I(x)
        if pre: I("s_nop 0")
        P.vmem(d, tag)
        for x in post: I(x)
    t0 = dma_ops(0)
    def xread(s):
        j = s >> 1; base = XS[j]
        P.wait(vm=[("x", j)])
        for G in range(2):
            P.ds("ds_read_b128 %s, v%d offset:%d" % (r4(XC(s, G)), 2 + (s & 1) + 2 * (base >> 16), (base & 0xffff) + 2048 * G), ("xf", s))
    sst(1)
    for g in t0[:4]: issue_group(g, ("T", 0))
    for s in range(4): xread(s)
    for g in t0[4:]: issue_group(g, ("T", 0))
    sst(2)
    for s in range(14):
        if s + 4 < 14: xread(s + 4)
        P.wait(lg=[("xf", s)])
        for G in range(2): I("%s %s, %s, %s, %s" % (MF, r4(ST + 4 * G), r4(ST + 16), r4(XC(s, G)), "0" if s == 0 else r4(ST + 4 * G)))
    sst(3)
    def xlane(op, reg, tmp):
        ops = []
        for sw in ("v_permlane32_swap_b32", "v_permlane16_swap_b32"):
            ops += [("V", "v_mov_b32 v%d, v%d" % (tmp, reg)), ("T", "%s v%d, v%d" % (sw, reg, tmp)), ("V", "%s v%d, v%d, v%d" % (op, reg, reg, tmp))]
        return ops
    def center_ops(s):
        ops = []
        regs = [(G, XC(s, G) + r) for G in range(2) for r in range(4)]
        for i, (G, x) in enumerate(regs):
            lo = TMP + 2 * (i % 3); hi = lo + 1
            ops += [("V", "v_lshlrev_b32 v%d, 16, v%d" % (lo, x)), ("V", "v_and_b32 v%d, s%d, v%d" % (hi, sMASK, x)),
                    ("V", "v_sub_f32 v%d, v%d, v%d" % (lo, lo, MB + G)), ("V", "v_sub_f32 v%d, v%d, v%d" % (hi, hi, MB + G)),
                    ("V", "v_cvt_pk_bf16_f32 v%d, v%d, v%d" % (x, lo, hi))]
        return ops
    pre_ops = []
    for G in range(2):
        a = TMP + G
        pre_ops += ["v_mul_f32 v%d, 0x%x, v%d" % (a, f2u(1.0 / 448), ST + 4 * G), "v_cvt_pk_bf16_f32 v%d, v%d, v%d" % (MB + G, a, a), "v_lshlrev_b32 v%d, 16, v%d" % (MB + G, MB + G),
                    "v_sub_f32 v%d, v%d, v%d" % (DM + G, a, MB + G)]
    pre_ops += [t for k, t in center_ops(0)]
    for i, g in enumerate(dma_ops(1)):
        issue_group(g, ("T", 1))
        for x in pre_ops[6 * i:6 * i + 6]: I(x)
    P.wait(vm=[("T", 0)])
    I("s_barrier")
    if timing:
        for k in range(4): I("v_readfirstlane_b32 s94, v%d" % (36 + k)); I("s_nop 3"); I("v_writelane_b32 v0, s94, %d" % (50 + k))

    fr = []; sb = []
    def tr(areg, off, d2): return [("tr0", areg, off), ("tr1", areg, off + d2)]
    def add(reads, mf, ring, **kw): fr.append(dict(reads=reads, mf=mf, ring=ring, **kw))
    mark = {}
    for tau in range(7):
        sb.append(2 * len(fr))
        for ks in range(2):
            s = 2 * tau + ks
            mark[("F1", s)] = 2 * len(fr)
            for t in range(7):
                for kind in range(2):
                    ms = []
                    for G in range(2):
                        a = r4(GU + ((kind * 7 + t) * 2 + G) * 4, "a")
                        ms.append((a, r4(XC(s, G)), "0" if s == 0 else a, None))
                    add(tr(WA + 7 * kind + t, 8192 * ks + 16384 * (tau % 4), 4096), ms, "v")
                if t == 3:
                    add([], [(r4(ST + 8 + 4 * G), r4(XC(s, G)), "0" if s == 0 else r4(ST + 8 + 4 * G), r4(XC(s, G))) for G in range(2)], None)
    for j in range(7):
        tau = 7 + j; sb.append(2 * len(fr))
        order = [(hf, t) for hf in range(2) for t in range(16)] if (j < 6 and not (chain & 4 and j > 1)) else [(hf, t) for t in range(16) for hf in range(2)]
        for hf, t in order:
            s = 2 * j + hf
            ms = []
            for G in range(2):
                a = r4(O + 8 * t + 4 * G, "a")
                ms.append((a, r4(XC(s, G)), "0" if s == 0 else a, None))
            add(tr((VA if hf else VAL) + (t & 7), 256 * (t >> 3) + 16384 * (tau % 4), 8192), ms, "v", cg=(("q", j, t) if (j > 1 and chain & 4) else None))
    outs = []
    def qk_block(n, tau):
        order = [(kt, s) for kt in range(2) for s in range(8)] if (n > 0 and gray < 2) else [(kt, s) for s in range(8) for kt in range(2)]
        for kt, s in order:
            ms = []
            for G in range(2):
                d = r4(S[n % 2] + 8 * kt + 4 * G)
                c = ("0" if n <= 1 else r4(NEGM + 4 * G)) if s == 0 else d
                ms.append((d, r4(QF(G, s)), c, None))
            if n == 0 and kt == 0: mark[("QK0", s)] = 2 * len(fr)
            add([("b128", KA + (s & 3), 256 * (s >> 2) + 8192 * kt + 16384 * (tau % 4))], ms, "f", cg=(("qk", n, kt) if (n > 0 and chain & 1) else None))
    def pv_block(n, tau):
        for t in range(16):
            ms = []
            for G in range(2):
                o = r4(O + 8 * t + 4 * G, "a")
                ms.append((o, r4(PK[n % 2] + 4 * G), "0" if n == 0 else o, None))
            if emu == -1: add([("b128", 201, 1024 * t + 16384 * (tau % 4))], ms, "a")
            else: add(tr(VA + (t & 7), 256 * (t >> 3) + 16384 * (tau % 4), 8192), ms, "a")
    sb.append(2 * len(fr)); qk_block(0, 14)
    pvs = {}; fsum_at = {}
    for n in range(NV):
        tau = AT + n; sb.append(2 * len(fr))
        if n < NV - 1: qk_block(n + 1, tau)
        pvs[n] = 2 * len(fr)
        pv_block(n, tau)
    OT = AT + NV
    for j in range(7):
        tau = OT + j; sb.append(2 * len(fr))
        order = [(tt, k) for k in range(8) for tt in range(4)] if j == 0 else [(tt, k) for tt in range(4) for k in range(8)]
        for tt, k in order:
            acc = 192 + 32 * (j & 1) + 8 * tt
            ms = [(r4(acc + 4 * G), r4(OF(k, G)), "0" if k == 0 else r4(acc + 4 * G), None) for G in range(2)]
            if j == 0 and tt == 0: mark[("O", k)] = 2 * len(fr)
            add(tr(TA + 4 * (k >> 2) + tt, 4096 * (k & 3) + 16384 * (tau % 4), 2048), ms, "a", cg=(("o", j, tt, k >> 2) if (j > 0 and chain & 2) else None))
            if k == 7: outs.append(("S", 2 * len(fr), acc, j))
    N = 2 * len(fr); sb.append(N)
    END = N + 40
    G_ = Gaps2(END)
    seq = []; i = 0
    while i < len(fr):
        cg = fr[i].get("cg"); j = i + 1
        while cg is not None and j < len(fr) and fr[j].get("cg") == cg: j += 1
        if j - i > 1:
            grp = list(range(i, j))
            seq += [(f_, 0) for f_ in grp] + [(f_, 1) for f_ in reversed(grp)]
            a_, b_ = fr[grp[0]]["mf"][1], fr[grp[-1]]["mf"][1]
            fr[grp[0]]["mf"][1] = (a_[0], a_[1], b_[2], a_[3]); fr[grp[-1]]["mf"][1] = (b_[0], b_[1], a_[2], b_[3])
        else:
            o_ = 1 if (gray and i % 2 == 1 and fr[i]["reads"]) else 0
            seq += [(i, o_), (i, 1 - o_)]
        i = j
    first = {}; last = {}
    for p_, (f_, k_) in enumerate(seq):
        first.setdefault(f_, p_); last[f_] = p_
    ws = set(first.values()) | set(range(0, N, 2))
    for p_ in sorted(ws): G_.put(p_, "S", ("waitslot", seq[p_][0]), force=True)
    barpos = {}
    for tau in range(NT):
        g = sb[tau + 1] - bar_off; barpos[tau] = g
        assert g % 2 == 1
        G_.put(g, "S", ("bar", tau), force=True); G_.put(g, "S", ("nil",), force=True)
    holes = set(); estart = {}
    for n in range(1, NV - 1):
        estart[n] = pvs[n - 1] + e0
        for e in range(16): holes.add(estart[n] + estep * e)
    cnt = {"v": 0, "a": 0, "f": 0}
    rl = []
    for i, f in enumerate(fr):
        if emu > 0 and f["ring"] in ("a", "f") and i % 2 == 1 and fr[i - 1]["ring"] == f["ring"] and sb[AT] <= 2 * i < sb[OT]:
            f["reads"] = []; f["fr"] = fr[i - 1]["fr"]; cnt[f["ring"]] += 1; last[i - 1] = last[i]
        if not f["reads"]: continue
        if f["ring"] == "v": r = FRV + 4 * (cnt["v"] % 8); p = "v"; lead = LW
        elif f["ring"] == "f": r = FRF + 4 * (cnt["f"] % 16); p = "a"; lead = L
        else: r = FRA + 4 * (cnt["a"] % 16); p = "a"; lead = L
        cnt[f["ring"]] += 1
        f["fr"] = r4(r, p)
        for q, (k, a, off) in enumerate(f["reads"]):
            assert off < 65536
            if k == "b128": txt = "ds_read_b128 %s[%d:%d], v%d offset:%d" % (p, r, r + 3, a, off)
            elif k == "tr0": txt = "ds_read_b64_tr_b16 %s[%d:%d], v%d offset:%d" % (p, r, r + 1, a, off)
            else: txt = "ds_read_b64_tr_b16 %s[%d:%d], v%d offset:%d" % (p, r + 2, r + 3, a, off)
            rl.append([first[i] - lead, txt, i])
    nxt = 10 ** 9
    for x in reversed(rl):
        g = min(x[0], nxt - 1)
        while g in holes: g -= 1
        x[0] = g; nxt = g
    lastuse = {}
    for g, txt, i in rl:
        g = max(g, 0)
        key = fr[i]["fr"]
        if key in lastuse and lastuse[key] != i: assert g > last[lastuse[key]], ("ring WAR", i, g, lastuse[key])
        lastuse[key] = i
        tau = max(t for t in range(NT) if sb[t] <= 2 * i)
        if tau > 0: assert g > barpos[tau - 1], ("read before barrier", i, g, tau, barpos[tau - 1])
        G_.put(g, "D", ("ds", txt, ("f", i)), force=True)
    if emu > 1:
        G_.put(sb[AT] + 1, "V", ("ins", "v_lshrrev_b32 v200, 1, v%d" % VL16), force=True); G_.put(sb[AT] + 2, "V", ("ins", "v_add_u32 v200, s%d, v200" % sM0), force=True); G_.put(sb[AT] + 3, "V", ("ins", "v_add_u32 v200, 0x20000, v200"), force=True)
        for n in range(1, NV - 1):
            g = sb[AT + n] + 4
            for q in range(4): g = G_.put(g, "D", ("ds", "ds_write_b64 v200, v[%d:%d] offset:%d" % (PK[n % 2] + 2 * q, PK[n % 2] + 2 * q + 1, 512 * q), ("pw", n, q)), limit=g + 4) + 3
            for q in range(4): g = G_.put(g, "D", ("ds", "ds_read_b64 v[%d:%d], v200 offset:%d" % (202 + 2 * q, 203 + 2 * q, 512 * q), ("pr", n, q)), limit=g + 4) + 2
            G_.put(g, "D", ("ds", "ds_read_b32 v210, v200 offset:2048", ("pf", n)), limit=g + 4)
    if emu == -1: G_.put(sb[AT - 1] + 20, "V", ("ins", "v_add_u32 v201, 0x10000, v%d" % VL16), force=True)
    def place_softmax(n, e0_, estep_, limit, dense=False):
        s = S[n % 2]; pk = PK[n % 2]; lo = LB[n % 2]; ln = LB[(n + 1) % 2]
        first = [True, True]; gl = 0; pend = []
        for e, (kt, G, r) in enumerate([(kt, G, r) for kt in range(2) for G in range(2) for r in range(4)]):
            src = s + 8 * kt + 4 * G + r; p = PT + e
            g = G_.put(e0_ + int(estep_ * e), "T", ("ins", "v_exp_f32 v%d, v%d" % (p, src)), force=True)
            pend.append((g + 1, "v_add_f32 v%d, v%d, v%d" % (ln + G, (lo if first[G] else ln) + G, p))); first[G] = False
            if r % 2 == 1: pend.append((g + 1, "v_cvt_pk_bf16_f32 v%d, v%d, v%d" % (pk + 4 * G + 2 * kt + r // 2, p - 1, p)))
        pend.append((0, "v_add_f32 v%d, v%d, v%d" % (TC, ln, ln + 1))); pend.append((0, "v_cmp_nge_f32 vcc, s%d, v%d" % (sTH, TC)))
        for k, (g, t) in enumerate(pend):
            st = max(g, gl)
            gl = G_.put(st, "V", ("ins", t), limit=min(st + (1 if dense else 4), limit - 1))
        G_.put(gl + 1, "S", ("chk", n), limit=limit)
    b0 = sb[AT]
    ops = []
    for G in range(2):
        e = [S[0] + 8 * kt + 4 * G + r for kt in range(2) for r in range(4)]
        m = MX + G
        ops += [("V", "v_max3_f32 v%d, v%d, v%d, v%d" % (m, e[0], e[1], e[2])), ("V", "v_max3_f32 v%d, v%d, v%d, v%d" % (m, m, e[3], e[4])),
                ("V", "v_max3_f32 v%d, v%d, v%d, v%d" % (m, m, e[5], e[6])), ("V", "v_max_f32 v%d, v%d, v%d" % (m, m, e[7]))]
        ops += xlane("v_max_f32", m, T0)
        ops += [("V", "v_sub_f32 v%d, v%d, v%d" % (x, x, m)) for x in e]
        ops += [("V", "v_mov_b32 v%d, 0" % (LB[0] + G))]
    g_init = G_.chain(ops, b0 + 4, b0 + 15)
    for n in range(NV):
        bn = sb[AT + n]
        if n == 0: place_softmax(0, g_init + 1, 0.75, pvs[0] - 1, dense=True)
        elif n == NV - 1: place_softmax(n, pvs[n - 1] + 6, 1.4, pvs[n], dense=True)
        else: place_softmax(n, estart[n], estep, bn + 31)
    def fix_ops(kt): return [("V", "v_sub_f32 v%d, v%d, v%d" % (S[1] + 8 * kt + 4 * G + r, S[1] + 8 * kt + 4 * G + r, MX + G)) for G in range(2) for r in range(4)]
    G_.chain(fix_ops(0), b0 + (30 if gray < 2 else 36), estart[1] - 1)
    G_.chain(fix_ops(1) + [("V", "v_sub_f32 v%d, 0, v%d" % (NEGM + 4 * G + r, MX + G)) for G in range(2) for r in range(4)], estart[1], min(estart[1] + 8 * estep + 6, b0 + 62))
    def place_dma(groups, g, dstep, tag):
        for pre, d, post in groups:
            g0 = g
            for x in pre: g0 = G_.put(g0 - 1, "S", ("ins", x), limit=g0 + 1) + 1
            g0 = G_.put(max(g, g0), "M", ("vm", d, tag), limit=max(g, g0) + 2)
            for x in post: G_.put(g0 + 1, "S", ("ins", x), limit=g0 + 2)
            g = max(g + dstep, g0 + 3)
        return g, g0
    place_dma(dma_ops(2), 3, 4, ("T", 2))
    dmaend = {}
    lead_pf = lambda d, v: ([], "buffer_load_dword v%d, v%d, %s, s%d offen" % (d, v, srd("PF"), sPFO), ["s_add_u32 s%d, s%d, 0x40010000" % (sPFO, sPFO)])
    for tau in range(NT - 3):
        nn = tau - AT
        groups = dma_ops(tau + 3)
        pre_g = []
        extra = []
        if tau in (3, 7, 11): extra = [lead_pf(44, 43)] if lpf & 1 else [([], 'buffer_load_dword v44, v45, %s, s%d offen' % (srd('DBG'), sAT), ['s_add_u32 s%d, s%d, 0x40010000' % (sPFO, sPFO)])]
        if nn in (1, 5) and lpf & 2: extra = [lead_pf(PFD, PFV)]
        if tau == 9: extra = [([], "buffer_store_dword v46, v47, %s, s%d offen sc1" % (srd("WS"), sFLW), [])]
        if nn in (2, 6): extra = [([], "buffer_atomic_add v3, v4, %s, s%d offen offset:4" % (srd("DBG"), sAT), ["s_sub_u32 s%d, s%d, 4096" % (sAT, sAT)])]
        if nn in (3, 7): extra = [([], "buffer_load_dword v%d, v%d, %s, s91 offen" % (PFD, PFW, srd("WO")), ["s_sub_u32 s91, s91, 0x400000"])]
        if nn in (0, 4, 8): extra = [([], "buffer_load_dword v%d, v%d, %s, s90 offen" % (PFD, PF2, srd("W2")), ["s_sub_u32 s90, s90, 0x400000"])]
        g = barpos[tau] + 3; hi = barpos[tau + 1] - 1
        dstep = min(dma_step, (hi - g) // (len(groups) + len(extra) + len(pre_g)))
        if pre_g: g, g0 = place_dma(pre_g, g, dstep, ("T", tau + 2))
        g, g0 = place_dma(groups, g, dstep, ("T", tau + 3))
        if extra: g, g0 = place_dma(extra, g, dstep, ("T", tau + 4))
        assert g0 <= barpos[tau + 1] + 1, (tau, g0, barpos[tau + 1])
        dmaend[tau] = g0
    for s in range(1, 14):
        G_.chain(center_ops(s), mark[("F1", s - 1)] + 1, mark[("F1", s)] - 1)
    q0 = sb[7]; q1 = sb[14]
    ops = []
    for G in range(2):
        a = CI + G; t = TMP + G; g = ST + 8 + 4 * G
        ops += [("V", "v_cndmask_b32 v%d, 0, v%d, s[%d:%d]" % (a, g, sDG, sDG + 1))]
        ops += [("V", "v_cndmask_b32 v%d, v%d, v%d, s[%d:%d]" % (a, a, g + r, sDG + 2 * r, sDG + 2 * r + 1)) for r in range(1, 4)]
        ops += xlane("v_add_f32", a, t)
        ops += [("V", "v_mul_f32 v%d, v%d, v%d" % (t, DM + G, DM + G)), ("V", "v_mul_f32 v%d, 0x%x, v%d" % (a, f2u(1.0 / 448), a)), ("V", "v_sub_f32 v%d, v%d, v%d" % (a, a, t)),
                ("V", "v_max_f32 v%d, 0, v%d" % (a, a)),
                ("V", "v_cvt_pk_bf16_f32 v%d, v%d, v%d" % (a, a, a)), ("V", "v_lshlrev_b32 v%d, 16, v%d" % (a, a)),
                ("V", "v_add_f32 v%d, 0x%x, v%d" % (a, f2u(1e-5), a)), ("V", "v_cvt_pk_bf16_f32 v%d, v%d, v%d" % (a, a, a)), ("V", "v_lshlrev_b32 v%d, 16, v%d" % (a, a)),
                ("T", "v_sqrt_f32 v%d, v%d" % (a, a)), ("V", "v_cvt_pk_bf16_f32 v%d, v%d, v%d" % (a, a, a)), ("V", "v_lshlrev_b32 v%d, 16, v%d" % (a, a)),
                ("T", "v_rcp_f32 v%d, v%d" % (t, a)), ("V", "v_mul_f32 v%d, v%d, v%d" % (a, a, a)),
                ("V", "v_mul_f32 v%d, 0x%x, v%d" % (RSQ + G, f2u(LOG2E / 16), t)), ("V", "v_mul_f32 v%d, 0x%x, v%d" % (RSN + G, f2u(-LOG2E), t))]
    gv = G_.chain(ops, mark[("F1", 13)] + 24, q0 + 32)
    els = [(t, G, r) for t in range(7) for G in range(2) for r in range(4)]
    def stage(i, st):
        t, G, r = els[i]
        b = WA + 3 * (i % 4); hv = WA + 12 + (i % 2)
        ga = GU + ((0 * 7 + t) * 2 + G) * 4 + r; ua = GU + ((7 + t) * 2 + G) * 4 + r
        if st == 0: return [("V", "v_accvgpr_read_b32 v%d, a%d" % (b, ga)), ("V", "v_accvgpr_read_b32 v%d, a%d" % (b + 1, ua)), ("V", "v_mul_f32 v%d, v%d, v%d" % (b + 2, b, RSN + G)), ("T", "v_exp_f32 v%d, v%d" % (b + 2, b + 2))]
        if st == 1: return [("V", "v_mul_f32 v%d, v%d, v%d" % (b, b, b + 1)), ("V", "v_fma_f32 v%d, v%d, v%d, v%d" % (b + 2, b + 2, CI + G, CI + G)), ("T", "v_rcp_f32 v%d, v%d" % (b + 2, b + 2))]
        o = [("V", "v_mul_f32 v%d, v%d, v%d" % (hv, b, b + 2))]
        if r % 2 == 1: o.append(("V", "v_cvt_pk_bf16_f32 v%d, v%d, v%d" % (H(t // 2, G) + 2 * (t & 1) + r // 2, WA + 12, WA + 13)))
        return o
    ops = []
    for i in range(len(els) + 2):
        if i < len(els): ops += stage(i, 0)
        if 0 <= i - 1 < len(els): ops += stage(i - 1, 1)
        if 0 <= i - 2 < len(els): ops += stage(i - 2, 2)
    for G in range(2): ops += [("V", "v_mov_b32 v%d, 0" % (H(3, G) + 2)), ("V", "v_mov_b32 v%d, 0" % (H(3, G) + 3))]
    gsw = G_.chain(ops, max(gv + 1, q0 + 34), sb[13] + 10, window=1)
    gprev = gsw + 1
    for k in range(8):
        ops = []
        for G in range(2):
            q = QF(G, k)
            dst = (16 + 4 * k) if q < 128 + 16 else q
            for half in range(2):
                a = O + 8 * (2 * k + half) + 4 * G
                tb = WA + 4 * ((2 * (2 * k + G) + half) % 3)
                ops += [("V", "v_accvgpr_read_b32 v%d, a%d" % (tb + r, a + r)) for r in range(4)]
                ops += [("V", "v_mul_f32 v%d, v%d, v%d" % (tb + r, tb + r, RSQ + G)) for r in range(4)]
                ops += [("V", "v_cvt_pk_bf16_f32 v%d, v%d, v%d" % (dst + 2 * half + p, tb + 2 * p, tb + 2 * p + 1)) for p in range(2)]
            ops += [("T", "v_permlane32_swap_b32 v%d, v%d" % (dst + p, dst + 2 + p)) for p in range(2)]
            ops += [("T", "v_permlane16_swap_b32 v%d, v%d" % (dst + p, dst + 2 + p)) for p in range(2)]
        st = max(gprev, sb[13] + 8 * k + 8 + 4)
        en = max(st, min(mark[("QK0", k)] - 1, (sb[13] + 12 + 13 * (k + 1)) if k < 4 else 10 ** 9, q1 - 1 if k < 4 else 10 ** 9))
        gprev = G_.chain(ops, st, en, window=1)
    for i in range(16): G_.put(q1, "V", ("ins", "v_mov_b32 v%d, v%d" % (128 + i, 16 + i)), force=True)
    G_.put(q1 + 5, "V", ("ins", "v_mov_b32 v%d, v41" % PF2), force=True)
    ops = []
    for k in range(4):
        for G in range(2):
            ops.append(("M", ("vm", "buffer_store_dwordx4 %s, v%d, %s, s%d offen offset:%d sc1" % (r4(H(k, G)), VL16, srd("WS"), sFO, 1024 * ((2 * k + G) & 3)), "hst")))
            if (k, G) == (1, 1): ops.append(("S", "s_add_u32 s%d, s%d, 4096" % (sFO, sFO)))
    G_.chain(ops, pvs[0] + 1, pvs[0] + 30, window=2)
    G_.put(q1 + 6, "V", ("ins", "v_mov_b32 v%d, v43" % PFV), force=True); G_.put(q1 + 7, "V", ("ins", "v_mov_b32 v%d, v42" % PFW), force=True)
    G_.put(q1 + 8, "V", ("ins", "v_mov_b32 v4, v45"), force=True); G_.put(q1 + 9, "V", ("ins", "v_mov_b32 v%d, v47" % AVP), force=True)
    G_.put(b0 + 1, "V", ("ins", "v_mov_b32 v3, 1"), force=True)
    G_.put(b0 + 2, "V", ("ins", "v_lshrrev_b32 v2, 24, v4"), force=True); G_.put(b0 + 3, "V", ("ins", "v_and_b32 v2, 0x40, v2"), force=True)
    ta = AT + TL
    G_.chain([("V", "v_mov_b32 v6, 0"), ("V", "v_mov_b32 v5, 0x24000"), ("V", "v_add_u32 v7, v2, v5"),
              ("M", ("vm", "buffer_load_dword v6, v4, %s, s%d offen offset:4 sc1" % (srd("DBG"), sCW), "fpoll"))], sb[ta] + 1, sb[ta] + 10)
    G_.chain([("S", ("waitvm", "fpoll")), ("D", ("ds", "ds_write_b32 v7, v6", "fw"))], barpos[ta + 1] - 8, barpos[ta + 1] - 4)
    G_.put(barpos[ta + 1] - 1, "S", ("waitlg", "fw"), force=True)
    sSH = 77; WV = 96
    def share_s():
        return ["s_lshr_b32 s16, s%d, 2" % sSH, "s_lshl_b32 s17, s%d, 2" % sQB, "s_add_u32 s16, s16, s17",
                "s_lshl_b32 s18, s16, 4", "s_lshl_b32 s17, s%d, 2" % sW, "s_add_u32 s18, s18, s17", "s_lshl_b32 s18, s18, 13", "s_add_u32 s18, s18, 0x%x" % WS_F,
                "s_and_b32 s19, s%d, 3" % sSH, "s_mul_i32 s%d, s%d, %d" % (sW2, sW, 448 * 896), "s_lshl_b32 s17, s19, 8", "s_add_u32 s%d, s%d, s17" % (sW2, sW2),
                "s_lshl_b32 s15, s16, 7", "s_add_u32 s15, s15, 0x%x" % WS_FL,
                "s_cmp_eq_u32 s19, 3\n    s_cselect_b32 s17, 3, 7"]
    def share_v():
        o = ["v_lshrrev_b32 v100, 8, v%d" % VL16, "v_bfe_u32 v101, v%d, 5, 3" % VL16, "v_mul_u32_u24 v102, 896, v100", "v_and_b32 v103, 16, v%d" % VL16, "v_add_u32 v102, v102, v103"]
        for j in range(4):
            o += ["v_add_u32 v103, %d, v100" % (4 * (j & 1)), "v_xor_b32 v103, v103, v101", "v_and_b32 v103, s17, v103", "v_lshl_add_u32 v103, v103, 5, v102", "v_add_u32 v%d, %d, v103" % (WV + j, j * (4 * 896 - 1024))]
        return o
    BF = lambda j: r4((128 + 4 * j) if j < 16 else 4 * (j - 16), "a")
    def bload(j): return "buffer_load_dwordx4 %s, v%d, %s, s18 offen offset:%d sc1" % (BF(j), VL16, srd("WS"), 1024 * (j & 3))
    RING = [0x20000, 0x24000] + [0x10000 * hf + 16384 * ((OT + j) % 4) for j in (3, 4, 5, 6) for hf in range(2)]
    def w2dma(i):
        return [(["s_add_u32 m0, s%d, %d" % (sM0, RING[i % 10])] if j == 0 else [], "buffer_load_dwordx4 v%d, %s, s%d offen offset:%d lds" % (WV + j, srd("W2"), sW2, 1024 * j),
                 ["s_add_u32 s%d, s%d, 14336" % (sW2, sW2)] if j == 3 else []) for j in range(4)]
    ops = [("D", ("ds", "ds_read_b32 v6, v5", "fr")), ("S", "s_mov_b32 s%d, s%d" % (sSH, sH))] + [("S", x) for x in share_s()]
    ops += [("S", ("waitlg", "fr")), ("V", "v_readfirstlane_b32 s%d, v6" % sFC)]
    if test_nof: ops += [("S", "s_bitcmp1_b32 %d, s%d\n    s_cselect_b32 s%d, 0, s%d" % (test_nof, sH, sFC, sFC))]
    ops += [("S", "s_cmp_eq_u32 s%d, 16\n    s_cselect_b32 s18, s18, 0x%x" % (sFC, BIG))]
    g = G_.chain(ops, barpos[ta + 1] + 1, barpos[ta + 1] + 24)
    bl = pvs[NV - 1]
    G_.put(bl + 8, "V", ("ins", "v_mov_b32 v%d, v%d" % (AVW, AVP)), force=True)
    G_.chain([("V", x) for x in share_v()], sb[OT + 1] + 2, sb[OT + 2] + 20)
    lo_ = g + 2; mid = sb[OT + 2] + 20; hi_ = sb[OT + 6] + 10
    for j in range(32):
        gq = lo_ + ((mid - lo_) * j) // 16 if j < 16 else mid + ((hi_ - mid) * (j - 16)) // 16
        gq = G_.put(max(gq, g + 1), "M", ("vm", bload(j), ("bl", j)), limit=max(gq, g + 1) + 3)
        if j & 3 == 3: G_.put(gq + 1, "S", ("ins", "s_add_u32 s18, s18, 4096"), limit=gq + 2)
        g = gq + 2
    G_.chain([("V", "v_bfe_u32 v104, v%d, 4, 4" % VL16), ("V", "v_lshlrev_b32 v104, 2, v104"), ("M", ("vm", "buffer_load_dword v6, v104, %s, s15 offen sc1" % srd("WS"), "poll"))], N - 6, N + 2)
    for i in range(2):
        g, g0 = place_dma(w2dma(i), dmaend[OT + 2 + i] + 3, 3, ("W", i))
        assert g0 + 2 < barpos[OT + 3 + i] + 2, (g0, barpos[OT + 3 + i])
    for j in (4, 5, 6):
        i = 2 * (j - 4) + 2
        g, g0 = place_dma(w2dma(i), barpos[OT + j] + 3, 5 if j < 6 else 3, ("W", i))
        g, g0 = place_dma(w2dma(i + 1), g, 5 if j < 6 else 3, ("W", i + 1))
        assert g0 + 2 < (barpos[OT + j + 1] + 2 if j < 6 else END), (j, g0)
    lf = LB[NV % 2]
    ops = []
    for G in range(2):
        ops += xlane("v_add_f32", lf + G, T0) + [("T", "v_rcp_f32 v%d, v%d" % (RL + G, lf + G))]
    gprev = G_.chain(ops, bl + 1, bl + 10)
    for k in range(8):
        ops = []
        for G in range(2):
            for half in range(2):
                a = O + 8 * (2 * k + half) + 4 * G
                tb = PT + 4 * ((2 * G + half) % 4)
                ops += [("V", "v_accvgpr_read_b32 v%d, a%d" % (tb + r, a + r)) for r in range(4)]
                ops += [("V", "v_cvt_pk_bf16_f32 v%d, v%d, v%d" % (OF(k, G) + 2 * half + p, tb + 2 * p, tb + 2 * p + 1)) for p in range(2)]
        st = max(gprev, bl + 4 * k + 4 + 5)
        en = max(st, min(mark[("O", k)] - 1, bl + 10 + 10 * (k + 1)))
        gprev = G_.chain(ops, st, en, window=1)
    gout = 0; lastst = {}
    for idx, (kind, g, acc, ch) in enumerate(outs):
        tb = TMP + 4 * (idx % 2)
        ops = []
        if kind == "S":
            ops += [("V", "v_mul_f32 v%d, v%d, v%d" % (acc + 4 * G + r, acc + 4 * G + r, RL + G)) for G in range(2) for r in range(4)]
        ops += [("V", "v_cvt_pk_bf16_f32 v%d, v%d, v%d" % (tb + 2 * G + p, acc + 4 * G + 2 * p, acc + 4 * G + 2 * p + 1)) for G in range(2) for p in range(2)]
        so = sSOe
        ops += [("M", ("vm", "buffer_store_dwordx4 %s, v%d, %s, s%d offen sc1" % (r4(tb), VL16, srd("WS"), so), ("st", ch))), ("S", "s_add_u32 s%d, s%d, 16384" % (so, so))]
        st = max(g + 5, gout + 1)
        gout = G_.chain(ops, st, min(st + (7 if kind == "F" else 13), END))
        lastst[ch] = gout
    pub = {NT - 1: -1}
    for c in range(6):
        g = max(lastst[c] + pub_lag, barpos[OT + 0] + 2)
        if g > N + 10: continue
        g = G_.put(g - 1, "V", ("ins", "v_mov_b32 v3, %d" % (c + 1)), limit=g + 2)
        g = G_.put(g + 1, "S", ("waitvm", ("st", c)), limit=g + 3)
        G_.put(g, "M", ("vm", "buffer_store_dword v3, v%d, %s, s%d offen sc1" % (AVW, srd("WS"), sFLW), "flg"), force=True)
    loops = [(sb[AT + 1], sb[AT + 5], sb[AT + 9], "A", range(5, 9))]
    rare_sites = []
    def stamp(k):
        I("s_memtime s[94:95]"); I("s_waitcnt lgkmcnt(0)")
        I("s_sub_u32 s94, s94, s98"); I("v_writelane_b32 v0, s94, %d" % k); I("s_mov_b32 s96, s94")
    def rstamp(k):
        I("s_memrealtime s[94:95]"); I("s_waitcnt lgkmcnt(0)"); I("v_writelane_b32 v0, s94, %d" % k)
    mk_ = {}
    for i in range(END + 1):
        for (ls, le, ce, nm, drop) in loops:
            if i == le: mk_[nm + "1"] = len(P.lines)
            if i == ce:
                m0_, m1_ = mk_[nm + "0"], mk_[nm + "1"]
                A = P.lines[m0_:m1_]; B = P.lines[m1_:]
                norm = lambda L_: [re.sub(r"L_(rare|back)_\d+", "L_x", x) for x in L_]
                assert len(A) == len(B), (nm, len(A), len(B), [(a, b) for a, b in zip(norm(A), norm(B)) if a != b][:6])
                for k_, (a_, b_) in enumerate(zip(norm(A), norm(B))):
                    if a_ != b_:
                        ma = re.fullmatch(r"\s*s_waitcnt vmcnt\((\d+)\)", a_); mb = re.fullmatch(r"\s*s_waitcnt vmcnt\((\d+)\)", b_)
                        assert ma and mb, (nm, a_, b_)
                        if int(mb.group(1)) < int(ma.group(1)): P.lines[m0_ + k_] = b_
                del P.lines[m1_:]
                rare_sites = [x for x in rare_sites if x not in drop]
                I("s_add_u32 s%d, s%d, 1" % (sLOOP, sLOOP)); I("s_cmp_lt_u32 s%d, %d" % (sLOOP, 15)); I("s_cbranch_scc1 L_loop%s" % nm)
        if timing and i in sb:
            t_ = sb.index(i)
            if t_ <= AT + 1: stamp(t_)
            elif t_ >= AT + 9: stamp(t_ - (AT + 9) + 22)
            if t_ == AT + 9:
                rstamp(41)
                for k_ in range(17, 22): I("v_writelane_b32 v0, s96, %d" % k_)
            if i == N: rstamp(42)
        for (ls, le, ce, nm, drop) in loops:
            if i == ls:
                I("s_mov_b32 s%d, 0" % sLOOP)
                P.label("L_loop%s" % nm); mk_[nm + "0"] = len(P.lines)
        for it in G_.items(i):
            if it[0] == "ds": P.ds(it[1], it[2])
            elif it[0] == "bar":
                tau = it[1]
                if tau + 1 < NT or tau in pub:
                    P.wait(vm=[("T", tau + 1)] + [("st", c) for c in range(-1, pub.get(tau, -1))]); I("s_barrier")
            elif it[0] == "vm": P.vmem(it[1], it[2])
            elif it[0] == "waitslot":
                if i > 0: P.wait(lg=[("f", it[1])], maxq=12)
            elif it[0] == "chk":
                if it[1] > 0:
                    I("s_cbranch_vccnz L_rare_%d" % it[1]); P.label("L_back_%d" % it[1]); rare_sites.append(it[1])
            elif it[0] == "nil": pass
            elif it[0] == "waitvm": P.wait(vm=[it[1]])
            elif it[0] == "waitlg": P.wait(lg=[it[1]])
            else:
                for x in it[1].split("\n"): I(x.strip())
        if i < N:
            f = fr[seq[i][0]]; d, b, c, ao = f["mf"][seq[i][1]]
            P.wait(lg=[("f", seq[i][0])])
            I("%s %s, %s, %s, %s" % (MF, d, ao or f["fr"], b, c))
    SEL = 48; AC = 192; RA = 64; TT = 56; XV = 88; PV = 104; THR = 90; V4 = 92; XR = 16; LA = 105; TQ = 106; SS = 24; GV = 128
    sRD, sSP, sALL, sPE, sM1, sM2, sB, sX = 78, 79, 83, 4, 5, 6, 8, 10
    slot = lambda b: r4(64 + 4 * b, "a") if b < 16 else r4(128 + 4 * (b - 16))
    def consts():
        I("v_lshrrev_b32 v107, 4, v%d" % VL16); I("v_and_b32 v108, 15, v107"); I("v_lshrrev_b32 v109, 4, v107")
        I("v_bfe_u32 v110, v107, 2, 4"); I("v_and_b32 v111, 3, v107"); I("v_and_b32 v112, 7, v110"); I("v_lshlrev_b32 v113, 8, v110"); I("v_lshl_add_u32 v113, v111, 3, v113"); I("v_add_u32 v113, s%d, v113" % sM0)
        for t in range(8):
            I("v_xor_b32 v111, %d, v112" % t); I("v_lshl_add_u32 v%d, v111, 5, v113" % (RA + t)); I("v_add_u32 v%d, 0x10000, v%d" % (RA + 8 + t, RA + t)); I("v_add_u32 v%d, 0x20000, v%d" % (RA + 16 + t, RA + t))
        I("v_lshrrev_b32 v110, 2, v108"); I("v_cmp_eq_u32 vcc, v110, v109"); I("v_and_b32 v111, 1, v108"); I("v_lshlrev_b32 v111, 4, v111"); I("v_mov_b32 v112, 0x3f80"); I("v_lshlrev_b32 v112, v111, v112")
        I("v_cndmask_b32 v112, 0, v112, vcc"); I("v_and_b32 v111, 2, v108"); I("v_cmp_eq_u32 vcc, 0, v111")
        for r in (0, 1, 4, 5): I("v_mov_b32 v%d, 0" % (SEL + r))
        I("v_cndmask_b32 v%d, 0, v112, vcc" % (SEL + 2)); I("v_cndmask_b32 v%d, v112, 0, vcc" % (SEL + 3))
        I("v_and_b32 v55, 1, v109")
        I("v_mul_u32_u24 v%d, 896, v108" % XV); I("v_lshl_add_u32 v%d, v109, 3, v%d" % (XV, XV)); I("v_add_u32 v%d, 14336, v%d" % (XV + 1, XV))
        for q in range(4): I("v_add_u32 v%d, %d, v%d" % (V4 + q, 4096 * q, VL16))
        I("v_add_u32 v%d, s%d, v%d" % (LA, sM0, VL16))
        I("s_lshr_b32 s84, s%d, 1" % sW); I("s_lshl_b32 s84, s84, 14"); I("s_and_b32 s82, s%d, 1" % sW); I("s_lshl_b32 s82, s82, 11"); I("s_add_u32 s82, s82, s84"); I("v_add_u32 v%d, s82, v%d" % (TQ, VL16))
    def call(lbl): I("s_call_b64 s[88:89], %s" % lbl)
    I("v_mov_b32 v3, 7"); I("v_mov_b32 v7, 1"); I("v_mov_b32 v5, 0x10000")
    I("s_mov_b32 s%d, 0" % sALL); I("s_mov_b32 s%d, 0" % sRD)
    consts()
    P.wait(vm=[("st", 6)])
    P.vmem("buffer_store_dword v3, v%d, %s, s%d offen sc1" % (AVW, srd("WS"), sFLW), "flg")
    I("s_barrier")
    if timing: stamp(33)
    I("s_cmp_eq_u32 s%d, 16" % sFC); I("s_cbranch_scc1 L_arr"); I("v_mov_b32 v7, 0x101"); P.label("L_arr")
    P.vmem("buffer_atomic_add v7, v4, %s, s%d offen sc0" % (srd("DBG"), sCW), "arr")
    I("s_cmp_lg_u32 s%d, 16" % sFC); I("s_cbranch_scc1 L_done")
    P.label("L_roles")
    for i in (8, 9):
        for g_ in w2dma(i): issue_group(g_, ("W", i))
    I("s_mul_i32 s84, s16, %d" % (32 * 896)); I("s_lshl_b32 s85, s19, 8"); I("s_add_u32 s84, s84, s85"); I("s_lshl_b32 s85, s%d, 5" % sW); I("s_add_u32 s%d, s84, s85" % sX); I("s_add_u32 s%d, s%d, 128" % (sX + 1, sX))
    I("s_mul_i32 s82, s16, 28"); I("s_lshl_b32 s84, s19, 3"); I("s_add_u32 s82, s82, s84"); I("s_add_u32 s82, s82, s%d" % sW); I("s_lshl_b32 s%d, s82, 14" % sB); I("s_add_u32 s%d, s%d, 0x10000" % (sB + 1, sB))
    I("s_cmp_eq_u32 s19, 3"); I("s_cselect_b32 s%d, 0xffff, -1" % sPE); I("s_cselect_b32 s%d, 0x%x, s%d" % (sX + 1, BIG, sX + 1))
    I("s_mov_b32 s%d, %d" % (sSP, spin))
    I("s_lshl_b32 s82, s19, 1"); I("v_add_u32 v%d, s82, v55" % THR)
    for r in range(16): I("v_mov_b32 v%d, 0" % (SS + r))
    def ready(dst, lim=None):
        I("v_cmp_lt_u32 vcc, v%d, v6" % THR); I("s_cmp_eq_u32 s%d, 1" % sALL); I("s_cselect_b32 s14, -1, vcc_lo"); I("s_and_b32 s14, s14, s%d" % sPE)
        if lim: I("s_and_b32 s14, s14, 0x%x" % lim)
        I("s_andn2_b32 s%d, s%d, s14" % (sPE, sPE))
    P.wait(vm=["poll"])
    if timing: stamp(54)
    fl = []
    for hd in range(4):
        for k in range(4):
            a_ = 7 * hd + 2 * k; b_ = a_ + 1 if k < 3 else a_
            for tt in range(8): fl.append((hd, k, tt, a_, b_))
    LD = 6
    pend = []
    def rd(fi, half):
        hd, k, tt, a_, b_ = fl[fi]
        ht = b_ if half else a_; base = RING[ht % 10]; r = FRA + 4 * (fi % 16) + 2 * half
        P.wait(vm=[("W", ht)])
        P.ds("ds_read_b64_tr_b16 a[%d:%d], v%d offset:%d" % (r, r + 1, RA + 8 * (base >> 16) + tt, base & 0xffff), ("g", fi))
    for fi in range(LD): rd(fi, 0); rd(fi, 1)
    for fi, (hd, k, tt, a_, b_) in enumerate(fl):
        if timing and k == 0 and tt == 0 and hd > 0: stamp(54 + hd)
        P.wait(lg=[("g", fi)], vm=[("bl", 8 * hd + 2 * k), ("bl", 8 * hd + 2 * k + 1)])
        if tt == 7:
            for ht in sorted({a_, b_}):
                if ht + 10 < 28: pend += [(g_, ("W", ht + 10)) for g_ in w2dma(ht + 10)]
                if ht + 10 == poll2 + 10: pend += ["poll"]
                if ht + 10 == 27: pend += ["skip"] * r2delay + ["round2"]
        for G in range(2):
            d = r4(AC + 8 * tt + 4 * G)
            I("%s %s, %s, %s, %s" % (MF, d, r4(FRA + 4 * (fi % 16), "a"), BF(8 * hd + 2 * k + G), "0" if (hd, k) == (0, 0) else d))
            if fi + LD < len(fl): rd(fi + LD, G)
        if fi == r1_at: ready(None, r1mask); call("L_loadpass")
        if tt == 0 and 4 * hd + k == sum_ks:
            P.wait(vm=[("W", 12)]); call("L_sumpass")
        if pend:
            p_ = pend.pop(0)
            if p_ == "poll": P.vmem("buffer_load_dword v6, v%d, %s, s15 offen sc1" % (PV, srd("WS")), "poll")
            elif p_ == "round2":
                P.wait(vm="all"); ready(sM2); call("L_loadpass")
                for q in range(2):
                    for G in range(2): I("buffer_load_dwordx2 v[%d:%d], v%d, %s, s%d offen" % (XR + 4 * q + 2 * G, XR + 4 * q + 2 * G + 1, XV + G, srd("X"), sX + q))
                I("buffer_load_dword v6, v%d, %s, s15 offen sc1" % (PV, srd("WS")))
            elif p_ == "skip": pass
            else: issue_group(*p_)
    assert not pend
    if timing: stamp(58)
    P.vm = []; P.lgkm = []
    def lofs(tt, G): return 16384 * (tt >> 1) + 2048 * (tt & 1) + 1024 * G
    for tt in range(8):
        for G in range(2): I("ds_write_b128 v%d, %s offset:%d" % (LA, r4(AC + 8 * tt + 4 * G), lofs(tt, G)))
    I("s_waitcnt lgkmcnt(0)"); I("s_barrier")
    if timing: stamp(59)
    def rnd2(a_):
        I("v_cvt_pk_bf16_f32 v%d, v%d, v%d" % (TT, a_, a_ + 1)); I("v_lshlrev_b32 v%d, 16, v%d" % (a_, TT)); I("v_and_b32 v%d, s%d, v%d" % (a_ + 1, sMASK, TT))
    for q in range(2):
        for wv in range(4):
            for G in range(2): I("ds_read_b128 %s, v%d offset:%d" % (r4(AC + 32 * q + 8 * wv + 4 * G), TQ, 32768 * q + 4096 * wv + 1024 * G))
        if q == 0: I("s_waitcnt lgkmcnt(0)")
    for q in range(2):
        if q == 1: I("s_waitcnt lgkmcnt(0)")
        b_ = AC + 32 * q
        for wv in range(1, 4):
            for e in range(8): I("v_add_f32 v%d, v%d, v%d" % (b_ + e, b_ + e, b_ + 8 * wv + e))
        for j in range(4):
            f_ = b_ + 2 * j
            rnd2(f_)
            for e in range(2): I("v_mul_f32 v%d, 0x%x, v%d" % (TT + 1 + e, f2u(-LOG2E), f_ + e))
            for e in range(2): I("v_exp_f32 v%d, v%d" % (TT + 1 + e, TT + 1 + e))
            for e in range(2): I("v_add_f32 v%d, 1.0, v%d" % (TT + 1 + e, TT + 1 + e))
            for e in range(2): I("v_rcp_f32 v%d, v%d" % (TT + 1 + e, TT + 1 + e))
            for e in range(2): I("v_mul_f32 v%d, v%d, v%d" % (f_ + e, f_ + e, TT + 1 + e))
            rnd2(f_)
    if timing: stamp(35)
    if test_fail: I("s_cmp_eq_u32 s%d, 1" % sALL); I("s_cbranch_scc1 L_round"); I("s_cmp_eq_u32 s%d, %d" % (sSH, test_fail)); I("s_cbranch_scc1 L_giveup")
    P.label("L_round")
    I("s_waitcnt vmcnt(0)")
    call("L_sumpass")
    I("s_cmp_eq_u32 s%d, 0" % sPE); I("s_cbranch_scc1 L_last")
    ready(None); call("L_loadpass")
    I("buffer_load_dword v6, v%d, %s, s15 offen sc1" % (PV, srd("WS")))
    I("s_sub_u32 s%d, s%d, 1" % (sSP, sSP)); I("s_cmp_lg_u32 s%d, 0" % sSP); I("s_cbranch_scc1 L_round")
    P.label("L_giveup")
    I("v_mov_b32 v%d, 0x100" % TT); I("buffer_atomic_add v%d, v%d, %s, s%d offen sc0" % (TT, AVW, srd("DBG"), sCW)); I("s_waitcnt vmcnt(0)")
    I("v_readfirstlane_b32 s82, v%d" % TT); I("s_nop 0"); I("s_and_b32 s82, s82, 31"); I("s_cmp_lg_u32 s82, 16"); I("s_cbranch_scc1 L_sdone")
    I("s_mov_b32 s%d, 1" % sALL); I("s_mov_b32 s%d, 100" % sSP); I("s_branch L_round")
    P.label("L_last")
    I("s_nop 5")
    for q in range(2):
        for j in range(4):
            f_ = AC + 32 * q + 2 * j; s_ = SS + 8 * q + 2 * j; x_ = XR + 4 * q + j
            rnd2(s_)
            for e in range(2): I("v_mul_f32 v%d, v%d, v%d" % (s_ + e, s_ + e, f_ + e))
            rnd2(s_)
            I("v_lshlrev_b32 v%d, 16, v%d" % (TT + 1, x_)); I("v_and_b32 v%d, s%d, v%d" % (TT + 2, sMASK, x_))
            for e in range(2): I("v_add_f32 v%d, v%d, v%d" % (s_ + e, s_ + e, TT + 1 + e))
            I("v_cvt_pk_bf16_f32 v%d, v%d, v%d" % (x_, s_, s_ + 1))
            if j % 2 == 1: I("buffer_store_dwordx2 v[%d:%d], v%d, %s, s%d offen" % (x_ - 1, x_, XV + (j >> 1), srd("OUT"), sX + q))
    P.label("L_sdone")
    I("s_cmp_eq_u32 s%d, 0" % sRD); I("s_cbranch_scc1 L_done")
    I("s_add_u32 s%d, s%d, 1" % (sSH, sSH)); I("s_cmp_lt_u32 s%d, 16" % sSH); I("s_cbranch_scc1 L_cold"); I("s_branch L_fin")
    P.label("L_loadpass")
    for u in range(2):
        I("s_bfe_u32 s82, s14, 0x%x" % (0x100000 + 16 * u)); I("s_bcnt1_i32_b32 s%d, s82" % (sM1 + u))
        for k in range(16):
            I("s_cbranch_scc0 L_lp%d" % u)
            I("s_ff1_i32_b32 s84, s82"); I("s_lshl_b32 s85, s84, 10"); I("s_add_u32 s85, s85, s%d" % (sB + u)); I("s_bitset0_b32 s82, s84")
            I("buffer_load_dwordx4 %s, v%d, %s, s85 offen sc1" % (slot(16 * u + k), VL16, srd("WS")))
            I("s_cmp_lg_u32 s82, 0")
        P.label("L_lp%d" % u)
    I("s_setpc_b64 s[88:89]")
    P.label("L_sumpass")
    for u in range(2):
        for k in range(16):
            I("s_cmp_le_u32 s%d, %d" % (sM1 + u, k)); I("s_cbranch_scc1 L_sp%d" % u)
            for hi in range(2):
                d = r4(SS + 8 * u + 4 * hi); I("%s %s, %s, %s, %s" % (MF, d, r4(SEL + (0 if hi else 2)), slot(16 * u + k), d))
        P.label("L_sp%d" % u)
        I("s_mov_b32 s%d, 0" % (sM1 + u))
    I("s_setpc_b64 s[88:89]")
    P.label("L_done")
    I("s_cmp_lg_u32 s%d, 0" % sW); I("s_cbranch_scc1 L_meet")
    I("s_waitcnt vmcnt(0)"); I("v_readfirstlane_b32 s82, v7"); I("s_nop 1"); I("v_mov_b32 v6, s82"); I("ds_write_b32 v5, v6 offset:128"); I("s_waitcnt lgkmcnt(0)")
    P.label("L_meet")
    I("s_barrier")
    I("ds_read_b32 v7, v5 offset:128"); I("s_waitcnt lgkmcnt(0)"); I("v_readfirstlane_b32 s82, v7"); I("s_nop 0")
    I("s_and_b32 s84, s82, 31"); I("s_cmp_lg_u32 s84, 15"); I("s_cbranch_scc1 L_fin")
    I("s_lshr_b32 s82, s82, 8"); I("s_cmp_lg_u32 s%d, 16" % sFC); I("s_cselect_b32 s84, 1, 0"); I("s_or_b32 s82, s82, s84")
    I("s_cmp_eq_u32 s82, 0"); I("s_cbranch_scc1 L_fin")
    I("s_mov_b32 s%d, 1" % sRD); I("s_mov_b32 s%d, 1" % sALL); I("s_mov_b32 s%d, 0" % sSH)
    P.label("L_cold")
    I("s_waitcnt vmcnt(0) lgkmcnt(0)"); I("s_barrier")
    for x in share_s() + share_v():
        for y in x.split("\n"): I(y.strip())
    for j in range(32):
        I(bload(j))
        if j & 3 == 3: I("s_add_u32 s18, s18, 4096")
    I("s_waitcnt vmcnt(0)")
    P.vm = []
    for i in range(8):
        for g_ in w2dma(i): issue_group(g_, "x")
    I("s_waitcnt vmcnt(0) lgkmcnt(0)"); P.vm = []
    I("s_barrier"); I("s_branch L_roles")
    P.label("L_fin")
    if timing:
        I("s_waitcnt vmcnt(0)"); P.vm = []
        stamp(34); rstamp(43); I("v_writelane_b32 v0, s100, 40")
        I("s_lshl_b32 s94, s2, 2"); I("s_add_u32 s94, s94, s%d" % sW); I("s_lshl_b32 s94, s94, 10"); I("s_add_u32 s94, s94, 0x%x" % WS_T)
        I("buffer_store_dword v0, v%d, %s, s94 offen" % (VL16, srd("WS")))
    P.label("L_end"); I("s_endpgm")
    P.label("L_code_end")
    for n in rare_sites:
        P.label("L_rare_%d" % n); I("s_mov_b32 s%d, %d" % (sRET, n)); I("s_branch L_rp_%d" % (n % 2))
    for par in range(2):
        P.label("L_rp_%d" % par)
        I("s_nop 15")
        s = S[par]; s2 = S[1 - par]; lo = LB[par]; ln = LB[1 - par]; pk = PK[par]
        for G in range(2):
            e = [s + 8 * kt + 4 * G + r for kt in range(2) for r in range(4)]
            e2 = [s2 + 8 * kt + 4 * G + r for kt in range(2) for r in range(4)]
            m = MX + G
            I("v_log_f32 v%d, v%d" % (m, lo + G))
            I("v_max3_f32 v%d, v%d, v%d, v%d" % (T0, e[0], e[1], e[2])); I("v_max3_f32 v%d, v%d, v%d, v%d" % (T0, T0, e[3], e[4]))
            I("v_max3_f32 v%d, v%d, v%d, v%d" % (T0, T0, e[5], e[6])); I("v_max3_f32 v%d, v%d, v%d, v%d" % (m, m, T0, e[7]))
            for k, t in xlane("v_max_f32", m, T0): I(t)
            I("v_max_f32 v%d, 0, v%d" % (m, m))
            I("v_exp_f32 v%d, -v%d" % (TC, m))
            for x in e + e2 + [NEGM + 4 * G + r for r in range(4)]: I("v_sub_f32 v%d, v%d, v%d" % (x, x, m))
            I("v_mul_f32 v%d, v%d, v%d" % (lo + G, lo + G, TC))
            for t in range(16):
                for r in range(4): I("v_accvgpr_read_b32 v%d, a%d" % (PT + r, O + 8 * t + 4 * G + r))
                for r in range(4): I("v_mul_f32 v%d, v%d, v%d" % (PT + r, PT + r, TC))
                for r in range(4): I("v_accvgpr_write_b32 a%d, v%d" % (O + 8 * t + 4 * G + r, PT + r))
            for j, x in enumerate(e): I("v_exp_f32 v%d, v%d" % (PT + j, x))
            I("v_add_f32 v%d, v%d, v%d" % (ln + G, lo + G, PT))
            for j in range(1, 8): I("v_add_f32 v%d, v%d, v%d" % (ln + G, ln + G, PT + j))
            for j in range(4): I("v_cvt_pk_bf16_f32 v%d, v%d, v%d" % (pk + 4 * G + j, PT + 2 * j, PT + 2 * j + 1))
        I("s_nop 3")
        mine = [n for n in rare_sites if n % 2 == par]
        for n in mine[:-1]:
            I("s_cmp_eq_u32 s%d, %d" % (sRET, n)); I("s_cbranch_scc1 L_back_%d" % n)
        I("s_branch L_back_%d" % mine[-1])
    rep = []
    P.lines = fix_hazards(P.lines, rep)
    if verbose:
        print("K1: MFMAs(virtual) %d, nops inserted %d (total ws %d) pub %s" % (N, len(rep), sum(r[1] for r in rep), pub))
        print("penalty per step:", [G_.total_pen(sb[t], sb[t + 1]) for t in range(len(sb) - 1)])
    for p in check_text(P.text()): print(p)
    return P.text(), rep, G_, sb

def head():
    import os
    p = "cdna_kernels/%s.s.ref" % NAME
    return open(p).read().split("; Override launch")[0] if os.path.exists(p) else ""
def build(**kw):
    k1, rep, G_, sb = gen_k1(**kw)
    s = head()
    s += "; @launch grid=(256,1,1) block=(256,1,1) lds=163840\n"
    s += '.amdgcn_target "amdgcn-amd-amdhsa--gfx950"\n.text\n'
    s += ".globl %s\n.p2align 8\n.type %s,@function\n%s:\n%s" % (K1, K1, K1, k1)
    s += '''.section .rodata,"a"
.p2align 6
.amdhsa_kernel %s
  .amdhsa_next_free_vgpr 512
  .amdhsa_next_free_sgpr 102
  .amdhsa_accum_offset 256
  .amdhsa_group_segment_fixed_size 0
  .amdhsa_kernarg_size 96
  .amdhsa_user_sgpr_count 2
  .amdhsa_user_sgpr_kernarg_segment_ptr 1
  .amdhsa_system_sgpr_workgroup_id_x 1
.end_amdhsa_kernel
''' % K1
    return s, rep, G_, sb

if __name__ == "__main__":
    import json
    if len(sys.argv) > 1:
        for name, kw in json.loads(sys.argv[1]).items():
            open(name, "w").write(build(verbose=False, **kw)[0])
    else:
        open("k24_a.s", "w").write(build()[0])
        open("k24_fail.s", "w").write(build(test_fail=5, verbose=False)[0])
        open("k24_nof.s", "w").write(build(test_nof=0x0410, spin=40, verbose=False)[0])
        open("k24_at.s", "w").write(build(timing=True, verbose=False)[0])
```

```python
import kx2, kgen28, re
open("z_base.s", "w").write(kgen28.build(verbose=False)[0])
t = kx2.build(verbose=False, emu=1, chain=6)[0]
open("z_half.s", "w").write(t)
L = t.split("\n")
iq = [k for k, x in enumerate(L) if re.search(r"mfma\S* v\[16:19\], a\[128:131\], v\[128:131\], 0", x)][0]
io = [k for k, x in enumerate(L) if re.search(r"mfma\S* v\[192:195\], a\[\d+:\d+\], v\[128:131\], 0", x)][0]
def qx():
    o = ["    v_add_u32 v200, 0x20000, v1", "    s_waitcnt lgkmcnt(0)", "    s_barrier"]
    for r in range(2):
        o += ["    ds_write_b128 v200, v[%d:%d] offset:%d" % (128 + 4 * i, 131 + 4 * i, 1024 * i) for i in range(8)]
    o += ["    s_waitcnt lgkmcnt(0)", "    s_barrier"]
    for r in range(2):
        o += ["    ds_read_b128 v[%d:%d], v200 offset:%d" % (204, 207, 1024 * i) for i in range(8)] + ["    s_waitcnt lgkmcnt(0)"]
    o += ["    v_exp_f32 v204, v205"] * 60
    return o
def om():
    o = ["    v_add_u32 v200, 0x20000, v1", "    s_waitcnt lgkmcnt(0)"]
    for i in range(16):
        o += ["    v_accvgpr_read_b32 v204, a%d" % (8 * i + j) for j in range(8)] + ["    v_mul_f32 v205, v204, v60"] * 8 + ["    v_cvt_pk_bf16_f32 v206, v205, v204"] * 4
        o += ["    ds_write_b128 v200, v[204:207] offset:%d" % (1024 * (i % 8))]
    o += ["    s_waitcnt lgkmcnt(0)", "    s_barrier"]
    for i in range(16):
        o += ["    ds_read_b128 v[204:207], v200 offset:%d" % (1024 * (i % 8))]
        if i % 8 == 7: o += ["    s_waitcnt lgkmcnt(0)"]
    o += ["    v_mfma_f32_16x16x32_bf16 v[208:211], v[204:207], v[204:207], 0"] * 32 + ["    s_nop 7"]
    return o
M = L[:iq] + qx() + L[iq:io] + om() + L[io:]
open("z_ks.s", "w").write("\n".join(M))
```
